```python
import torch

def _softmax(x, axis=-1):
    return torch.softmax(x, dim=axis)
def _gelu(x):
    return torch.nn.functional.gelu(x, approximate="tanh")
def _silu(x):
    return torch.nn.functional.silu(x)
def _sigmoid(x):
    return torch.sigmoid(x)
def _layernorm(x, axis=-1, eps=1e-5):
    m = x.mean(dim=axis, keepdim=True)
    v = x.var(dim=axis, keepdim=True, unbiased=False)
    return (x - m) / torch.sqrt(v + eps)
def _scatter_add(tgt, idx, src, axis=0):
    return tgt.clone().index_add_(axis, idx, src)
def _segment_sum(src, seg, n):
    out = torch.zeros((n,) + src.shape[1:], dtype=src.dtype)
    return out.index_add_(0, seg, src)
def _pad(x, pw):
    flat = tuple(v for pair in reversed(pw) for v in pair)
    return torch.nn.functional.pad(x, flat)

kernel_name = 'recurrent_scan__mha_block__glu_gated_glu__prompt'

def setup_inputs():

    _w = (lambda a: (lambda t: t.to(torch.bfloat16) if t.is_floating_point() else t)(torch.as_tensor(a)))
    def _A_setup():
        B, S, D, H = 1, 2048, 512, 32
        return {
            "x": _w((lambda *s: torch.randn(*s, dtype=torch.bfloat16) * 0.05)(B, S, D)),
            "wqkv": _w((lambda *s: torch.randn(*s, dtype=torch.bfloat16) * 0.05)(D, 3 * D)),
            "wo": _w((lambda *s: torch.randn(*s, dtype=torch.bfloat16) * 0.05)(D, D)),
        }
    _A_in = _A_setup()

    def _B_setup():
        B, S, D, F = 1, 2048, 512, 1792
        return {
            "x": _w((lambda *s: torch.randn(*s, dtype=torch.bfloat16) * 0.05)(B, S, D)),
            "w_gate": _w((lambda *s: torch.randn(*s, dtype=torch.bfloat16) * 0.05)(D, F)),
            "w_up": _w((lambda *s: torch.randn(*s, dtype=torch.bfloat16) * 0.05)(D, F)),
            "w_down": _w((lambda *s: torch.randn(*s, dtype=torch.bfloat16) * 0.05)(F, D)),
        }
    _B_in = _B_setup()

    return {
        "A_x": _A_in["x"],
        "A_wqkv": _A_in["wqkv"],
        "A_wo": _A_in["wo"],
        "B_x": _B_in["x"],
        "B_w_gate": _B_in["w_gate"],
        "B_w_up": _B_in["w_up"],
        "B_w_down": _B_in["w_down"],
    }

def reference(A_x, A_wqkv, A_wo, B_x, B_w_gate, B_w_up, B_w_down):
    def _A_ref(x, wqkv, wo):
        B, S, D = x.shape
        H = 32
        Dh = D // H
        qkv = (lambda x, *d: x.permute(*d))((x @ wqkv).reshape(B, S, 3, H, Dh), 2, 0, 3, 1, 4)
        q, k, v = qkv[0], qkv[1], qkv[2]
        scores = torch.einsum("bhqd,bhkd->bhqk", q, k) * (Dh ** -0.5)
        p = _softmax(scores, axis=-1)
        o = torch.einsum("bhqk,bhkd->bhqd", p, v)
        return (lambda x, *d: x.permute(*d))(o, 0, 2, 1, 3).reshape(B, S, D) @ wo

    def _B_ref(x, w_gate, w_up, w_down):
        g = torch.einsum("bsd,df->bsf", x, w_gate)
        u = torch.einsum("bsd,df->bsf", x, w_up)
        h = _sigmoid(g) * u
        return torch.einsum("bsf,fd->bsd", h, w_down)

    x = A_x
    xn = _layernorm(x, axis=-1)
    s = _A_ref(xn, A_wqkv, A_wo)
    g = _silu(_B_ref(xn, B_w_gate, B_w_up, B_w_down))
    return x + s * g
```

```python
class Asm:
    def __init__(self):
        self.lines = []
    def __call__(self, s):
        for l in s.split("\n"):
            l = l.strip()
            if l:
                self.lines.append("    " + l)
    def label(self, l):
        self.lines.append(l + ":")
    def raw(self, s):
        self.lines.append(s)
    def comment(self, s):
        self.lines.append("    ; " + s)
    def text(self):
        return "\n".join(self.lines) + "\n"

def v(i, n=1):
    return f"v{i}" if n == 1 else f"v[{i}:{i+n-1}]"
def a(i, n=1):
    return f"a{i}" if n == 1 else f"a[{i}:{i+n-1}]"
def s(i, n=1):
    return f"s{i}" if n == 1 else f"s[{i}:{i+n-1}]"

def kernel_begin(A, name):
    A.raw(f".globl {name}")
    A.raw(".p2align 8")
    A.raw(f".type {name},@function")
    A.label(name)

def kernel_desc(name, vgpr, sgpr=102, accum=None):
    if accum is None:
        accum = (vgpr + 3) // 4 * 4
    return f""".p2align 6
.amdhsa_kernel {name}
  .amdhsa_next_free_vgpr {vgpr}
  .amdhsa_next_free_sgpr {sgpr}
  .amdhsa_accum_offset {accum}
  .amdhsa_group_segment_fixed_size 0
  .amdhsa_kernarg_size 80
  .amdhsa_user_sgpr_count 2
  .amdhsa_user_sgpr_kernarg_segment_ptr 1
  .amdhsa_system_sgpr_workgroup_id_x 1
.end_amdhsa_kernel
"""

def srd(A, d, base, nbytes, off=0):
    if off:
        A(f"s_add_u32 s{d}, s{base}, {off}")
        A(f"s_addc_u32 s{d+1}, s{base+1}, 0")
    else:
        A(f"s_mov_b32 s{d}, s{base}")
        A(f"s_mov_b32 s{d+1}, s{base+1}")
    A(f"s_mov_b32 s{d+2}, {nbytes}")
    A(f"s_mov_b32 s{d+3}, 0x00020000")

WS_Q  = 0
WS_KV = 2 << 20
WS_O  = 6 << 20
WS_H  = 8 << 20
WS_FF = 16 << 20
WS_END = 32 << 20
WS_XF = 24 << 20
WS_G  = 28 << 20

class Cnt:
    def __init__(self, A, name, maxn):
        self.A = A; self.name = name; self.maxn = maxn; self.seq = []
    def issue(self, tag):
        if len(self.seq) >= self.maxn:
            last = self.A.lines.pop()
            keep = self.maxn - 6 if self.maxn == 15 else self.maxn - 1
            self.A(f"s_waitcnt {self.name}({keep})")
            self.A.lines.append(last)
            self.seq = self.seq[len(self.seq) - keep:]
        self.seq.append(tag)
    def n_after(self, tag):
        idx = max(i for i, t in enumerate(self.seq) if t == tag)
        return len(self.seq) - 1 - idx
    def wait(self, tag):
        if tag not in self.seq: return
        n = min(self.n_after(tag), self.maxn)
        self.A(f"s_waitcnt {self.name}({n})")
        idx = max(i for i, t in enumerate(self.seq) if t == tag)
        self.seq = self.seq[len(self.seq) - n:] if n else []
    def wait_all(self):
        self.A(f"s_waitcnt {self.name}(0)")
        self.seq = []

def wave_sum(A, x, t):
    for m in ("quad_perm:[1,0,3,2]", "quad_perm:[2,3,0,1]", "row_half_mirror", "row_mirror"):
        A("s_nop 1")
        A(f"v_add_f32_dpp v{x}, v{x}, v{x} {m} row_mask:0xf bank_mask:0xf")
    A(f"v_mov_b32 v{t}, v{x}")
    A("s_nop 1")
    A(f"v_permlane16_swap_b32 v{t}, v{x}")
    A("s_nop 1")
    A(f"v_add_f32 v{x}, v{x}, v{t}")
    A(f"v_mov_b32 v{t}, v{x}")
    A("s_nop 1")
    A(f"v_permlane32_swap_b32 v{t}, v{x}")
    A("s_nop 1")
    A(f"v_add_f32 v{x}, v{x}, v{t}")

def half_sum(A, x, t):
    A(f"v_mov_b32 v{t}, v{x}")
    A("s_nop 1")
    A(f"v_permlane32_swap_b32 v{t}, v{x}")
    A("s_nop 1")
    A(f"v_add_f32 v{x}, v{x}, v{t}")

def round_bf16(A, x):
    A(f"v_cvt_pk_bf16_f32 v{x}, v{x}, v{x}")
    A(f"v_and_b32 v{x}, 0xffff0000, v{x}")

def ln_scalars(A, mu, var, t):
    round_bf16(A, mu)
    A(f"v_max_f32 v{var}, 0, v{var}")
    round_bf16(A, var)
    A(f"v_add_f32 v{var}, 0x3727c5ac, v{var}")
    round_bf16(A, var)
    A(f"v_sqrt_f32 v{var}, v{var}")
    A("s_nop 0")
    round_bf16(A, var)
    A(f"v_rcp_f32 v{var}, v{var}")
    A("s_nop 0")

class Stamps:
    enabled = False
    def __init__(self, A, slot):
        self.A = A; self.n = 0; self.slot = slot; self.names = []
    def __call__(self, name=""):
        if not Stamps.enabled: return
        assert self.n < 19
        self.A(f"s_memtime s[{60+2*self.n}:{61+2*self.n}]")
        self.names.append(name)
        self.n += 1
    def dump(self, srd, wave_sgpr, waves_per_wg, vtmp):
        if not Stamps.enabled: return
        A = self.A
        A("s_memrealtime s[98:99]")
        A("s_waitcnt lgkmcnt(0) vmcnt(0)")
        A(f"s_mul_i32 s58, s2, {waves_per_wg}")
        A(f"s_add_u32 s58, s58, s{wave_sgpr}")
        A("s_lshl_b32 s58, s58, 7")
        A(f"s_add_u32 s58, s58, {(64<<20) + self.slot*(1<<20)}")
        A(f"s_mov_b32 s{srd+2}, {128<<20}")
        A(f"v_mov_b32 v{vtmp}, 0")
        for i in range(self.n):
            A(f"v_mov_b32 v{vtmp+1}, s{60+2*i}")
            A(f"buffer_store_dword v{vtmp+1}, v{vtmp}, s[{srd}:{srd+3}], s58 offen offset:{4*i}")
        A(f"v_mov_b32 v{vtmp+1}, s98")
        A(f"buffer_store_dword v{vtmp+1}, v{vtmp}, s[{srd}:{srd+3}], s58 offen offset:124")

TIMELINE = False
def tl_begin(A):
    import asmlib
    if asmlib.TIMELINE: A("s_memrealtime s[100:101]")
def tl_end(A, slot, srd_, vtmp=1):
    import asmlib
    if not asmlib.TIMELINE: return
    A("s_waitcnt vmcnt(0) lgkmcnt(0)")
    A("s_memrealtime s[98:99]")
    A("s_lshl_b32 s58, s2, 4")
    A("s_add_u32 s58, s58, s3")
    A("s_lshl_b32 s58, s58, 3")
    A(f"s_add_u32 s58, s58, {(96<<20) + slot*65536}")
    A(f"s_mov_b32 s{srd_+2}, {128<<20}")
    A("s_waitcnt lgkmcnt(0)")
    A(f"v_mov_b32 v{vtmp}, 0")
    A(f"v_mov_b32 v{vtmp+1}, s100")
    A(f"v_mov_b32 v{vtmp+2}, s98")
    A(f"buffer_store_dwordx2 v[{vtmp+1}:{vtmp+2}], v{vtmp}, s[{srd_}:{srd_+3}], s58 offen")

def tl_mark(A, i):
    import asmlib
    if asmlib.TIMELINE: A(f"s_memrealtime s[{80+2*i}:{81+2*i}]")
def tl_marks_out(A, slot0, n, srd_, vtmp=1):
    import asmlib
    if not asmlib.TIMELINE: return
    for i in range(n):
        A(f"s_add_u32 s58, s58, 65536")
        A(f"v_mov_b32 v{vtmp+2}, s{80+2*i}")
        A(f"buffer_store_dwordx2 v[{vtmp+1}:{vtmp+2}], v{vtmp}, s[{srd_}:{srd_+3}], s58 offen")
        A("s_nop 1")
```

```python
from asmlib import *
import struct, os
def f2u(x):
    return struct.unpack("<I", struct.pack("<f", x))[0]
LOG2E = 1.4426950408889634
PRIO = False
def prio(A, p):
    if p == 0: p = int(os.environ.get("BLOW", "0"))
    if PRIO: A(f"s_setprio {p}")

GU_SLOT = 28928
GU_NS = 3
GU_LDS = GU_SLOT * GU_NS
GU_UPOFF = 14336 + 128

def gu_body(A, L, barrier, st_flags="", lds0=0, x_flags="", wait_x=None, wait_slot2=None, prologue=None):
    vm = Cnt(A, "vmcnt", 63); lg = Cnt(A, "lgkmcnt", 15)
    if hasattr(barrier, "lg"): barrier.lg = lg
    ACC = 56; WF = 28; XR = 12
    DO = [2, 3, 4, 5, 6, 8, 9]
    A("s_and_b32 s24, s2, 1")
    A("s_lshl_b32 s24, s24, 3")
    A("s_bfe_u32 s25, s2, 0x30003")
    A("s_add_u32 s24, s24, s25")
    A("s_bfe_u32 s25, s2, 0x20001")
    A("s_lshl_b32 s25, s25, 2")
    A("s_lshr_b32 s26, s2, 6")
    A("s_add_u32 s25, s25, s26")
    A("s_cmp_lt_u32 s3, 2")
    A("s_cselect_b32 s8, s4, s6")
    A("s_cselect_b32 s9, s5, s7")
    A(f"s_mov_b32 s10, {512*3584}")
    A("s_mov_b32 s11, 0x00020000")
    A("s_and_b32 s26, s3, 1")
    A("s_mul_i32 s27, s26, 448")
    A("s_mul_i32 s28, s25, 224")
    A("s_mov_b32 s29, 18725")
    for i in range(7):
        A(f"v_add_u32 v12, {i*64}, v0")
        A("v_add_u32 v12, s27, v12")
        A("v_mul_u32_u24 v13, s29, v12")
        A("v_lshrrev_b32 v13, 18, v13")
        A("v_mul_u32_u24 v14, 14, v13")
        A("v_sub_u32 v14, v12, v14")
        A("v_mul_u32_u24 v13, 3584, v13")
        A("v_lshl_add_u32 v13, v14, 4, v13")
        A(f"v_add_u32 v{DO[i]}, s28, v13")
    A("s_mul_i32 s27, s26, 7168")
    A("s_lshr_b32 s26, s3, 1")
    A(f"s_mul_i32 s26, s26, {GU_UPOFF}")
    A("s_add_u32 s27, s27, s26")
    if lds0: A(f"s_add_u32 s27, s27, {lds0}")
    A("s_lshl_b32 s30, s25, 1")
    A("s_add_u32 s30, s30, s24")
    A("s_and_b32 s30, s30, 7")
    A("s_mov_b32 s31, s30")
    A("s_lshl_b32 s32, s24, 2")
    A("s_add_u32 s32, s32, s3")
    A("s_lshl_b32 s33, s32, 15")
    A(f"s_add_u32 s33, s33, {WS_XF}")
    A("v_lshlrev_b32 v7, 4, v0")
    A("v_lshrrev_b32 v12, 5, v0")
    A("v_bfe_u32 v13, v0, 2, 2")
    A("v_lshl_add_u32 v12, v12, 3, v13")
    A("v_mul_u32_u24 v12, 224, v12")
    A("v_bfe_u32 v13, v0, 4, 1")
    A(f"v_mul_u32_u24 v13, {GU_UPOFF}, v13")
    A("v_add_u32 v12, v12, v13")
    A("v_and_b32 v13, 3, v0")
    A("v_lshl_add_u32 v10, v13, 3, v12")
    if lds0: A(f"v_add_u32 v10, {lds0}, v10")
    A(f"v_add_u32 v11, {2*GU_SLOT}, v10")
    def dma1(st, i):
        if i == 0:
            A(f"s_mul_i32 s34, s30, {64*3584}")
            A("s_add_u32 s30, s30, 1")
            A("s_and_b32 s30, s30, 7")
        A(f"s_add_u32 m0, s27, {(st%GU_NS)*GU_SLOT + i*1024}")
        A("s_nop 0")
        A(f"buffer_load_dwordx4 v{DO[i]}, s[8:11], s34 offen lds"); vm.issue(("d", st))
    def dma(st):
        for i in range(7): dma1(st, i)
    def xload(j):
        if j >= 32: return
        if j % 4 == 0:
            A("s_lshl_b32 s35, s31, 12")
            A("s_add_u32 s35, s35, s33")
            A("s_add_u32 s31, s31, 1")
            A("s_and_b32 s31, s31, 7")
        A(f"buffer_load_dwordx4 {v(XR+4*(j%4),4)}, v7, s[20:23], s35 offen offset:{(j%4)*1024} {x_flags}"); vm.issue(("x", j))
    def wread(j, ft):
        st, s_ = j // 4, j % 4
        for p in range(2):
            sl = st % GU_NS
            A(f"ds_read_b64_tr_b16 {v(WF+4*ft+2*p,2)}, v{11 if sl == 2 else 10} offset:{(GU_SLOT if sl == 1 else 0) + (16*s_+4*p)*224 + ft*32}"); lg.issue(("w", j, ft))
    if prologue:
        prologue(A, dma, vm)
        for j in range(4): xload(j)
    elif wait_x:
        dma(0); dma(1)
        wait_x(A, vm)
        for j in range(4): xload(j)
    else:
        dma(0)
        for j in range(4): xload(j)
        dma(1)
    vm.wait(("d", 0))
    barrier(A)
    for ft in range(7): wread(0, ft)
    pend = []
    prio(A, 0)
    if hasattr(barrier, "boost"): barrier.boost = True
    for j in range(32):
        st, s_ = j // 4, j % 4
        if s_ == 3 and st < 7:
            vm.wait(("d", st + 1))
            barrier(A)
            pend = [(st + 2, i) for i in range(7)] if st + 2 < 8 else []
            if st == 0 and wait_slot2: wait_slot2(A, lg)
        vm.wait(("x", j))
        for ft in range(7):
            lg.wait(("w", j, ft))
            A(f"v_mfma_f32_32x32x16_bf16 {v(ACC+16*ft,16)}, {v(WF+4*ft,4)}, {v(XR+4*(j%4),4)}, {v(ACC+16*ft,16) if j else 0}")
            if j + 1 < 32 and not (os.environ.get("E3") and ft % 2): wread(j + 1, ft)
            if pend and ft % 2 == 0: dma1(*pend.pop(0))
        xload(j + 4)
    tl_mark(A, 0)
    prio(A, 2)
    if hasattr(barrier, "boost"): barrier.boost = False
    A("s_mul_i32 s34, s32, 112")
    A("s_mul_i32 s35, s25, 7")
    A("s_add_u32 s34, s34, s35")
    A("s_lshl_b32 s34, s34, 10")
    A(f"s_add_u32 s34, s34, {WS_H}")
    A("s_add_u32 s35, s34, 4096")
    A(f"v_mov_b32 v1, {hex(f2u(-LOG2E))}")
    for ft in range(7):
        G = ACC + 16 * ft; U = G + 8
        if ft == 6: A("s_nop 3")
        for r in range(8): A(f"v_mul_f32 v{G+r}, v1, v{G+r}")
        for r in range(8): A(f"v_exp_f32 v{G+r}, v{G+r}")
        for r in range(8): A(f"v_add_f32 v{G+r}, 1.0, v{G+r}")
        for r in range(8): A(f"v_rcp_f32 v{G+r}, v{G+r}")
        for r in range(8): A(f"v_mul_f32 v{G+r}, v{G+r}, v{U+r}")
        for r in range(4): A(f"v_cvt_pk_bf16_f32 v{U+r}, v{G+2*r}, v{G+2*r+1}")
        so = "s34" if ft < 4 else "s35"
        A(f"buffer_store_dwordx4 {v(U,4)}, v7, s[20:23], {so} offen offset:{(ft%4)*1024} {st_flags}")

def gen_gu(A, name="gu_kernel"):
    kernel_begin(A, name)
    A("s_cmp_ge_u32 s2, 256")
    A(f"s_cbranch_scc1 {name}_end")
    tl_begin(A)
    A("s_load_dwordx4 s[4:7], s[0:1], 32")
    A("s_load_dwordx2 s[16:17], s[0:1], 72")
    A("v_lshrrev_b32 v1, 6, v0")
    A("v_and_b32 v0, 63, v0")
    A("s_nop 0")
    A("v_readfirstlane_b32 s3, v1")
    A("s_waitcnt lgkmcnt(0)")
    srd(A, 20, 16, WS_END)
    gu_body(A, name, lambda A: A("s_barrier"))
    tl_end(A, 2, 20)
    A.label(f"{name}_end")
    A("s_endpgm")

RED_STRIDE = 272
RED_WAVE = 64 * RED_STRIDE
SK_LDS = 4 * RED_WAVE

def sk_body(A, L, barrier, nks, act_base, act_tile_stride, wbytes, mode, ld_flags="", lds0=0):
    vm = Cnt(A, "vmcnt", 63); lg = Cnt(A, "lgkmcnt", 15)
    ACC = 104; HR = 40; WF = 24
    PD = min(7, nks)
    A("s_and_b32 s24, s2, 3")
    A("s_lshl_b32 s24, s24, 3")
    A("s_bfe_u32 s25, s2, 0x30003")
    A("s_add_u32 s24, s24, s25")
    A("s_bfe_u32 s25, s2, 0x10002")
    A("s_lshl_b32 s25, s25, 2")
    A("s_lshr_b32 s26, s2, 6")
    A("s_add_u32 s25, s25, s26")
    srd(A, 8, 4, wbytes)
    A("v_lshrrev_b32 v1, 3, v0")
    A("v_and_b32 v2, 7, v0")
    A("v_bfe_u32 v3, v0, 4, 1")
    A("v_lshlrev_b32 v3, 2, v3")
    A("v_xor_b32 v2, v2, v3")
    A("v_lshlrev_b32 v1, 10, v1")
    A("v_lshl_add_u32 v8, v2, 4, v1")
    A("s_lshl_b32 s26, s25, 7")
    A("v_add_u32 v8, s26, v8")
    A("v_add_u32 v9, 8192, v8")
    A(f"s_mul_i32 s27, s3, {nks*16*1024}")
    A(f"s_mul_i32 s28, s3, 14336")
    if lds0: A(f"s_add_u32 s28, s28, {lds0}")
    A(f"s_mul_i32 s29, s24, {2*act_tile_stride}")
    A(f"s_mul_i32 s30, s3, {nks*1024}")
    A("s_add_u32 s29, s29, s30")
    A(f"s_add_u32 s29, s29, {act_base}")
    A(f"s_add_u32 s30, s29, {act_tile_stride}")
    A("v_lshlrev_b32 v7, 4, v0")
    A("v_lshrrev_b32 v1, 5, v0")
    A("v_bfe_u32 v2, v0, 2, 2")
    A("v_lshl_add_u32 v1, v1, 2, v2")
    A("v_lshlrev_b32 v1, 7, v1")
    A("v_bfe_u32 v3, v0, 4, 1")
    A("v_lshlrev_b32 v3, 1, v3")
    A("v_bfe_u32 v14, v0, 1, 1")
    A("v_add_u32 v3, v3, v14")
    A("v_bfe_u32 v14, v0, 3, 1")
    A("v_lshl_add_u32 v3, v14, 2, v3")
    A("v_lshl_add_u32 v1, v3, 4, v1")
    A("v_and_b32 v14, 1, v0")
    A("v_lshl_add_u32 v1, v14, 3, v1")
    A("v_add_u32 v10, s28, v1")
    A("v_xor_b32 v11, 64, v10")
    def dma(j):
        if j >= nks: return
        A(f"s_add_u32 s31, s27, {j*16384}")
        A(f"s_add_u32 m0, s28, {(j%7)*2048}")
        A("s_nop 0")
        A("buffer_load_dwordx4 v8, s[8:11], s31 offen lds"); vm.issue(("d", j))
        A(f"s_add_u32 m0, s28, {(j%7)*2048 + 1024}")
        A("s_nop 0")
        A("buffer_load_dwordx4 v9, s[8:11], s31 offen lds"); vm.issue(("d", j))
    def hload(j):
        if j >= nks: return
        if j % 4 == 0 and j:
            A("s_add_u32 s29, s29, 4096")
            A("s_add_u32 s30, s30, 4096")
        A(f"buffer_load_dwordx4 {v(HR+8*(j%7),4)}, v7, s[20:23], s29 offen offset:{(j%4)*1024} {ld_flags}"); vm.issue(("h", j))
        A(f"buffer_load_dwordx4 {v(HR+8*(j%7)+4,4)}, v7, s[20:23], s30 offen offset:{(j%4)*1024} {ld_flags}"); vm.issue(("h", j))
    def wread(j):
        for jn in range(2):
            for p in range(2):
                A(f"ds_read_b64_tr_b16 {v(WF+8*(j%2)+4*jn+2*p,2)}, v{10+jn} offset:{(j%7)*2048 + p*1024}"); lg.issue(("w", j, jn))
    return dict(vm=vm, lg=lg, dma=dma, hload=hload, wread=wread, ACC=ACC, HR=HR, WF=WF, PD=PD)

def sk_main(A, L, barrier, nks, ctx, mode, pre_w=True, wait_act=None, lds0=0, after_red_reads=None, gbuf=None):
    vm, lg, dma, hload, wread = ctx["vm"], ctx["lg"], ctx["dma"], ctx["hload"], ctx["wread"]
    ACC, HR, WF = ctx["ACC"], ctx["HR"], ctx["WF"]
    for j in range(6): dma(j)
    if wait_act: wait_act(A)
    for j in range(7): hload(j)
    if mode == "out":
        A("v_lshrrev_b32 v1, 3, v0")
        A("s_lshl_b32 s33, s24, 6")
        A("s_lshl_b32 s34, s3, 4")
        A("s_add_u32 s33, s33, s34")
        A("v_add_u32 v1, s33, v1")
        A("v_lshlrev_b32 v1, 10, v1")
        A("v_and_b32 v2, 7, v0")
        A("v_lshl_add_u32 v1, v2, 4, v1")
        A("s_lshl_b32 s33, s25, 7")
        A("v_add_u32 v12, s33, v1")
        A("v_add_u32 v13, 8192, v12")
        srd(A, 12, 6, 2048 * 1024)
        A(f"s_mov_b32 s33, {WS_G}")
        A("buffer_load_dwordx4 v[168:171], v12, s[12:15], 0 offen"); vm.issue("xg")
        A("buffer_load_dwordx4 v[172:175], v13, s[12:15], 0 offen"); vm.issue("xg")
        A("buffer_load_dwordx4 v[176:179], v12, s[20:23], s33 offen"); vm.issue("xg")
        A("buffer_load_dwordx4 v[180:183], v13, s[20:23], s33 offen"); vm.issue("xg")
    vm.wait(("d", 0))
    wread(0)
    prio(A, 0)
    for j in range(nks):
        if j + 1 < nks:
            vm.wait(("d", j + 1))
            wread(j + 1)
        vm.wait(("h", j))
        for jn in range(2):
            lg.wait(("w", j, jn))
            for t in range(2):
                a_ = ACC + 32 * t + 16 * jn
                A(f"v_mfma_f32_32x32x16_bf16 {v(a_,16)}, {v(WF+8*(j%2)+4*jn,4)}, {v(HR+8*(j%7)+4*t,4)}, {v(a_,16) if j else 0}")
        dma(j + 6)
        hload(j + 7)
    if mode[0] == "g": tl_mark(A, 3)
    prio(A, 2)
    barrier(A)
    A("v_and_b32 v14, 31, v0")
    A(f"v_mul_u32_u24 v14, {RED_STRIDE}, v14")
    A("v_lshrrev_b32 v2, 5, v0")
    A("v_lshl_add_u32 v14, v2, 4, v14")
    A(f"s_mul_i32 s33, s3, {RED_WAVE}")
    if lds0: A(f"s_add_u32 s33, s33, {lds0}")
    A("v_add_u32 v14, s33, v14")
    A("s_nop 4")
    for t in range(2):
        for jn in range(2):
            for g in range(4):
                A(f"ds_write_b128 v14, {v(ACC+32*t+16*jn+4*g,4)} offset:{t*32*RED_STRIDE + jn*128 + g*32}"); lg.issue("rw")
    lg.wait_all()
    barrier(A)
    A("v_lshrrev_b32 v14, 3, v0")
    A("s_lshl_b32 s33, s3, 4")
    A("v_add_u32 v14, s33, v14")
    A(f"v_mul_u32_u24 v14, {RED_STRIDE}, v14")
    A("v_and_b32 v2, 7, v0")
    A("v_lshl_add_u32 v14, v2, 5, v14")
    R0 = 40
    for ps in range(2):
        for w in range(4):
            for q in range(2):
                A(f"ds_read_b128 {v(R0+32*ps+8*w+4*q,4)}, v14 offset:{lds0 + w*RED_WAVE + ps*8*RED_STRIDE + q*16}"); lg.issue(("rr", ps))
    if mode == "glds":
        lg.wait_all()
        after_red_reads(A)
        A("v_lshrrev_b32 v1, 3, v0")
        A("s_lshl_b32 s33, s3, 4")
        A("v_add_u32 v1, s33, v1")
        A(f"v_mul_u32_u24 v1, {gbuf[1]}, v1")
        A("v_lshl_add_u32 v1, v2, 4, v1")
        A(f"v_add_u32 v12, {gbuf[0]}, v1")
        A(f"v_mov_b32 v3, {hex(f2u(-LOG2E))}")
    elif mode == "g":
        A("v_lshrrev_b32 v1, 3, v0")
        A("s_lshl_b32 s33, s24, 6")
        A("s_lshl_b32 s34, s3, 4")
        A("s_add_u32 s33, s33, s34")
        A("v_add_u32 v1, s33, v1")
        A("v_lshlrev_b32 v1, 10, v1")
        A("v_lshl_add_u32 v1, v2, 4, v1")
        A("s_lshl_b32 s33, s25, 7")
        A("v_add_u32 v12, s33, v1")
        A("v_add_u32 v13, 8192, v12")
        A(f"s_mov_b32 s33, {WS_G}")
        A(f"v_mov_b32 v3, {hex(f2u(-LOG2E))}")
    else:
        srd(A, 12, 18, 2048 * 1024)
        vm.wait("xg")
    for ps in range(2):
        B = R0 + 32 * ps
        lg.wait(("rr", ps))
        for i in range(8):
            A(f"v_add_f32 v{B+i}, v{B+i}, v{B+8+i}")
            A(f"v_add_f32 v{B+16+i}, v{B+16+i}, v{B+24+i}")
        for i in range(8):
            A(f"v_add_f32 v{B+i}, v{B+i}, v{B+16+i}")
        for i in range(4):
            A(f"v_cvt_pk_bf16_f32 v{B+8+i}, v{B+2*i}, v{B+2*i+1}")
        for i in range(4):
            A(f"v_lshlrev_b32 v{B+2*i}, 16, v{B+8+i}")
            A(f"v_and_b32 v{B+2*i+1}, 0xffff0000, v{B+8+i}")
        if mode[0] == "g":
            for i in range(8): A(f"v_mul_f32 v{B+8+i}, v3, v{B+i}")
            for i in range(8): A(f"v_exp_f32 v{B+8+i}, v{B+8+i}")
            for i in range(8): A(f"v_add_f32 v{B+8+i}, 1.0, v{B+8+i}")
            for i in range(8): A(f"v_rcp_f32 v{B+8+i}, v{B+8+i}")
            for i in range(8): A(f"v_mul_f32 v{B+i}, v{B+i}, v{B+8+i}")
            for i in range(4): A(f"v_cvt_pk_bf16_f32 v{B+16+i}, v{B+2*i}, v{B+2*i+1}")
            if mode == "glds": A(f"ds_write_b128 v12, {v(B+16,4)} offset:{ps*8*gbuf[1]}")
            else: A(f"buffer_store_dwordx4 {v(B+16,4)}, v{12+ps}, s[20:23], s33 offen")
        else:
            X = 168 + 4 * ps; G = 176 + 4 * ps
            for i in range(4):
                A(f"v_lshlrev_b32 v{B+8+2*i}, 16, v{G+i}")
                A(f"v_and_b32 v{B+8+2*i+1}, 0xffff0000, v{G+i}")
            for i in range(8): A(f"v_mul_f32 v{B+i}, v{B+i}, v{B+8+i}")
            for i in range(4): A(f"v_cvt_pk_bf16_f32 v{B+16+i}, v{B+2*i}, v{B+2*i+1}")
            for i in range(4):
                A(f"v_lshlrev_b32 v{B+2*i}, 16, v{B+16+i}")
                A(f"v_and_b32 v{B+2*i+1}, 0xffff0000, v{B+16+i}")
                A(f"v_lshlrev_b32 v{B+8+2*i}, 16, v{X+i}")
                A(f"v_and_b32 v{B+8+2*i+1}, 0xffff0000, v{X+i}")
            for i in range(8): A(f"v_add_f32 v{B+i}, v{B+i}, v{B+8+i}")
            for i in range(4): A(f"v_cvt_pk_bf16_f32 v{B+16+i}, v{B+2*i}, v{B+2*i+1}")
            A(f"buffer_store_dwordx4 {v(B+16,4)}, v{12+ps}, s[12:15], 0 offen")

def gen_down(A, name="down_kernel"):
    kernel_begin(A, name)
    A("s_cmp_ge_u32 s2, 256")
    A(f"s_cbranch_scc1 {name}_end")
    tl_begin(A)
    A("s_load_dwordx2 s[4:5], s[0:1], 48")
    A("s_load_dwordx2 s[16:17], s[0:1], 72")
    A("v_lshrrev_b32 v1, 6, v0")
    A("v_and_b32 v0, 63, v0")
    A("s_nop 0")
    A("v_readfirstlane_b32 s3, v1")
    A("s_waitcnt lgkmcnt(0)")
    srd(A, 20, 16, WS_END)
    bar = lambda A: A("s_barrier")
    ctx = sk_body(A, name, bar, 28, WS_H, 112 * 1024, 1792 * 1024, "g")
    sk_main(A, name, bar, 28, ctx, "g")
    tl_end(A, 3, 20)
    A.label(f"{name}_end")
    A("s_endpgm")

def gen_k3(A, name="k3_kernel"):
    kernel_begin(A, name)
    A("s_cmp_ge_u32 s2, 256")
    A(f"s_cbranch_scc1 {name}_end")
    tl_begin(A)
    A("s_load_dwordx2 s[4:5], s[0:1], 16")
    A("s_load_dwordx2 s[6:7], s[0:1], 0")
    A("s_load_dwordx2 s[18:19], s[0:1], 56")
    A("s_load_dwordx2 s[16:17], s[0:1], 72")
    A("v_lshrrev_b32 v1, 6, v0")
    A("v_and_b32 v0, 63, v0")
    A("s_nop 0")
    A("v_readfirstlane_b32 s3, v1")
    A("s_waitcnt lgkmcnt(0)")
    srd(A, 20, 16, WS_END)
    bar = lambda A: A("s_barrier")
    ctx = sk_body(A, name, bar, 8, WS_O, 32 * 1024, 512 * 1024, "out")
    sk_main(A, name, bar, 8, ctx, "out")
    tl_end(A, 7, 20)
    A.label(f"{name}_end")
    A("s_endpgm")
```

```python
from asmlib import *
import asmlib, ffn, os, struct
def f2u(x): return struct.unpack("<I", struct.pack("<f", x))[0]
LOG2E = 1.4426950408889634
QSCALE = 0.25 * LOG2E

NAME = "recurrent_scan__mha_block__glu_gated_glu__prompt_kernel"
BOFF = 256
WQ = BOFF + 2 * ffn.GU_SLOT
LNB = BOFF
ABASE = BOFF + 3 * ffn.GU_SLOT
NCH = 6
XCH = ABASE + NCH * 8192
GBUF = XCH + 16384
GSTR = 144
K1_SLOT = 28672; K1_NS = 5; K1_D = 4
K1B = WQ - 2 * K1_SLOT
K1T = K1B + K1_SLOT * K1_NS
LNB = K1T + 5120
K1_PRO = int(os.environ.get('K1_PRO', '2'))
F_LDS = 163840
assert WQ + 98304 <= F_LDS and GBUF + 64 * GSTR <= F_LDS
C_LN, C_XF, C_W, C_WFREE, C_G = 0, 4, 8, 12, 16
F_VGPR = 168
F_THREADS = 768
WS_FLAG = 30 << 20
FL_X = WS_FLAG
FL_A = WS_FLAG + 32768
FL_H = WS_FLAG + 65536
FL_O = WS_FLAG + 98304
C_QKV, C_O = 20, 24

def flag_store(A, vz, vt, soff):
    A(f"v_mov_b32 v{vt}, s68")
    A(f"v_mov_b32 v{vt+1}, s69")
    A(f"buffer_store_dwordx2 {v(vt,2)}, v{vz}, s[20:23], {soff} offen sc1")

def publish(A, cnt_off, n, vz, vone, vt, st, soff, lbl):
    A("s_mov_b64 exec, 1")
    A(f"ds_add_rtn_u32 v{vt}, v{vz}, v{vone} offset:{cnt_off}")
    A("s_waitcnt lgkmcnt(0)")
    A(f"v_readfirstlane_b32 s{st}, v{vt}")
    A(f"s_cmp_eq_u32 s{st}, {n-1}")
    A(f"s_cbranch_scc0 {lbl}")
    flag_store(A, vz, vt, soff)
    A.label(lbl)
    A("s_mov_b64 exec, -1")

def wait_ready(A, vz, vt, st):
    _lbl[0] += 1
    L = f"Lr{_lbl[0]}"
    A.label(L)
    A(f"buffer_load_dwordx2 {v(vt,2)}, v{vz}, s[52:55], 0 offen sc1")
    A("s_waitcnt vmcnt(0)")
    A(f"v_readfirstlane_b32 s68, v{vt}")
    A(f"v_readfirstlane_b32 s69, v{vt+1}")
    A("s_cmp_eq_u32 s68, 0")
    A(f"s_cbranch_scc1 {L}")

_lbl = [0]
def arrive(A, off, vz, vone):
    A("s_mov_b64 exec, 1")
    A(f"ds_add_u32 v{vz}, v{vone} offset:{off}")
    A("s_mov_b64 exec, -1")
def wait_cnt(A, off, n, vz, vt, st, sleep=1):
    _lbl[0] += 1
    L = f"Lw{_lbl[0]}"
    A.label(L)
    A(f"ds_read_b32 v{vt}, v{vz} offset:{off}")
    A("s_waitcnt lgkmcnt(0)")
    A(f"v_readfirstlane_b32 s{st}, v{vt}")
    A(f"s_cmp_ge_u32 s{st}, {n}")
    A(f"s_cbranch_scc1 {L}x")
    if sleep: A(f"s_sleep {sleep}")
    A(f"s_branch {L}")
    A.label(L + "x")

def poll_lanes(A, srd_, voff, soff, vt, sleep=2):
    _lbl[0] += 1
    L = f"Lq{_lbl[0]}"
    A.label(L)
    A(f"buffer_load_dwordx2 {v(vt,2)}, v{voff}, s[{srd_}:{srd_+3}], {soff} offen sc1")
    A("s_waitcnt vmcnt(0)")
    A(f"v_cmp_ne_u64 vcc, s[68:69], {v(vt,2)}")
    A("s_nop 1")
    A("s_cmp_eq_u64 vcc, 0")
    A(f"s_cbranch_scc1 {L}x")
    A(f"s_sleep {sleep}")
    A(f"s_branch {L}")
    A.label(L + "x")

def rc_qkv(A):
    A("s_bfe_u32 s24, s2, 0x20001")
    A("s_lshl_b32 s24, s24, 2")
    A("s_lshr_b32 s25, s2, 6")
    A("s_add_u32 s24, s24, s25")
    A("s_and_b32 s25, s2, 1")
    A("s_lshl_b32 s25, s25, 3")
    A("s_bfe_u32 s26, s2, 0x30003")
    A("s_add_u32 s25, s25, s26")

VQ = 8; VNEG = 16; VS = [32, 48]; VP = [64, 72]; VO = 80; VK = 96; VV0 = 100; VV1 = 104

def ca_role(A, name):
    rc_qkv(A)
    A("v_lshlrev_b32 v2, 4, v0")
    A("v_mov_b32 v118, 0")
    A("v_mov_b32 v119, 1")
    A("s_lshl_b32 s30, s24, 7")
    A("s_lshl_b32 s28, s25, 3")
    A("s_add_u32 s30, s30, s28")
    A("s_add_u32 s31, s30, s3")
    A("s_lshl_b32 s31, s31, 10")
    A("s_waitcnt lgkmcnt(0)")
    srd(A, 8, 4, 2048 * 1024)
    srd(A, 20, 16, WS_END)
    srd(A, 52, 18, 256)
    A("buffer_load_dwordx4 v[20:23], v2, s[8:11], s31 offen")
    A("s_or_b32 s28, s2, s3")
    A("s_cmp_eq_u32 s28, 0")
    A(f"s_cbranch_scc0 {name}_nz")
    A("s_memrealtime s[68:69]")
    A("s_waitcnt lgkmcnt(0)")
    A("s_or_b32 s68, s68, 1")
    A("v_mov_b32 v24, s68")
    A("v_mov_b32 v25, s69")
    A("s_mov_b64 exec, 1")
    A("buffer_store_dwordx2 v[24:25], v118, s[52:55], 0 offen sc1")
    A("s_mov_b64 exec, -1")
    A.label(f"{name}_nz")
    A("s_barrier")
    A("s_mul_i32 s28, s3, 1040")
    A(f"s_add_u32 s28, s28, {LNB}")
    A("v_add_u32 v3, s28, v2")
    A("v_and_b32 v4, 7, v0")
    A("v_mul_u32_u24 v5, 1040, v4")
    A("v_lshrrev_b32 v6, 3, v0")
    A("s_lshl_b32 s28, s3, 3")
    A("v_add_u32 v6, s28, v6")
    A("v_lshl_add_u32 v5, v6, 4, v5")
    A(f"v_add_u32 v5, {LNB}, v5")
    A("v_lshlrev_b32 v6, 9, v6")
    A("v_lshl_add_u32 v6, v4, 4, v6")
    A("s_lshr_b32 s28, s30, 5")
    A("s_lshl_b32 s28, s28, 15")
    A("s_and_b32 s29, s30, 31")
    A("s_lshl_b32 s29, s29, 4")
    A("s_add_u32 s28, s28, s29")
    A(f"s_add_u32 s28, s28, {WS_XF}")
    A("s_or_b32 s29, s2, s3")
    A("s_cmp_eq_u32 s29, 0")
    A(f"s_cbranch_scc1 {name}_w0")
    A("s_waitcnt vmcnt(0)")
    A.label(f"{name}_w0")
    A("s_waitcnt vmcnt(1)")
    T = 32
    for i in range(4):
        A(f"v_lshlrev_b32 v{T+2*i}, 16, v{20+i}")
        A(f"v_and_b32 v{T+2*i+1}, 0xffff0000, v{20+i}")
    A(f"v_add_f32 v28, v{T}, v{T+1}")
    A(f"v_mul_f32 v29, v{T}, v{T}")
    A(f"v_fmac_f32 v29, v{T+1}, v{T+1}")
    for i in range(2, 8):
        A(f"v_add_f32 v28, v28, v{T+i}")
        A(f"v_fmac_f32 v29, v{T+i}, v{T+i}")
    A("s_nop 0")
    for m in ("quad_perm:[1,0,3,2]", "quad_perm:[2,3,0,1]", "row_half_mirror", "row_mirror"):
        A(f"v_add_f32_dpp v28, v28, v28 {m} row_mask:0xf bank_mask:0xf")
        A(f"v_add_f32_dpp v29, v29, v29 {m} row_mask:0xf bank_mask:0xf")
        A("s_nop 0")
    for op in ("v_permlane16_swap_b32", "v_permlane32_swap_b32"):
        A("v_mov_b32 v30, v28")
        A("v_mov_b32 v31, v29")
        A("s_nop 0")
        A(f"{op} v30, v28")
        A(f"{op} v31, v29")
        A("s_nop 0")
        A("v_add_f32 v28, v28, v30")
        A("v_add_f32 v29, v29, v31")
    A(f"v_mul_f32 v28, {hex(f2u(1/512))}, v28")
    A(f"v_mul_f32 v29, {hex(f2u(1/512))}, v29")
    A("v_fma_f32 v29, -v28, v28, v29")
    ln_scalars(A, 28, 29, 30)
    for i in range(8): A(f"v_sub_f32 v{T+i}, v{T+i}, v28")
    for i in range(4): A(f"v_cvt_pk_bf16_f32 v{20+i}, v{T+2*i}, v{T+2*i+1}")
    for i in range(4):
        A(f"v_lshlrev_b32 v{T+2*i}, 16, v{20+i}")
        A(f"v_and_b32 v{T+2*i+1}, 0xffff0000, v{20+i}")
    for i in range(8): A(f"v_mul_f32 v{T+i}, v{T+i}, v29")
    for i in range(4): A(f"v_cvt_pk_bf16_f32 v{20+i}, v{T+2*i}, v{T+2*i+1}")
    A("ds_write_b128 v3, v[20:23]")
    A("s_waitcnt lgkmcnt(0)")
    arrive(A, C_LN, 118, 119)
    wait_cnt(A, C_LN, 8, 118, 7, 29, sleep=0)
    A("ds_read_b128 v[20:23], v5")
    A("s_waitcnt lgkmcnt(0)")
    A("buffer_store_dwordx4 v[20:23], v6, s[20:23], s28 offen sc1")
    tl_mark(A, 0)
    k1_setup(A)
    A("s_cmp_lt_u32 s3, 4")
    A(f"s_cbranch_scc0 {name}_kv")
    k1_compute(A, name, 0)
    A(f"s_branch {name}_attn1")
    A.label(f"{name}_kv")
    k1_compute(A, name, 1)
    A.label(f"{name}_attn1")
    A("s_lshl_b32 s28, s25, 4")
    A("s_add_u32 s28, s28, s24")
    A("s_lshl_b32 s28, s28, 7")
    A(f"s_add_u32 s28, s28, {FL_A}")
    A("v_mov_b32 v118, 0")
    A("v_mov_b32 v119, 1")
    wait_ready(A, 118, 6, 29)
    A("s_cmp_eq_u32 s57, 0")
    A(f"s_cbranch_scc1 {name}_xdone")
    A("s_mov_b64 exec, 1")
    flag_store(A, 118, 6, "s59")
    A("s_mov_b64 exec, -1")
    A.label(f"{name}_xdone")
    publish(A, C_QKV, 8, 118, 119, 6, 29, "s28", f"{name}_pa")
    A("s_setprio 0")
    tl_mark(A, 2)
    A("v_and_b32 v116, 15, v0")
    A("v_lshlrev_b32 v116, 7, v116")
    A.label(f"{name}_attn2")
    attn(A, name)


AC0, AC1 = 32, 48
XF = 64; WFK = 80; VSEL = 112; VCS = 120; VS1, VS2 = 124, 126

def xpub(A, L):
    A("s_mov_b64 exec, 1")
    A("s_waitcnt vmcnt(0)")
    A("v_readfirstlane_b32 s29, v116")
    A("s_cmp_eq_u32 s29, 0")
    A(f"s_cbranch_scc1 {L}_c")
    A("buffer_store_dwordx2 v[116:117], v118, s[20:23], s59 offen sc1")
    A("s_mov_b32 s57, 0")
    A(f"s_branch {L}_d")
    A.label(f"{L}_c")
    A("buffer_load_dwordx2 v[116:117], v118, s[52:55], 0 offen sc1")
    A.label(f"{L}_d")
    A("s_mov_b64 exec, -1")

def k1_setup(A):
    A("s_cmp_eq_u32 s3, 7")
    A("s_cselect_b32 s57, 5, 0")
    A("buffer_load_dwordx2 v[116:117], v118, s[52:55], 0 offen sc1")
    A("s_lshl_b32 s59, s24, 4")
    A("s_add_u32 s59, s59, s25")
    A("s_lshl_b32 s59, s59, 7")
    A(f"s_add_u32 s59, s59, {FL_X}")
    A("s_and_b32 s26, s3, 3")
    A("v_and_b32 v4, 31, v0")
    A("v_lshrrev_b32 v5, 5, v0")
    A("v_bfe_u32 v6, v0, 1, 3")
    A("v_xor_b32 v6, v5, v6")
    A("s_lshl_b32 s34, s26, 12")
    A(f"s_add_u32 s34, s34, {K1B}")
    A("v_lshlrev_b32 v4, 7, v4")
    A("v_add_u32 v4, s34, v4")
    for s_ in range(4):
        A(f"v_xor_b32 v7, {2*s_}, v6")
        A(f"v_lshl_add_u32 v{11+s_}, v7, 4, v4")
    A("v_bfe_u32 v6, v0, 2, 2")
    A("v_lshl_add_u32 v6, v5, 3, v6")
    A("v_lshlrev_b32 v6, 6, v6")
    A("v_bfe_u32 v7, v0, 4, 1")
    A("v_lshl_add_u32 v6, v7, 5, v6")
    A("v_and_b32 v7, 3, v0")
    A("v_lshl_add_u32 v6, v7, 3, v6")
    A(f"v_add_u32 v15, {K1B + 16384}, v6")
    for r in range(32): A(f"v_mov_b32 v{AC0+r}, 0")
    for r in range(VCS, 128): A(f"v_mov_b32 v{r}, 0")
    A("v_and_b32 v6, 15, v0")
    A("v_bfe_u32 v7, v0, 4, 1")
    A("v_cmp_eq_u32 vcc, v6, v7")
    A("v_mov_b32 v6, 0x3f803f80")
    A("s_nop 0")
    A(f"v_cndmask_b32 v{VSEL}, 0, v6, vcc")
    for r in range(1, 4): A(f"v_mov_b32 v{VSEL+r}, v{VSEL}")
    A(f"s_mov_b32 s36, {2*K1_SLOT}")
    A("s_mov_b32 s39, 8")

def k1_compute(A, name, role):
    L = f"{name}_c{role}"
    lg = Cnt(A, "lgkmcnt", 15)
    WF = WFK
    nt = 2 if role == 0 else 1
    t0 = 0 if role == 0 else 2
    TM = 128
    A("s_setprio 3" if role == 1 else "s_setprio 2")
    def addrs():
        for i in range(5): A(f"v_add_u32 v{16+i}, s36, v{11+i}")
        A(f"s_add_u32 s36, s36, {K1_SLOT}")
        A(f"s_cmp_eq_u32 s36, {K1_SLOT*K1_NS}")
        A("s_cselect_b32 s36, 0, s36")
    def reads(s_):
        A(f"ds_read_b128 {v(XF+4*s_,4)}, v{16+s_}"); lg.issue(("x", s_))
        for T_ in range(nt):
            for p in range(2):
                A(f"ds_read_b64_tr_b16 {v(WF+8*s_+4*T_+2*p,2)}, v20 offset:{(t0+T_)*4096 + (16*s_+4*p)*64}")
                lg.issue(("w", s_, T_))
    def stats(s_, lo, hi):
        for i in range(lo, hi):
            A(f"v_lshlrev_b32 v{TM+2*i}, 16, v{XF+4*s_+i}")
            A(f"v_and_b32 v{TM+2*i+1}, 0xffff0000, v{XF+4*s_+i}")
        for i in range(2 * lo, 2 * hi):
            A(f"v_add_f32 v{VS1+i%2}, v{VS1+i%2}, v{TM+i}")
            A(f"v_fmac_f32 v{VS2+i%2}, v{TM+i}, v{TM+i}")
    def step(s_):
        X = v(XF + 4 * s_, 4)
        if role == 0:
            lg.wait(("w", s_, 0))
            A(f"v_mfma_f32_32x32x16_bf16 {v(AC0,16)}, {v(WF+8*s_,4)}, {X}, {v(AC0,16)}")
            stats(s_, 0, 1)
            lg.wait(("w", s_, 1))
            A(f"v_mfma_f32_32x32x16_bf16 {v(AC1,16)}, {v(WF+8*s_+4,4)}, {X}, {v(AC1,16)}")
            stats(s_, 1, 2)
        else:
            lg.wait(("w", s_, 0))
            A(f"v_mfma_f32_32x32x16_bf16 {v(AC0,16)}, {X}, {v(WF+8*s_,4)}, {v(AC0,16)}")
            stats(s_, 2, 4)
    def colsum(half):
        cands = [(0, 0), (1, 4)] if role == 0 else [(2, 0)]
        for tbv, off in cands:
            A(f"s_cmp_eq_u32 s26, {tbv}")
            A(f"s_cbranch_scc0 {L}_nocs{half}_{tbv}")
            for s_ in (2 * half, 2 * half + 1):
                A(f"v_mfma_f32_16x16x32_bf16 {v(VCS,4)}, {v(VSEL,4)}, {v(WF+8*s_+off,4)}, {v(VCS,4)}")
            A.label(f"{L}_nocs{half}_{tbv}")
    addrs()
    A("s_barrier")
    reads(0); reads(1); reads(2); reads(3)
    top_state = list(lg.seq)
    A.label(f"{L}_loop")
    step(0); step(1)
    colsum(0)
    A("s_sub_u32 s39, s39, 1")
    A("s_cmp_eq_u32 s39, 0")
    A(f"s_cbranch_scc1 {L}_last")
    addrs()
    A("s_cmp_eq_u32 s39, 6")
    A(f"s_cbranch_scc0 {L}_noxf")
    A("s_waitcnt vmcnt(0)")
    A.label(f"{L}_noxf")
    if role == 1:
        A("s_cmp_gt_u32 s39, s57")
        A(f"s_cbranch_scc1 {L}_nopub")
        xpub(A, f"{L}_xp")
        A.label(f"{L}_nopub")
    lg.wait_all()
    A("s_barrier")
    reads(0); reads(1)
    step(2); step(3)
    colsum(1)
    reads(2); reads(3)
    assert lg.seq == top_state, (lg.seq, top_state)
    A(f"s_branch {L}_loop")
    A.label(f"{L}_last")
    lg.wait_all()
    L = L + "x"
    step(2); step(3)
    colsum(1)
    tl_mark(A, 1)
    TB = K1T
    A("v_lshlrev_b32 v4, 2, v0")
    A("v_cmp_gt_u32 vcc, 16, v0")
    if role == 0:
        A("s_lshl_b32 s34, s26, 7")
        A("s_cmp_lt_u32 s26, 2")
    else:
        A("s_mov_b32 s34, 256")
        A("s_cmp_eq_u32 s26, 2")
    A("s_cselect_b32 s34, s34, 512")
    A("v_mov_b32 v5, 512")
    A("v_mov_b32 v6, s34")
    A("v_cndmask_b32 v5, v5, v6, vcc")
    A("v_add_u32 v5, v5, v4")
    A(f"v_add_u32 v5, {TB}, v5")
    A(f"v_add_f32 v{VS1}, v{VS1}, v{VS1+1}")
    A(f"v_add_f32 v{VS1+1}, v{VS2}, v{VS2+1}")
    half_sum(A, VS1, VS2)
    half_sum(A, VS1 + 1, VS2)
    A(f"ds_write_b32 v5, v{VCS}")
    A(f"ds_write_b32 v5, v{VCS+1} offset:64")
    A("v_and_b32 v6, 31, v0")
    A("s_lshl_b32 s34, s26, 8")
    A(f"s_add_u32 s34, s34, {TB + 1024}")
    A("v_lshl_add_u32 v7, v6, 3, s34")
    A(f"ds_write_b64 v7, {v(VS1,2)} offset:{role*1024}")
    A("v_lshlrev_b32 v6, 2, v6")
    A("v_lshrrev_b32 v8, 5, v0")
    A("v_lshlrev_b32 v8, 4, v8")
    A("s_lshl_b32 s37, s25, 7")
    A("s_lshl_b32 s35, s24, 2")
    A("s_add_u32 s37, s37, s35")
    A("s_add_u32 s37, s37, s26")
    A("s_waitcnt lgkmcnt(0)")
    A("s_barrier")
    lg.seq = []
    A(f"ds_read_b64 {v(VS2,2)}, v7 offset:{(1-role)*1024}"); lg.issue("m")
    if role == 0:
        A(f"v_add_u32 v8, {TB}, v8")
        for T_ in range(2):
            for g in range(4):
                A(f"ds_read_b128 {v(WF+16*T_+4*g,4)}, v8 offset:{T_*128 + g*32}"); lg.issue(("c", T_))
    else:
        A(f"v_add_u32 v9, {TB}, v6")
        A("ds_read_b32 v4, v9 offset:256"); lg.issue("c")
    lg.wait("m")
    A(f"v_add_f32 v{VS1}, v{VS1}, v{VS2}")
    A(f"v_add_f32 v{VS1+1}, v{VS1+1}, v{VS2+1}")
    A(f"v_mul_f32 v{VS1}, {hex(f2u(1/512))}, v{VS1}")
    A(f"v_mul_f32 v{VS1+1}, {hex(f2u(1/512))}, v{VS1+1}")
    A(f"v_fma_f32 v{VS1+1}, -v{VS1}, v{VS1}, v{VS1+1}")
    ln_scalars(A, VS1, VS1 + 1, VS2)
    M, RS = VS1, VS1 + 1
    if role == 0:
        A("s_lshl_b32 s35, s37, 11")
        A(f"s_add_u32 s36, s35, {WS_KV + 131072}")
        A(f"s_add_u32 s35, s35, {WS_KV}")
        A(f"v_mul_f32 v6, {hex(f2u(QSCALE))}, v{RS}")
        lg.wait(("c", 1))
        for r in range(16):
            A(f"v_fma_f32 v{AC1+r}, -v{M}, v{WF+16+r}, v{AC1+r}")
            A(f"v_mul_f32 v{AC1+r}, v{AC1+r}, v{RS}")
        for i in range(8): A(f"v_cvt_pk_bf16_f32 v{XF+8+i}, v{AC1+2*i}, v{AC1+2*i+1}")
        A(f"buffer_store_dwordx4 {v(XF+8,4)}, v2, s[20:23], s35 offen sc1")
        A(f"buffer_store_dwordx4 {v(XF+12,4)}, v2, s[20:23], s36 offen sc1")
        A("s_lshl_b32 s35, s37, 10")
        A(f"s_add_u32 s36, s35, {WS_Q + 65536}")
        for r in range(16):
            A(f"v_fma_f32 v{AC0+r}, -v{M}, v{WF+r}, v{AC0+r}")
            A(f"v_mul_f32 v{AC0+r}, v{AC0+r}, v6")
        for i in range(8): A(f"v_cvt_pk_bf16_f32 v{XF+i}, v{AC0+2*i}, v{AC0+2*i+1}")
        A(f"buffer_store_dwordx4 {v(XF,4)}, v2, s[20:23], s35 offen sc1")
        A(f"buffer_store_dwordx4 {v(XF+4,4)}, v2, s[20:23], s36 offen sc1")
    else:
        A("s_lshl_b32 s34, s3, 8")
        A(f"s_add_u32 s34, s34, {TB + 3072}")
        A("v_add_u32 v6, s34, v6")
        A("v_add_u32 v8, s34, v8")
        A(f"ds_write_b32 v6, v{M}"); lg.issue("w")
        A(f"ds_write_b32 v6, v{RS} offset:128"); lg.issue("w")
        for g in range(4):
            A(f"ds_read_b128 {v(WF+4*g,4)}, v8 offset:{g*32}"); lg.issue("m2")
        for g in range(4):
            A(f"ds_read_b128 {v(WF+16+4*g,4)}, v8 offset:{128 + g*32}"); lg.issue("rs")
        A("v_bfe_u32 v7, v0, 4, 1")
        A("v_lshlrev_b32 v7, 17, v7")
        A("v_lshrrev_b32 v5, 5, v0")
        A("v_lshl_add_u32 v7, v5, 8, v7")
        A("v_and_b32 v5, 15, v0")
        A("v_lshl_add_u32 v7, v5, 4, v7")
        A("s_lshl_b32 s35, s37, 11")
        A(f"s_add_u32 s35, s35, {WS_KV}")
        lg.wait("rs")
        for r in range(16):
            A(f"v_fma_f32 v{AC0+r}, -v{WF+r}, v4, v{AC0+r}")
            A(f"v_mul_f32 v{AC0+r}, v{AC0+r}, v{WF+16+r}")
        for i in range(8): A(f"v_cvt_pk_bf16_f32 v{XF+i}, v{AC0+2*i}, v{AC0+2*i+1}")
        A(f"buffer_store_dwordx4 {v(XF,4)}, v7, s[20:23], s35 offen offset:1024 sc1")
        A(f"buffer_store_dwordx4 {v(XF+4,4)}, v7, s[20:23], s35 offen offset:1536 sc1")

def attn(A, name):
    A("s_and_b32 s16, s2, 7")
    A("s_lshr_b32 s17, s2, 3")
    A("s_and_b32 s18, s17, 3")
    A("s_lshl_b32 s16, s16, 2")
    A("s_add_u32 s16, s16, s18")
    A("s_lshr_b32 s17, s17, 2")
    A("s_lshl_b32 s17, s17, 3")
    A("s_add_u32 s17, s17, s3")
    A("s_lshl_b32 s19, s16, 6")
    A("s_add_u32 s19, s19, s17")
    A("s_lshl_b32 s19, s19, 10")
    A("s_lshl_b32 s26, s16, 17")
    A(f"s_add_u32 s26, s26, {WS_KV}")
    A("s_lshl_b32 s27, s3, 10")
    A("s_add_u32 s28, s26, s27")
    A(f"s_add_u32 s27, s27, {ABASE}")
    A("v_lshrrev_b32 v3, 5, v0")
    A("v_lshlrev_b32 v3, 8, v3")
    A("v_and_b32 v4, 15, v0")
    A("v_lshlrev_b32 v4, 4, v4")
    A("v_add_u32 v3, v3, v4")
    A(f"v_add_u32 v108, {ABASE}, v2")
    A(f"v_add_u32 v109, {ABASE + 1024}, v3")
    A("s_lshl_b32 s29, s3, 2")
    A("s_add_u32 s29, s29, 128")
    A("v_mov_b32 v114, s29")
    A("v_mov_b32 v115, 1")
    A("v_and_b32 v117, 7, v0")
    A("v_lshlrev_b32 v117, 2, v117")
    A("s_mov_b32 s24, 0x0000ffff")
    A("s_mov_b32 s25, 0x0000ffff")
    A("v_and_b32 v4, 27, v0")
    A("v_cmp_eq_u32 vcc, 16, v4")
    A("v_mov_b32 v5, 0x3f803f80")
    A("s_nop 0")
    A("v_cndmask_b32 v5, 0, v5, vcc")
    for r in range(8): A(f"v_mov_b32 {v(VV0+r)}, v5")
    for r in range(16): A(f"v_mov_b32 {v(VO+r)}, 0")
    for r in range(4, 8): A(f"v_mov_b32 {v(VP[1]+r)}, 0")
    A("s_lshr_b32 s29, s16, 1")
    A("s_lshl_b32 s29, s29, 11")
    A(f"s_add_u32 s29, s29, {FL_A}")
    poll_lanes(A, 20, 116, "s29", 6, sleep=1)
    tl_mark(A, 3)
    A(f"buffer_load_dwordx4 {v(VQ,4)}, v2, s[20:23], s19 offen sc1")
    A(f"buffer_load_dwordx4 {v(VK,4)}, v2, s[20:23], s26 offen sc1")
    def dma(off):
        A(f"s_add_u32 m0, s27, {off}")
        A("s_nop 0")
        A("buffer_load_dwordx4 v2, s[20:23], s28 offen sc1 lds")
        A("s_add_u32 s28, s28, 8192")
    for c in range(4): dma(c * 8192)
    A("s_waitcnt vmcnt(4)")
    A(f"v_mfma_f32_32x32x16_bf16 {v(VS[0],16)}, {v(VK,4)}, {v(VQ,4)}, 0")
    A("s_waitcnt vmcnt(2)")
    A("s_mov_b64 exec, 1")
    A("ds_write_b32 v114, v115")
    A("s_mov_b64 exec, -1")
    A("s_nop 7")
    A(f"v_max3_f32 v6, {v(VS[0])}, {v(VS[0]+1)}, {v(VS[0]+2)}")
    for r in range(3, 15, 2):
        A(f"v_max3_f32 v6, v6, {v(VS[0]+r)}, {v(VS[0]+r+1)}")
    A(f"v_max_f32 v6, v6, {v(VS[0]+15)}")
    def negm_fill():
        A("v_mov_b32 v4, v6")
        A("s_nop 1")
        A("v_permlane32_swap_b32 v4, v6")
        A("s_nop 1")
        A("v_max_f32 v6, v4, v6")
        A("v_sub_f32 v6, 0, v6")
        for r in range(16): A(f"v_mov_b32 {v(VNEG+r)}, v6")
    negm_fill()
    A(f"v_mov_b32 {v(VS[1]+14)}, 0")
    A(f"v_mov_b32 {v(VS[1]+15)}, 0")
    A(f"v_mfma_f32_32x32x16_bf16 {v(VS[0],16)}, {v(VK,4)}, {v(VQ,4)}, {v(VNEG,16)}")
    A.label(f"{name}_aw0")
    A("ds_read_b32 v116, v117 offset:128")
    A("s_waitcnt lgkmcnt(0)")
    A("v_cmp_eq_u32 vcc, 0, v116")
    A("s_nop 1")
    A("s_cmp_eq_u64 vcc, 0")
    A(f"s_cbranch_scc0 {name}_aw0")
    A("v_mov_b32 v115, 2")
    A(f"ds_read_b128 {v(VK,4)}, v108 offset:2048")
    A("s_mov_b64 exec, s[24:25]")
    A(f"ds_read_b128 {v(VV0,4)}, v109")
    A("s_mov_b64 exec, -1")
    A("s_mov_b32 s30, 0")
    A("s_mov_b32 s31, 1")
    A(f"s_mov_b32 s33, {4*8192}")
    A("s_mov_b32 s34, 16")
    A("s_xor_b32 s35, s3, 4")
    A("v_mov_b32 v110, v108")
    A("v_mov_b32 v111, v109")
    A("s_waitcnt lgkmcnt(0)")
    A.raw(".p2align 6")
    A.label(f"{name}_aloop")
    for tt in range(4):
        X = tt % 2; Y = 1 - X
        S = VS[X]; P = VP[X]; PP = VP[Y]; SY = VS[Y]
        e = lambda i: A(f"v_exp_f32 {v(S+i)}, {v(S+i)}")
        c = lambda i: A(f"v_cvt_pk_bf16_f32 {v(P+i)}, {v(S+2*i)}, {v(S+2*i+1)}")
        e(0)
        A(f"v_cvt_pk_bf16_f32 {v(PP+7)}, {v(SY+14)}, {v(SY+15)}")
        e(1)
        A(f"s_waitcnt lgkmcnt({0 if tt == 2 else 2})")
        A(f"v_mfma_f32_32x32x16_bf16 {v(SY,16)}, {v(VK,4)}, {v(VQ,4)}, {v(VNEG,16)}")
        if tt < 2:
            A(f"ds_read_b128 {v(VK,4)}, v110 offset:{(tt+2)*2048}")
        elif tt == 2:
            A("v_cmp_gt_u32 vcc, s31, v116")
            A("s_add_u32 s30, s30, 8192")
            A(f"s_cmp_eq_u32 s30, {NCH*8192}")
            A("s_cselect_b32 s30, 0, s30")
            A("v_add_u32 v112, s30, v108")
            A("v_add_u32 v113, s30, v109")
            A("s_cmp_eq_u64 vcc, 0")
            A(f"s_cbranch_scc0 {name}_aspin")
            A.label(f"{name}_aspin_ret")
            A(f"ds_read_b128 {v(VK,4)}, v112")
            A("s_add_u32 s31, s31, 1")
            A("v_readlane_b32 s29, v116, s35")
            A("s_cmp_lt_u32 s29, s31")
            A(f"s_cbranch_scc1 {name}_alow")
            A("s_setprio 1")
            A(f"s_branch {name}_aprio")
            A.label(f"{name}_alow")
            A("s_setprio 0")
            A.label(f"{name}_aprio")
            A("s_cmp_gt_u32 s34, 4")
            A(f"s_cbranch_scc0 {name}_anodma")
            dma("s33")
            A("s_add_u32 s33, s33, 8192")
            A(f"s_cmp_eq_u32 s33, {NCH*8192}")
            A("s_cselect_b32 s33, 0, s33")
            A.label(f"{name}_anodma")
        else:
            A(f"ds_read_b128 {v(VK,4)}, v112 offset:2048")
        e(2); c(0); e(3); e(4); c(1)
        A("s_waitcnt lgkmcnt(2)")
        if not os.environ.get("E2"): A(f"v_mfma_f32_32x32x16_bf16 {v(VO,16)}, {v(VV1,4)}, {v(PP+4,4)}, {v(VO,16)}")
        A("s_mov_b64 exec, s[24:25]" if not os.environ.get("E1") else "s_mov_b64 exec, 1")
        A(f"ds_read_b128 {v(VV1,4)}, v111 offset:{tt*2048+512}")
        if tt == 0:
            A("s_cmp_gt_u32 s34, 3")
            A("s_cbranch_scc1 " + f"{name}_aw1")
            A("s_waitcnt vmcnt(0)")
            A.label(f"{name}_aw1")
            A("s_waitcnt vmcnt(1)")
            A("s_mov_b64 exec, 1")
            A("ds_write_b32 v114, v115")
        A("s_mov_b64 exec, -1")
        e(5); e(6); c(2); e(7); e(8); c(3); e(9); e(10)
        A(f"s_waitcnt lgkmcnt({3 if tt == 0 else 2})")
        A(f"v_mfma_f32_32x32x16_bf16 {v(VO,16)}, {v(VV0,4)}, {v(P,4)}, {v(VO,16)}")
        A("s_mov_b64 exec, s[24:25]" if not os.environ.get("E1") else "s_mov_b64 exec, 1")
        if tt < 3: A(f"ds_read_b128 {v(VV0,4)}, v111 offset:{(tt+1)*2048}")
        else: A(f"ds_read_b128 {v(VV0,4)}, v113")
        A("s_mov_b64 exec, -1")
        if tt == 1:
            A("ds_read_b32 v116, v117 offset:128")
            A("v_add_u32 v115, 1, v115")
        c(4); e(11); e(12); c(5); e(13); e(14); c(6)
        if tt == 3:
            A("v_mov_b32 v110, v112")
            A("v_mov_b32 v111, v113")
            A("s_sub_u32 s34, s34, 1")
            A("s_cmp_lg_u32 s34, 0")
        e(15)
    A(f"s_cbranch_scc1 {name}_aloop")
    A("s_waitcnt lgkmcnt(0)")
    A(f"v_cvt_pk_bf16_f32 {v(VP[1]+7)}, {v(VS[1]+14)}, {v(VS[1]+15)}")
    A("s_setprio 2")
    A("s_nop 0")
    A(f"v_mfma_f32_32x32x16_bf16 {v(VO,16)}, {v(VV1,4)}, {v(VP[1]+4,4)}, {v(VO,16)}")
    A("s_lshl_b32 s19, s17, 5")
    A("s_add_u32 s19, s19, s16")
    A("s_lshr_b32 s18, s17, 3")
    A("s_lshl_b32 s18, s18, 5")
    A("s_add_u32 s18, s18, s16")
    A("s_lshl_b32 s18, s18, 7")
    A(f"s_add_u32 s18, s18, {FL_O}")
    A("s_lshl_b32 s19, s19, 10")
    A(f"s_add_u32 s19, s19, {WS_O}")
    A("s_mov_b32 s29, 0x7b800000")
    A("s_nop 1")
    A(f"v_add_f32_e64 v4, abs({v(VO)}), {v(VO+8)}")
    for r in range(1, 8):
        A(f"v_add_f32_e64 v4, abs({v(VO+r)}), v4")
    A("v_cmp_gt_f32 vcc, s29, v4")
    A("s_nop 1")
    A("s_cmp_eq_u64 vcc, -1")
    A(f"s_cbranch_scc0 {name}_aslow")
    A.label(f"{name}_astore")
    A(f"v_rcp_f32 v4, {v(VO+8)}")
    A("s_nop 0")
    for r in range(8): A(f"v_mul_f32 {v(VO+r)}, {v(VO+r)}, v4")
    for r in range(4): A(f"v_cvt_pk_bf16_f32 {v(VP[0]+r)}, {v(VO+2*r)}, {v(VO+2*r+1)}")
    A(f"buffer_store_dwordx4 {v(VP[0],4)}, v2, s[20:23], s19 offen sc1")
    tl_mark(A, 4)
    final(A, name)
    A(f"s_branch {name}_end")
    A.label(f"{name}_aspin")
    A("s_sleep 2")
    A("ds_read_b32 v116, v117 offset:128")
    A("s_waitcnt lgkmcnt(0)")
    A("v_cmp_gt_u32 vcc, s31, v116")
    A("s_nop 1")
    A("s_cmp_eq_u64 vcc, 0")
    A(f"s_cbranch_scc0 {name}_aspin")
    A(f"s_branch {name}_aspin_ret")
    A.label(f"{name}_aslow")
    A("s_waitcnt vmcnt(0) lgkmcnt(0)")
    A("v_mov_b32 v6, 0xff800000")
    A("s_mov_b32 s28, s26")
    A("s_mov_b32 s34, 64")
    A.label(f"{name}_smax")
    A(f"buffer_load_dwordx4 {v(VK,4)}, v2, s[20:23], s28 offen sc1")
    A("s_waitcnt vmcnt(0)")
    A(f"v_mfma_f32_32x32x16_bf16 {v(VS[0],16)}, {v(VK,4)}, {v(VQ,4)}, 0")
    A("s_add_u32 s28, s28, 2048")
    A("s_sub_u32 s34, s34, 1")
    A("s_nop 7")
    A("s_nop 1")
    for r in range(0, 16, 2):
        A(f"v_max3_f32 v6, v6, {v(VS[0]+r)}, {v(VS[0]+r+1)}")
    A("s_cmp_lg_u32 s34, 0")
    A(f"s_cbranch_scc1 {name}_smax")
    negm_fill()
    for r in range(16): A(f"v_mov_b32 {v(VO+r)}, 0")
    A("s_mov_b32 s28, s26")
    A("s_mov_b32 s34, 64")
    A.label(f"{name}_sloop")
    A(f"buffer_load_dwordx4 {v(VK,4)}, v2, s[20:23], s28 offen sc1")
    A("s_mov_b64 exec, s[24:25]")
    A(f"buffer_load_dwordx4 {v(VV0,4)}, v3, s[20:23], s28 offen offset:1024 sc1")
    A(f"buffer_load_dwordx4 {v(VV1,4)}, v3, s[20:23], s28 offen offset:1536 sc1")
    A("s_mov_b64 exec, -1")
    A("s_waitcnt vmcnt(0)")
    A(f"v_mfma_f32_32x32x16_bf16 {v(VS[0],16)}, {v(VK,4)}, {v(VQ,4)}, {v(VNEG,16)}")
    A("s_add_u32 s28, s28, 2048")
    A("s_sub_u32 s34, s34, 1")
    A("s_nop 7")
    A("s_nop 1")
    for r in range(16): A(f"v_exp_f32 {v(VS[0]+r)}, {v(VS[0]+r)}")
    A("s_nop 0")
    for r in range(8): A(f"v_cvt_pk_bf16_f32 {v(VP[0]+r)}, {v(VS[0]+2*r)}, {v(VS[0]+2*r+1)}")
    A("s_nop 1")
    A(f"v_mfma_f32_32x32x16_bf16 {v(VO,16)}, {v(VV0,4)}, {v(VP[0],4)}, {v(VO,16)}")
    A(f"v_mfma_f32_32x32x16_bf16 {v(VO,16)}, {v(VV1,4)}, {v(VP[0]+4,4)}, {v(VO,16)}")
    A("s_cmp_lg_u32 s34, 0")
    A(f"s_cbranch_scc1 {name}_sloop")
    A("s_nop 7")
    A("s_nop 3")
    A(f"s_branch {name}_astore")

def final(A, name):
    WR = 8; OR = 72; AC = 136
    A("s_and_b32 s24, s2, 3")
    A("s_lshl_b32 s24, s24, 3")
    A("s_bfe_u32 s25, s2, 0x30003")
    A("s_add_u32 s24, s24, s25")
    A("s_bfe_u32 s25, s2, 0x10002")
    A("s_lshl_b32 s25, s25, 2")
    A("s_lshr_b32 s26, s2, 6")
    A("s_add_u32 s25, s25, s26")
    A("s_and_b32 s26, s3, 1")
    A("s_bfe_u32 s27, s3, 0x10001")
    A("s_lshr_b32 s28, s3, 2")
    A("v_mov_b32 v160, 0")
    A("v_mov_b32 v161, 1")
    A("v_lshrrev_b32 v3, 5, v0")
    A("v_bfe_u32 v4, v0, 2, 2")
    A("v_lshl_add_u32 v4, v3, 2, v4")
    A("v_lshlrev_b32 v4, 7, v4")
    A("v_bfe_u32 v5, v0, 4, 1")
    A("v_lshlrev_b32 v5, 1, v5")
    A("v_bfe_u32 v6, v0, 1, 1")
    A("v_add_u32 v5, v5, v6")
    A("v_bfe_u32 v6, v0, 3, 1")
    A("v_xor_b32 v6, s27, v6")
    A("v_lshl_add_u32 v5, v6, 2, v5")
    A("v_lshl_add_u32 v4, v5, 4, v4")
    A("v_and_b32 v6, 1, v0")
    A("v_lshl_add_u32 v4, v6, 3, v4")
    A("s_lshl_b32 s29, s28, 15")
    A(f"s_add_u32 s29, s29, {BOFF}")
    A("v_add_u32 v4, s29, v4")
    A("v_and_b32 v5, 31, v0")
    A("s_lshl_b32 s29, s26, 5")
    A("v_add_u32 v5, s29, v5")
    A("s_lshl_b32 s29, s27, 6")
    A("s_lshl_b32 s30, s28, 5")
    A("s_add_u32 s29, s29, s30")
    A("v_lshl_add_u32 v6, v3, 4, s29")
    A(f"v_mul_u32_u24 v7, {GSTR}, v5")
    A("v_add_u32 v7, v7, v6")
    A(f"v_add_u32 v7, {GBUF}, v7")
    A("v_lshl_add_u32 v6, v5, 10, v6")
    A("s_lshl_b32 s30, s24, 16")
    A("s_lshl_b32 s31, s25, 7")
    A("s_add_u32 s30, s30, s31")
    A("buffer_load_dwordx4 v[152:155], v6, s[8:11], s30 offen")
    A("s_waitcnt vmcnt(1)")
    publish(A, C_O, 8, 160, 161, 162, 33, "s18", f"{name}_po")
    A("s_lshl_b32 s31, s24, 1")
    A("s_add_u32 s31, s31, s26")
    A("s_lshl_b32 s31, s31, 5")
    A("s_lshl_b32 s32, s28, 4")
    A("s_add_u32 s31, s31, s32")
    A("s_lshr_b32 s32, s24, 2")
    A("s_lshl_b32 s32, s32, 1")
    A("s_add_u32 s32, s32, s28")
    A("s_lshl_b32 s32, s32, 11")
    A(f"s_add_u32 s32, s32, {FL_O}")
    A("s_lshl_b32 s31, s31, 10")
    A(f"s_add_u32 s31, s31, {WS_O}")
    A("v_and_b32 v5, 15, v0")
    A("v_lshlrev_b32 v5, 7, v5")
    srd(A, 12, 44, 2048 * 1024)
    wait_cnt(A, C_G, 4, 160, 162, 33, sleep=2)
    lg = Cnt(A, "lgkmcnt", 15)
    for j in range(16):
        for p in range(2):
            A(f"ds_read_b64_tr_b16 {v(WR+4*j+2*p,2)}, v4 offset:{j*2048 + p*1024}"); lg.issue("w")
    A("ds_read_b128 v[156:159], v7"); lg.issue("w")
    poll_lanes(A, 20, 5, "s32", 162, sleep=1)
    tl_mark(A, 5)
    vm = Cnt(A, "vmcnt", 63)
    for j in range(16):
        if j % 4 == 0 and j: A("s_add_u32 s31, s31, 4096")
        A(f"buffer_load_dwordx4 {v(OR+4*j,4)}, v2, s[20:23], s31 offen offset:{(j%4)*1024} sc1"); vm.issue(("o", j))
    lg.wait_all()
    A("s_lshl_b32 s33, s3, 11")
    A(f"s_add_u32 s33, s33, {XCH}")
    A("v_add_u32 v3, s33, v2")
    A("v_xor_b32 v5, 8192, v3") if (XCH % 16384 == 0) else None
    if XCH % 16384:
        A("s_xor_b32 s33, s3, 4")
        A("s_lshl_b32 s33, s33, 11")
        A(f"s_add_u32 s33, s33, {XCH}")
        A("v_add_u32 v5, s33, v2")
    A("s_lshl_b32 s33, s3, 2")
    A("v_mov_b32 v163, s33")
    A("v_xor_b32 v164, 16, v163")
    for j in range(16):
        vm.wait(("o", j))
        A(f"v_mfma_f32_32x32x16_bf16 {v(AC,16)}, {v(WR+4*j,4)}, {v(OR+4*j,4)}, {v(AC,16) if j else 0}")
    A("s_cmp_eq_u32 s28, 0")
    A(f"s_cbranch_scc0 {name}_fk1")
    A("s_nop 7")
    A("s_nop 1")
    A(f"ds_write_b128 v3, {v(AC+8,4)}")
    A(f"ds_write_b128 v3, {v(AC+12,4)} offset:1024")
    A(f"s_branch {name}_fk")
    A.label(f"{name}_fk1")
    A("s_nop 7")
    A("s_nop 1")
    A(f"ds_write_b128 v3, {v(AC,4)}")
    A(f"ds_write_b128 v3, {v(AC+4,4)} offset:1024")
    A("s_waitcnt lgkmcnt(0)")
    for r in range(8): A(f"v_mov_b32 v{AC+r}, v{AC+8+r}")
    A.label(f"{name}_fk")
    A("s_waitcnt lgkmcnt(0)")
    A("s_mov_b64 exec, 1")
    A("ds_write_b32 v163, v161 offset:160")
    A("s_mov_b64 exec, -1")
    for i in range(4):
        A(f"v_lshlrev_b32 v{8+2*i}, 16, v{156+i}")
        A(f"v_and_b32 v{9+2*i}, 0xffff0000, v{156+i}")
        A(f"v_lshlrev_b32 v{16+2*i}, 16, v{152+i}")
        A(f"v_and_b32 v{17+2*i}, 0xffff0000, v{152+i}")
    wait_cnt(A, 160, 1, 164, 162, 33, sleep=0)
    A("ds_read_b128 v[24:27], v5")
    A("ds_read_b128 v[28:31], v5 offset:1024")
    A("s_waitcnt lgkmcnt(0)")
    for r in range(8): A(f"v_add_f32 v{AC+r}, v{AC+r}, v{24+r}")
    for i in range(4): A(f"v_cvt_pk_bf16_f32 v{24+i}, v{AC+2*i}, v{AC+2*i+1}")
    A("s_nop 1")
    A("v_permlane32_swap_b32 v24, v26")
    A("v_permlane32_swap_b32 v25, v27")
    A("s_nop 1")
    for i in range(4):
        A(f"v_lshlrev_b32 v{32+2*i}, 16, v{24+i}")
        A(f"v_and_b32 v{33+2*i}, 0xffff0000, v{24+i}")
    for i in range(8): A(f"v_mul_f32 v{32+i}, v{32+i}, v{8+i}")
    for i in range(4): A(f"v_cvt_pk_bf16_f32 v{24+i}, v{32+2*i}, v{33+2*i}")
    for i in range(4):
        A(f"v_lshlrev_b32 v{32+2*i}, 16, v{24+i}")
        A(f"v_and_b32 v{33+2*i}, 0xffff0000, v{24+i}")
    for i in range(8): A(f"v_add_f32 v{32+i}, v{32+i}, v{16+i}")
    for i in range(4): A(f"v_cvt_pk_bf16_f32 v{24+i}, v{32+2*i}, v{33+2*i}")
    A("buffer_store_dwordx4 v[24:27], v6, s[12:15], s30 offen")
    tl_end(A, 0, 20)
    tl_marks_out(A, 1, 6, 20)

class BBar:
    def __init__(self, name): self.n = 0; self.name = name; self.lg = None; self.boost = False
    def __call__(self, A):
        self.n += 1
        if self.boost: A("s_setprio 2")
        A("s_mov_b64 exec, 2")
        A("ds_add_u32 v7, v7 offset:64")
        A("s_mov_b64 exec, 1")
        A.label(f"{self.name}_bb{self.n}")
        A("ds_read_b32 v1, v7 offset:80")
        A("s_waitcnt lgkmcnt(0)")
        A("v_readfirstlane_b32 s56, v1")
        A(f"s_cmp_ge_u32 s56, {64*self.n}")
        A(f"s_cbranch_scc0 {self.name}_bb{self.n}")
        A("s_mov_b64 exec, -1")
        if self.boost: A("s_setprio 0")
        if self.lg is not None: self.lg.seq = []

def lb_role(A, name):
    A("s_sub_u32 s3, s3, 8")
    A("v_lshlrev_b32 v7, 2, v0")
    A("v_mov_b32 v1, 0")
    A("ds_write_b32 v7, v1")
    A("v_lshlrev_b32 v7, 4, v0")
    rc_qkv(A)
    A("v_lshrrev_b32 v4, 3, v0")
    A("v_and_b32 v5, 7, v0")
    A("v_lshrrev_b32 v6, 4, v0")
    A("v_xor_b32 v5, v5, v6")
    A("v_xor_b32 v8, 4, v5")
    A("s_lshl_b32 s28, s3, 15")
    A("v_lshlrev_b32 v4, 10, v4")
    A("v_add_u32 v4, s28, v4")
    A("v_lshl_add_u32 v60, v5, 4, v4")
    A("v_lshl_add_u32 v61, v8, 4, v4")
    A("v_add_u32 v61, 8192, v61")
    A("v_add_u32 v62, 16384, v60")
    A("v_add_u32 v63, 16384, v61")
    A("v_lshrrev_b32 v4, 2, v0")
    A("s_lshl_b32 s28, s3, 4")
    A("v_add_u32 v4, s28, v4")
    A("v_mul_u32_u24 v4, 3072, v4")
    A("v_and_b32 v5, 3, v0")
    A("v_lshl_add_u32 v64, v5, 4, v4")
    A("s_lshl_b32 s28, s25, 6")
    A("v_add_u32 v64, s28, v64")
    A("v_add_u32 v65, 1024, v64")
    A("v_add_u32 v66, 2048, v64")
    A("s_lshl_b32 s70, s24, 1")
    A("s_add_u32 s70, s70, s25")
    A("s_and_b32 s70, s70, 7")
    A("s_lshl_b32 s71, s24, 17")
    A("s_lshl_b32 s72, s3, 12")
    A(f"s_add_u32 s72, s72, {K1B}")
    A("s_lshl_b32 s73, s3, 10")
    A(f"s_add_u32 s73, s73, {K1B + 16384}")
    A(f"s_mov_b32 s74, {2*K1_SLOT}")
    A("s_waitcnt lgkmcnt(0)")
    A("s_barrier")
    srd(A, 60, 4, 2048 * 1024)
    srd(A, 64, 6, 512 * 3072)
    srd(A, 20, 16, WS_END)
    srd(A, 52, 18, 256)
    def ldma():
        A("s_lshl_b32 s75, s70, 7")
        A("s_add_u32 s75, s75, s71")
        A(f"s_mul_i32 s76, s70, {64*3072}")
        A("s_add_u32 s70, s70, 1")
        A("s_and_b32 s70, s70, 7")
        A("s_add_u32 s77, s72, s74")
        A("s_add_u32 s78, s73, s74")
        for e in range(4):
            A(f"s_add_u32 m0, s77, {e*1024}")
            A("s_nop 0")
            A(f"buffer_load_dwordx4 v{60+e}, s[60:63], s75 offen lds")
        for T_ in range(3):
            A(f"s_add_u32 m0, s78, {T_*4096}")
            A("s_nop 0")
            A(f"buffer_load_dwordx4 v{64+T_}, s[64:67], s76 offen lds")
        A(f"s_add_u32 s74, s74, {K1_SLOT}")
        A(f"s_cmp_eq_u32 s74, {K1_SLOT*K1_NS}")
        A("s_cselect_b32 s74, 0, s74")
    A("s_mov_b32 s79, 0")
    A.label(f"{name}_lpro")
    ldma()
    A("s_add_u32 s79, s79, 1")
    A(f"s_cmp_lt_u32 s79, {K1_PRO}")
    A(f"s_cbranch_scc1 {name}_lpro")
    A("s_mov_b32 s4, s48")
    A("s_mov_b32 s5, s49")
    A("s_mov_b32 s6, s50")
    A("s_mov_b32 s7, s51")
    bar = BBar(name)
    def prologue(A, dma, vm):
        issued = K1_PRO; seq = [("k", st) for st in range(K1_PRO) for _ in range(7)]
        gu_next = 0
        for j in range(8):
            idx = max(i for i, t in enumerate(seq) if t == ("k", j))
            A(f"s_waitcnt vmcnt({len(seq) - 1 - idx})")
            A("s_barrier")
            if issued < 8 and issued - 4 <= j:
                ldma(); seq += [("k", issued)] * 7; issued += 1
            elif issued == 8 and j >= 5 and gu_next < 2:
                dma(gu_next); seq += [("g", gu_next)] * 7; gu_next += 1
        assert issued == 8 and gu_next == 2
        A("s_barrier")
        A("v_mov_b32 v1, 0")
        wait_ready(A, 1, 12, 37)
        A("s_lshl_b32 s36, s24, 11")
        A(f"s_add_u32 s36, s36, {FL_X}")
        A("v_and_b32 v1, 15, v0")
        A("v_lshlrev_b32 v1, 7, v1")
        poll_lanes(A, 20, 1, "s36", 12, sleep=2)
        tl_mark(A, 4)
        vm.seq = []
    ffn.gu_body(A, name + "_gu", bar, st_flags="sc1", lds0=BOFF, x_flags="sc1", prologue=prologue)
    A("s_waitcnt vmcnt(0)")
    bar(A)
    A("s_cmp_eq_u32 s3, 0")
    A(f"s_cbranch_scc0 {name}_noflag")
    A("s_lshl_b32 s34, s24, 4")
    A("s_add_u32 s34, s34, s25")
    A("s_lshl_b32 s34, s34, 7")
    A(f"s_add_u32 s34, s34, {FL_H}")
    A("v_mov_b32 v1, 0")
    A("s_mov_b64 exec, 1")
    flag_store(A, 1, 2, "s34")
    A("s_mov_b64 exec, -1")
    A.label(f"{name}_noflag")
    tl_mark(A, 1)
    A("s_mov_b32 s4, s46")
    A("s_mov_b32 s5, s47")
    A("v_lshrrev_b32 v0, 4, v7")
    ctx = ffn.sk_body(A, name + "_dn", bar, 28, WS_H, 112 * 1024, 1792 * 1024, "g", ld_flags="sc1", lds0=BOFF)
    def wait_act(A):
        A("s_lshr_b32 s34, s24, 1")
        A("s_lshl_b32 s34, s34, 11")
        A("s_lshl_b32 s35, s3, 9")
        A("s_add_u32 s34, s34, s35")
        A(f"s_add_u32 s34, s34, {FL_H}")
        A("v_and_b32 v1, 3, v0")
        A("v_lshlrev_b32 v1, 7, v1")
        poll_lanes(A, 20, 1, "s34", 16, sleep=4)
        tl_mark(A, 2)
        ctx["vm"].seq = []
    bar.lg = ctx["lg"]
    def after_red_reads(A):
        bar(A)
        srd(A, 8, 42, 512 * 1024)
        A("s_lshl_b32 s27, s3, 17")
        A("s_lshl_b32 s28, s3, 14")
        A(f"s_add_u32 s28, s28, {BOFF}")
        for j in range(8):
            A(f"s_add_u32 s31, s27, {j*16384}")
            A(f"s_add_u32 m0, s28, {j*2048}")
            A("s_nop 0")
            A("buffer_load_dwordx4 v8, s[8:11], s31 offen lds")
            A(f"s_add_u32 m0, s28, {j*2048 + 1024}")
            A("s_nop 0")
            A("buffer_load_dwordx4 v9, s[8:11], s31 offen lds")
    ffn.sk_main(A, name + "_dn", bar, 28, ctx, "glds", wait_act=wait_act, lds0=BOFF, after_red_reads=after_red_reads, gbuf=(GBUF, GSTR))
    A("s_waitcnt vmcnt(0) lgkmcnt(0)")
    A("v_mov_b32 v1, 0")
    A("v_mov_b32 v2, 1")
    arrive(A, C_G, 1, 2)
    A("s_add_u32 s3, s3, 8")
    tl_end(A, 8, 20)
    tl_marks_out(A, 9, 5, 20)

def gen(A, name=NAME):
    kernel_begin(A, name)
    A("s_cmp_ge_u32 s2, 256")
    A(f"s_cbranch_scc1 F_end")
    tl_begin(A)
    A("s_load_dwordx4 s[4:7], s[0:1], 0")
    A("s_load_dwordx2 s[42:43], s[0:1], 16")
    A("s_load_dwordx4 s[48:51], s[0:1], 32")
    A("s_load_dwordx2 s[46:47], s[0:1], 48")
    A("s_load_dwordx2 s[44:45], s[0:1], 56")
    A("s_load_dwordx2 s[18:19], s[0:1], 64")
    A("s_load_dwordx2 s[16:17], s[0:1], 72")
    A("v_lshrrev_b32 v1, 6, v0")
    A("v_and_b32 v0, 63, v0")
    A("s_nop 0")
    A("v_readfirstlane_b32 s3, v1")
    A("s_cmp_lt_u32 s3, 8")
    A("s_cbranch_scc0 F_lb")
    ca_role(A, "F")
    A.label("F_lb")
    ffn.PRIO = True
    A("s_setprio 2")
    lb_role(A, "F")
    ffn.PRIO = False
    A.label("F_end")
    A("s_endpgm")
```

```python
import re, sys

def regs(tok):
    tok = tok.strip()
    tok = re.sub(r"^-?abs\((.*)\)$", r"\1", tok)
    tok = re.sub(r"^\|(.*)\|$", r"\1", tok)
    tok = tok.lstrip("-")
    m = re.fullmatch(r"([vsa])(\d+)", tok)
    if m: return {(m.group(1), int(m.group(2)))}
    m = re.fullmatch(r"([vsa])\[(\d+):(\d+)\]", tok)
    if m: return {(m.group(1), i) for i in range(int(m.group(2)), int(m.group(3)) + 1)}
    if tok in ("vcc", "vcc_lo", "vcc_hi"): return {("vcc", 0)}
    if tok in ("exec", "exec_lo", "exec_hi"): return {("exec", 0)}
    if tok == "m0": return {("m0", 0)}
    return set()

TRANS = ("v_exp_", "v_log_", "v_rcp_", "v_rsq_", "v_sqrt_", "v_sin_", "v_cos_")
class I: pass
def parse(line):
    line = line.split(";")[0].strip()
    if not line or line.endswith(":") or line.startswith("."): return None
    parts = line.split(None, 1)
    op = parts[0]
    rest = parts[1] if len(parts) > 1 else ""
    ops = [o.strip() for o in re.split(r",(?![^\[]*\])", rest)] if rest else []
    mods = ""
    if ops:
        sp = ops[-1].split(None, 1)
        if len(sp) > 1 and not ops[-1].startswith("abs") :
            ops[-1] = sp[0]; mods = sp[1]
    i = I(); i.op = op; i.ops = ops; i.mods = mods; i.text = line
    i.w = set(); i.r = set(); i.kind = "other"; i.ws = 1
    i.srcA = set(); i.srcB = set(); i.srcC = set(); i.passes = 0; i.storedata = set()
    if op == "s_nop":
        i.ws = int(ops[0], 0) + 1; i.kind = "nop"
    elif op.startswith("v_mfma") or op.startswith("v_smfmac"):
        i.kind = "mfma"
        i.w = regs(ops[0]); i.srcA = regs(ops[1]); i.srcB = regs(ops[2]); i.srcC = regs(ops[3])
        i.r = i.srcA | i.srcB | i.srcC
        i.passes = 8 if "32x32" in op else 4
    elif op.startswith("v_"):
        i.kind = "valu"
        if op.startswith("v_cmp"):
            i.w = regs(ops[0]); srcs = ops[1:]
            if op.startswith("v_cmpx"): i.w |= {("exec", 0)}
        elif op.startswith("v_permlane") and "swap" in op:
            i.w = regs(ops[0]) | regs(ops[1]); srcs = ops
        elif "_co_" in op or op.startswith("v_div_scale") or op.startswith("v_mad_u64"):
            i.w = regs(ops[0]) | regs(ops[1]); srcs = ops[2:]
        else:
            i.w = regs(ops[0]); srcs = ops[1:]
            if op.startswith("v_fmac") or op.startswith("v_dot2c") or "UNUSED_PRESERVE" in mods or op.startswith("v_writelane"):
                srcs = ops
        for s_ in srcs: i.r |= regs(s_)
        if op.startswith("v_cndmask") and len(ops) == 3: i.r |= {("vcc", 0)}
        i.trans = op.startswith(TRANS)
        i.dpp = ("dpp" in op) or any(k in mods for k in ("quad_perm", "row_", "wave_"))
        i.dot = op.startswith("v_dot")
        i.sdwa = "sdwa" in op
    elif op.startswith(("buffer_", "global_", "flat_")):
        i.kind = "vmem"
        lds = re.search(r"\blds\b", mods) is not None or "_lds_" in op
        i.lds = lds
        if "load" in op and not lds:
            i.w = regs(ops[0]); srcs = ops[1:]
        elif "atomic" in op and "sc0" in mods:
            i.w = regs(ops[0]); srcs = ops
        else:
            srcs = ops
            if "store" in op or "atomic" in op:
                d = ops[0] if op.startswith("buffer_") else ops[1]
                if "x4" in op or "x3" in op: i.storedata = regs(d)
        for s_ in srcs: i.r |= regs(s_)
        if lds: i.r |= {("m0", 0)}
    elif op.startswith("ds_"):
        i.kind = "ds"
        if "read" in op or "bpermute" in op or "permute" in op or "swizzle" in op or "_rtn" in op:
            i.w = regs(ops[0]); srcs = ops[1:]
        else: srcs = ops
        for s_ in srcs: i.r |= regs(s_)
    elif op.startswith("s_"):
        i.kind = "salu"
        if op.startswith(("s_cmp", "s_cbranch", "s_branch", "s_waitcnt", "s_barrier", "s_endpgm", "s_setprio", "s_sleep")):
            for s_ in ops: i.r |= regs(s_)
        elif ops:
            i.w = regs(ops[0])
            for s_ in ops[1:]: i.r |= regs(s_)
            if "saveexec" in op: i.w |= {("exec", 0)}
    return i

def need(p, c):
    best = (0, "")
    def up(n, why):
        nonlocal best
        if n > best[0]: best = (n, why)
    vw = {x for x in p.w if x[0] in "va"}
    sw = {x for x in p.w if x[0] in ("s", "vcc")}
    if p.kind == "valu":
        if c.kind == "mfma" and vw & c.r: up(3 if getattr(p, "dot", False) else 2, "valu->mfma src")
        if c.kind == "valu":
            if p.trans and not c.trans and vw & c.r: up(1, "trans->valu")
            if p.trans and c.trans and vw & c.r: up(1, "trans->trans(safe)")
            if c.op.startswith("v_permlane") and vw & c.r: up(2, "valu->permlane")
            if c.dpp and vw & c.r: up(2, "valu->dpp")
            if c.op.startswith(("v_readlane", "v_readfirstlane")) and vw & c.r: up(1, "valu->readlane")
            if sw & c.r: up(2, "valu sgpr->valu")
            if p.sdwa and vw & (c.r | c.w): up(1, "sdwa->valu")
            if p.dot and vw & (c.r | c.w):
                if not (c.op == p.op and not (vw & (regs(c.ops[1]) | regs(c.ops[2])))): up(3, "dot->other")
            if ("exec", 0) in p.w: up(5 if c.dpp else 4 if c.op.startswith(("v_readlane","v_readfirstlane","v_writelane","v_permlane")) else 0, "valu exec")
        if c.kind in ("vmem", "ds") and p.dot and vw & c.r: up(3, "dot->mem")
        if c.kind in ("vmem","ds") and p.trans and vw & c.r: up(1, "trans->mem(safe)")
        if c.kind == "vmem" and sw & c.r: up(5, "valu sgpr->vmem")
        if c.kind == "mfma" and ("exec", 0) in p.w: up(4, "valu exec->mfma")
    if p.kind == "mfma":
        P = p.passes
        if c.kind == "mfma":
            if p.w & (c.srcA | c.srcB): up({4: 8, 8: 12}[P], "mfma D->mfma A/B")
            if p.w & c.srcC and not (p.w == c.srcC and p.passes == c.passes): up({4: 6, 8: 10}[P], "mfma D->mfma C partial")
        elif c.kind in ("valu", "vmem", "ds"):
            if p.w & (c.r | c.w): up({4: 8, 8: 12}[P], "mfma D->valu/mem")
            if c.kind == "valu" and p.srcC & c.w: up({4: 3, 8: 7}[P], "mfma C WAR")
    if p.kind == "vmem" and p.storedata:
        if c.kind in ("valu", "mfma") and p.storedata & c.w: up(2, "store data WAR")
        elif p.storedata & c.w: up(1, "store data WAR")
    if p.kind == "salu" and ("m0", 0) in p.w and c.kind == "vmem" and getattr(c, "lds", False): up(1, "m0->lds dma")
    return best

def check_seq(ins, tag=""):
    bad = 0
    for j, c in enumerate(ins):
        dist = 0
        for k in range(j - 1, max(-1, j - 24), -1):
            p = ins[k]
            n, why = need(p, c)
            if n > dist:
                print(f"HAZARD{tag}: need {n} have {dist} [{why}]\n    {p.text}\n    {c.text}")
                bad += 1
            dist += p.ws
            if dist >= 20: break
    return bad

def check_text(text):
    lines = text.split("\n")
    ins = []; labels = {}
    for l in lines:
        st = l.split(";")[0].strip()
        if st.endswith(":") and not st.startswith("."):
            labels[st[:-1]] = len(ins)
        i = parse(l)
        if i: ins.append(i)
    bad = check_seq(ins)
    for j, i in enumerate(ins):
        if i.op.startswith(("s_cbranch", "s_branch")) and i.ops and i.ops[0] in labels:
            t = labels[i.ops[0]]
            seq = ins[max(0, j - 24):j + 1] + ins[t:t + 24]
            n0 = min(24, j) + 1
            for jj in range(n0, len(seq)):
                c = seq[jj]; dist = 0
                for k in range(jj - 1, -1, -1):
                    p = seq[k]
                    n, why = need(p, c)
                    if n > dist and k < n0:
                        print(f"HAZARD(branch {i.ops[0]}): need {n} have {dist} [{why}]\n    {p.text}\n    {c.text}")
                        bad += 1
                    dist += p.ws
                    if dist >= 20: break
    return bad

if __name__ == "__main__":
    n = check_text(open(sys.argv[1]).read())
    print("hazards:", n)
```

```python
import sys, os
from asmlib import *
import asmlib, fused, hazcheck
HDR = open("recurrent_scan__mha_block__glu_gated_glu__prompt.s.ref").read().split("; Override launch")[0]
asmlib.TIMELINE = "tl" in sys.argv
A = Asm()
A.raw(HDR.rstrip("\n"))
if "list" in sys.argv or asmlib.TIMELINE:
    A.raw(f"; @launch kernel={fused.NAME} grid=(256,1,1) block=({fused.F_THREADS},1,1) lds={fused.F_LDS}")
else:
    A.raw(f"; @launch grid=(256,1,1) block=({fused.F_THREADS},1,1) lds={fused.F_LDS}")
DOC = """; Single persistent kernel, 256 workgroups (one per CU) x 12 waves, generated by a hand-written Python emitter.
;   true row max (labels F_aslow..) whenever that shift could overflow."""
A.raw(DOC)
A.raw('.amdgcn_target "amdgcn-amd-amdhsa--gfx950"')
A.raw(".text")
fused.gen(A)
A.raw('.section .rodata,"a"')
A.raw(kernel_desc(fused.NAME, fused.F_VGPR))
t = A.text()
open(os.environ.get("OUT", "f.s"), "w").write(t)
print("hazards:", hazcheck.check_text(t))
import re
mx = 0
for m in re.finditer(r"v\[(\d+):(\d+)\]|\bv(\d+)\b", t[t.index(".text"):]):
    mx = max(mx, int(m.group(2) or m.group(3)))
print("max vgpr", mx, "lines", len(A.lines))
```

```python
class Asm:
    def __init__(self):
        self.lines = []
    def __call__(self, s):
        for l in s.split("\n"):
            l = l.strip()
            if l:
                self.lines.append("    " + l)
    def label(self, l):
        self.lines.append(l + ":")
    def raw(self, s):
        self.lines.append(s)
    def comment(self, s):
        self.lines.append("    ; " + s)
    def text(self):
        return "\n".join(self.lines) + "\n"

def v(i, n=1):
    return f"v{i}" if n == 1 else f"v[{i}:{i+n-1}]"
def a(i, n=1):
    return f"a{i}" if n == 1 else f"a[{i}:{i+n-1}]"
def s(i, n=1):
    return f"s{i}" if n == 1 else f"s[{i}:{i+n-1}]"

def kernel_begin(A, name):
    A.raw(f".globl {name}")
    A.raw(".p2align 8")
    A.raw(f".type {name},@function")
    A.label(name)

def kernel_desc(name, vgpr, sgpr=102, accum=None):
    if accum is None:
        accum = (vgpr + 3) // 4 * 4
    return f""".p2align 6
.amdhsa_kernel {name}
  .amdhsa_next_free_vgpr {vgpr}
  .amdhsa_next_free_sgpr {sgpr}
  .amdhsa_accum_offset {accum}
  .amdhsa_group_segment_fixed_size 0
  .amdhsa_kernarg_size 80
  .amdhsa_user_sgpr_count 2
  .amdhsa_user_sgpr_kernarg_segment_ptr 1
  .amdhsa_system_sgpr_workgroup_id_x 1
.end_amdhsa_kernel
"""

def srd(A, d, base, nbytes, off=0):
    if off:
        A(f"s_add_u32 s{d}, s{base}, {off}")
        A(f"s_addc_u32 s{d+1}, s{base+1}, 0")
    else:
        A(f"s_mov_b32 s{d}, s{base}")
        A(f"s_mov_b32 s{d+1}, s{base+1}")
    A(f"s_mov_b32 s{d+2}, {nbytes}")
    A(f"s_mov_b32 s{d+3}, 0x00020000")

WS_Q  = 0
WS_KV = 2 << 20
WS_O  = 6 << 20
WS_H  = 8 << 20
WS_FF = 16 << 20
WS_END = 32 << 20
WS_XF = 24 << 20
WS_G  = 28 << 20

class Cnt:
    def __init__(self, A, name, maxn):
        self.A = A; self.name = name; self.maxn = maxn; self.seq = []
    def issue(self, tag):
        if len(self.seq) >= self.maxn:
            last = self.A.lines.pop()
            keep = self.maxn - 6 if self.maxn == 15 else self.maxn - 1
            self.A(f"s_waitcnt {self.name}({keep})")
            self.A.lines.append(last)
            self.seq = self.seq[len(self.seq) - keep:]
        self.seq.append(tag)
    def n_after(self, tag):
        idx = max(i for i, t in enumerate(self.seq) if t == tag)
        return len(self.seq) - 1 - idx
    def wait(self, tag):
        if tag not in self.seq: return
        n = min(self.n_after(tag), self.maxn)
        self.A(f"s_waitcnt {self.name}({n})")
        idx = max(i for i, t in enumerate(self.seq) if t == tag)
        self.seq = self.seq[len(self.seq) - n:] if n else []
    def wait_all(self):
        self.A(f"s_waitcnt {self.name}(0)")
        self.seq = []

def wave_sum(A, x, t):
    for m in ("quad_perm:[1,0,3,2]", "quad_perm:[2,3,0,1]", "row_half_mirror", "row_mirror"):
        A("s_nop 1")
        A(f"v_add_f32_dpp v{x}, v{x}, v{x} {m} row_mask:0xf bank_mask:0xf")
    A(f"v_mov_b32 v{t}, v{x}")
    A("s_nop 1")
    A(f"v_permlane16_swap_b32 v{t}, v{x}")
    A("s_nop 1")
    A(f"v_add_f32 v{x}, v{x}, v{t}")
    A(f"v_mov_b32 v{t}, v{x}")
    A("s_nop 1")
    A(f"v_permlane32_swap_b32 v{t}, v{x}")
    A("s_nop 1")
    A(f"v_add_f32 v{x}, v{x}, v{t}")

def half_sum(A, x, t):
    A(f"v_mov_b32 v{t}, v{x}")
    A("s_nop 1")
    A(f"v_permlane32_swap_b32 v{t}, v{x}")
    A("s_nop 1")
    A(f"v_add_f32 v{x}, v{x}, v{t}")

def round_bf16(A, x):
    A(f"v_cvt_pk_bf16_f32 v{x}, v{x}, v{x}")
    A(f"v_and_b32 v{x}, 0xffff0000, v{x}")

def ln_scalars(A, mu, var, t):
    round_bf16(A, mu)
    A(f"v_max_f32 v{var}, 0, v{var}")
    round_bf16(A, var)
    A(f"v_add_f32 v{var}, 0x3727c5ac, v{var}")
    round_bf16(A, var)
    A(f"v_sqrt_f32 v{var}, v{var}")
    A("s_nop 0")
    round_bf16(A, var)
    A(f"v_rcp_f32 v{var}, v{var}")
    A("s_nop 0")

class Stamps:
    enabled = False
    def __init__(self, A, slot):
        self.A = A; self.n = 0; self.slot = slot; self.names = []
    def __call__(self, name=""):
        if not Stamps.enabled: return
        assert self.n < 19
        self.A(f"s_memtime s[{60+2*self.n}:{61+2*self.n}]")
        self.names.append(name)
        self.n += 1
    def dump(self, srd, wave_sgpr, waves_per_wg, vtmp):
        if not Stamps.enabled: return
        A = self.A
        A("s_memrealtime s[98:99]")
        A("s_waitcnt lgkmcnt(0) vmcnt(0)")
        A(f"s_mul_i32 s58, s2, {waves_per_wg}")
        A(f"s_add_u32 s58, s58, s{wave_sgpr}")
        A("s_lshl_b32 s58, s58, 7")
        A(f"s_add_u32 s58, s58, {(64<<20) + self.slot*(1<<20)}")
        A(f"s_mov_b32 s{srd+2}, {128<<20}")
        A(f"v_mov_b32 v{vtmp}, 0")
        for i in range(self.n):
            A(f"v_mov_b32 v{vtmp+1}, s{60+2*i}")
            A(f"buffer_store_dword v{vtmp+1}, v{vtmp}, s[{srd}:{srd+3}], s58 offen offset:{4*i}")
        A(f"v_mov_b32 v{vtmp+1}, s98")
        A(f"buffer_store_dword v{vtmp+1}, v{vtmp}, s[{srd}:{srd+3}], s58 offen offset:124")

TIMELINE = False
def tl_begin(A):
    import asmlib
    if asmlib.TIMELINE: A("s_memrealtime s[100:101]")
def tl_end(A, slot, srd_, vtmp=1):
    import asmlib
    if not asmlib.TIMELINE: return
    A("s_waitcnt vmcnt(0) lgkmcnt(0)")
    A("s_memrealtime s[98:99]")
    A("s_lshl_b32 s58, s2, 4")
    A("s_add_u32 s58, s58, s3")
    A("s_lshl_b32 s58, s58, 3")
    A(f"s_add_u32 s58, s58, {(96<<20) + slot*65536}")
    A(f"s_mov_b32 s{srd_+2}, {128<<20}")
    A("s_waitcnt lgkmcnt(0)")
    A(f"v_mov_b32 v{vtmp}, 0")
    A(f"v_mov_b32 v{vtmp+1}, s100")
    A(f"v_mov_b32 v{vtmp+2}, s98")
    A(f"buffer_store_dwordx2 v[{vtmp+1}:{vtmp+2}], v{vtmp}, s[{srd_}:{srd_+3}], s58 offen")

MARK_OFF = False
def tl_mark(A, i, force=False):
    import asmlib
    if asmlib.MARK_OFF and not force: return
    if asmlib.TIMELINE: A(f"s_memrealtime s[{80+2*i}:{81+2*i}]")
def tl_marks_out(A, slot0, n, srd_, vtmp=1):
    import asmlib
    if not asmlib.TIMELINE: return
    for i in range(n):
        A(f"s_add_u32 s58, s58, 65536")
        A(f"v_mov_b32 v{vtmp+2}, s{80+2*i}")
        A(f"buffer_store_dwordx2 v[{vtmp+1}:{vtmp+2}], v{vtmp}, s[{srd_}:{srd_+3}], s58 offen")
        A("s_nop 1")
```

```python
from asmlib import *
import struct, os
def f2u(x):
    return struct.unpack("<I", struct.pack("<f", x))[0]
LOG2E = 1.4426950408889634
PRIO = False
def prio(A, p):
    if p == 0: p = int(os.environ.get("BLOW", "0"))
    if PRIO: A(f"s_setprio {p}")

GU_SLOT = 28928
GU_NS = 3
GU_LDS = GU_SLOT * GU_NS
GU_UPOFF = 14336 + 128

def gu_body(A, L, barrier, st_flags="", lds0=0, x_flags="", wait_x=None, wait_slot2=None, prologue=None):
    vm = Cnt(A, "vmcnt", 63); lg = Cnt(A, "lgkmcnt", 15)
    if hasattr(barrier, "lg"): barrier.lg = lg
    ACC = 56; WF = 28; XR = 12
    DO = [2, 3, 4, 5, 6, 8, 9]
    A("s_and_b32 s24, s2, 1")
    A("s_lshl_b32 s24, s24, 3")
    A("s_bfe_u32 s25, s2, 0x30003")
    A("s_add_u32 s24, s24, s25")
    A("s_bfe_u32 s25, s2, 0x20001")
    A("s_lshl_b32 s25, s25, 2")
    A("s_lshr_b32 s26, s2, 6")
    A("s_add_u32 s25, s25, s26")
    A("s_cmp_lt_u32 s3, 2")
    A("s_cselect_b32 s8, s4, s6")
    A("s_cselect_b32 s9, s5, s7")
    A(f"s_mov_b32 s10, {512*3584}")
    A("s_mov_b32 s11, 0x00020000")
    A("s_and_b32 s26, s3, 1")
    A("s_mul_i32 s27, s26, 448")
    A("s_mul_i32 s28, s25, 224")
    A("s_mov_b32 s29, 18725")
    for i in range(7):
        A(f"v_add_u32 v12, {i*64}, v0")
        A("v_add_u32 v12, s27, v12")
        A("v_mul_u32_u24 v13, s29, v12")
        A("v_lshrrev_b32 v13, 18, v13")
        A("v_mul_u32_u24 v14, 14, v13")
        A("v_sub_u32 v14, v12, v14")
        A("v_mul_u32_u24 v13, 3584, v13")
        A("v_lshl_add_u32 v13, v14, 4, v13")
        A(f"v_add_u32 v{DO[i]}, s28, v13")
    A("s_mul_i32 s27, s26, 7168")
    A("s_lshr_b32 s26, s3, 1")
    A(f"s_mul_i32 s26, s26, {GU_UPOFF}")
    A("s_add_u32 s27, s27, s26")
    if lds0: A(f"s_add_u32 s27, s27, {lds0}")
    A("s_lshl_b32 s30, s25, 1")
    A("s_add_u32 s30, s30, s24")
    A("s_and_b32 s30, s30, 7")
    A("s_mov_b32 s31, s30")
    A("s_lshl_b32 s32, s24, 2")
    A("s_add_u32 s32, s32, s3")
    A("s_lshl_b32 s33, s32, 15")
    A(f"s_add_u32 s33, s33, {WS_XF}")
    A("v_lshlrev_b32 v7, 4, v0")
    A("v_lshrrev_b32 v12, 5, v0")
    A("v_bfe_u32 v13, v0, 2, 2")
    A("v_lshl_add_u32 v12, v12, 3, v13")
    A("v_mul_u32_u24 v12, 224, v12")
    A("v_bfe_u32 v13, v0, 4, 1")
    A(f"v_mul_u32_u24 v13, {GU_UPOFF}, v13")
    A("v_add_u32 v12, v12, v13")
    A("v_and_b32 v13, 3, v0")
    A("v_lshl_add_u32 v10, v13, 3, v12")
    if lds0: A(f"v_add_u32 v10, {lds0}, v10")
    A(f"v_add_u32 v11, {2*GU_SLOT}, v10")
    def dma1(st, i):
        if i == 0:
            A(f"s_mul_i32 s34, s30, {64*3584}")
            A("s_add_u32 s30, s30, 1")
            A("s_and_b32 s30, s30, 7")
        A(f"s_add_u32 m0, s27, {(st%GU_NS)*GU_SLOT + i*1024}")
        A("s_nop 0")
        A(f"buffer_load_dwordx4 v{DO[i]}, s[8:11], s34 offen lds"); vm.issue(("d", st))
    def dma(st):
        for i in range(7): dma1(st, i)
    def xload(j):
        if j >= 32 or (os.environ.get("NOX") and j >= 4): return
        if j % 4 == 0:
            A("s_lshl_b32 s35, s31, 12")
            A("s_add_u32 s35, s35, s33")
            A("s_add_u32 s31, s31, 1")
            A("s_and_b32 s31, s31, 7")
        A(f"buffer_load_dwordx4 {v(XR+4*(j%4),4)}, v7, s[20:23], s35 offen offset:{(j%4)*1024} {x_flags}"); vm.issue(("x", j))
    def wread(j, ft):
        st, s_ = j // 4, j % 4
        for p in range(2):
            sl = st % GU_NS
            A(f"ds_read_b64_tr_b16 {v(WF+4*ft+2*p,2)}, v{11 if sl == 2 else 10} offset:{(GU_SLOT if sl == 1 else 0) + (16*s_+4*p)*224 + ft*32}"); lg.issue(("w", j, ft))
    if prologue:
        prologue(A, dma, vm)
        for j in range(4): xload(j)
        if os.environ.get("TOUCH"):
            A("v_lshlrev_b32 v1, 3, v7")
            for i in range(4):
                A(f"s_add_u32 s36, s33, {i*8192}")
                A(f"buffer_load_dword v{WF+i}, v1, s[20:23], s36 offen {x_flags}"); vm.issue("touch")
        dma(1)
        vm.wait("touch")
    elif wait_x:
        dma(0); dma(1)
        wait_x(A, vm)
        for j in range(4): xload(j)
    else:
        dma(0)
        for j in range(4): xload(j)
        dma(1)
    vm.wait(("d", 0))
    if os.environ.get("GUT") == "2": tl_mark(A, 0, force=True)
    barrier(A)
    if os.environ.get("GUT") == "2": tl_mark(A, 1, force=True)
    for ft in range(7): wread(0, ft)
    pend = []
    deep = prologue is not None and not os.environ.get("NODEEP")
    prio(A, 0)
    if hasattr(barrier, "boost"): barrier.boost = True
    for j in range(32):
        st, s_ = j // 4, j % 4
        if s_ == 3 and st < 7:
            vm.wait(("d", st + 1))
            barrier(A)
            if deep:
                pend = pend + ([(st + 3, i) for i in range(7)] if st + 3 < 8 else [])
            else:
                pend = [(st + 2, i) for i in range(7)] if st + 2 < 8 else []
                if st == 0 and wait_slot2: wait_slot2(A, lg)
        if deep and j == 1:
            wait_slot2(A, lg)
            pend = [(2, i) for i in range(7)]
        vm.wait(("x", j))
        for ft in range(7):
            lg.wait(("w", j, ft))
            A(f"v_mfma_f32_32x32x16_bf16 {v(ACC+16*ft,16)}, {v(WF+4*ft,4)}, {v(XR+4*(j%4),4)}, {v(ACC+16*ft,16) if j else 0}")
            if j + 1 < 32 and not (os.environ.get("E3") and ft % 2): wread(j + 1, ft)
            SP = int(os.environ.get("SP", "4"))
            if pend and ((not deep and ft % 2 == 0) or (deep and ((7 * j + ft) % SP == 0 or (j < 4 and ft % 2 == 0)))): dma1(*pend.pop(0))
        xload(j + 4)
        if os.environ.get("GUT") == "1" and j % 4 == 3 and j // 4 < 7: tl_mark(A, j // 4, force=True)
        if os.environ.get("GUT") == "2" and j < 5: tl_mark(A, j + 2, force=True)
        if os.environ.get("GUT") == "3" and 4 <= j < 11: tl_mark(A, j - 4, force=True)
    tl_mark(A, 0)
    prio(A, 2)
    if hasattr(barrier, "boost"): barrier.boost = False
    A("s_mul_i32 s34, s32, 112")
    A("s_mul_i32 s35, s25, 7")
    A("s_add_u32 s34, s34, s35")
    A("s_lshl_b32 s34, s34, 10")
    A(f"s_add_u32 s34, s34, {WS_H}")
    A("s_add_u32 s35, s34, 4096")
    A(f"v_mov_b32 v1, {hex(f2u(-LOG2E))}")
    for ft in range(7):
        G = ACC + 16 * ft; U = G + 8
        if ft == 6: A("s_nop 3")
        for r in range(8): A(f"v_mul_f32 v{G+r}, v1, v{G+r}")
        for r in range(8): A(f"v_exp_f32 v{G+r}, v{G+r}")
        for r in range(8): A(f"v_add_f32 v{G+r}, 1.0, v{G+r}")
        for r in range(8): A(f"v_rcp_f32 v{G+r}, v{G+r}")
        for r in range(8): A(f"v_mul_f32 v{G+r}, v{G+r}, v{U+r}")
        for r in range(4): A(f"v_cvt_pk_bf16_f32 v{U+r}, v{G+2*r}, v{G+2*r+1}")
        so = "s34" if ft < 4 else "s35"
        A(f"buffer_store_dwordx4 {v(U,4)}, v7, s[20:23], {so} offen offset:{(ft%4)*1024} {st_flags}")

def gen_gu(A, name="gu_kernel"):
    kernel_begin(A, name)
    A("s_cmp_ge_u32 s2, 256")
    A(f"s_cbranch_scc1 {name}_end")
    tl_begin(A)
    A("s_load_dwordx4 s[4:7], s[0:1], 32")
    A("s_load_dwordx2 s[16:17], s[0:1], 72")
    A("v_lshrrev_b32 v1, 6, v0")
    A("v_and_b32 v0, 63, v0")
    A("s_nop 0")
    A("v_readfirstlane_b32 s3, v1")
    A("s_waitcnt lgkmcnt(0)")
    srd(A, 20, 16, WS_END)
    gu_body(A, name, lambda A: A("s_barrier"))
    tl_end(A, 2, 20)
    A.label(f"{name}_end")
    A("s_endpgm")

RED_STRIDE = 272
RED_WAVE = 64 * RED_STRIDE
SK_LDS = 4 * RED_WAVE

def sk_body(A, L, barrier, nks, act_base, act_tile_stride, wbytes, mode, ld_flags="", lds0=0):
    vm = Cnt(A, "vmcnt", 63); lg = Cnt(A, "lgkmcnt", 15)
    ACC = 104; HR = 40; WF = 24
    PD = min(7, nks)
    A("s_and_b32 s24, s2, 3")
    A("s_lshl_b32 s24, s24, 3")
    A("s_bfe_u32 s25, s2, 0x30003")
    A("s_add_u32 s24, s24, s25")
    A("s_bfe_u32 s25, s2, 0x10002")
    A("s_lshl_b32 s25, s25, 2")
    A("s_lshr_b32 s26, s2, 6")
    A("s_add_u32 s25, s25, s26")
    srd(A, 8, 4, wbytes)
    A("v_lshrrev_b32 v1, 3, v0")
    A("v_and_b32 v2, 7, v0")
    A("v_bfe_u32 v3, v0, 4, 1")
    A("v_lshlrev_b32 v3, 2, v3")
    A("v_xor_b32 v2, v2, v3")
    A("v_lshlrev_b32 v1, 10, v1")
    A("v_lshl_add_u32 v8, v2, 4, v1")
    A("s_lshl_b32 s26, s25, 7")
    A("v_add_u32 v8, s26, v8")
    A("v_add_u32 v9, 8192, v8")
    A(f"s_mul_i32 s27, s3, {nks*16*1024}")
    A(f"s_mul_i32 s28, s3, 14336")
    if lds0: A(f"s_add_u32 s28, s28, {lds0}")
    A(f"s_mul_i32 s29, s24, {2*act_tile_stride}")
    A(f"s_mul_i32 s30, s3, {nks*1024}")
    A("s_add_u32 s29, s29, s30")
    A(f"s_add_u32 s29, s29, {act_base}")
    A(f"s_add_u32 s30, s29, {act_tile_stride}")
    A("v_lshlrev_b32 v7, 4, v0")
    A("v_lshrrev_b32 v1, 5, v0")
    A("v_bfe_u32 v2, v0, 2, 2")
    A("v_lshl_add_u32 v1, v1, 2, v2")
    A("v_lshlrev_b32 v1, 7, v1")
    A("v_bfe_u32 v3, v0, 4, 1")
    A("v_lshlrev_b32 v3, 1, v3")
    A("v_bfe_u32 v14, v0, 1, 1")
    A("v_add_u32 v3, v3, v14")
    A("v_bfe_u32 v14, v0, 3, 1")
    A("v_lshl_add_u32 v3, v14, 2, v3")
    A("v_lshl_add_u32 v1, v3, 4, v1")
    A("v_and_b32 v14, 1, v0")
    A("v_lshl_add_u32 v1, v14, 3, v1")
    A("v_add_u32 v10, s28, v1")
    A("v_xor_b32 v11, 64, v10")
    def dma(j):
        if j >= nks: return
        A(f"s_add_u32 s31, s27, {j*16384}")
        A(f"s_add_u32 m0, s28, {(j%7)*2048}")
        A("s_nop 0")
        A("buffer_load_dwordx4 v8, s[8:11], s31 offen lds"); vm.issue(("d", j))
        A(f"s_add_u32 m0, s28, {(j%7)*2048 + 1024}")
        A("s_nop 0")
        A("buffer_load_dwordx4 v9, s[8:11], s31 offen lds"); vm.issue(("d", j))
    def hload(j):
        if j >= nks: return
        if j % 4 == 0 and j:
            A("s_add_u32 s29, s29, 4096")
            A("s_add_u32 s30, s30, 4096")
        A(f"buffer_load_dwordx4 {v(HR+8*(j%7),4)}, v7, s[20:23], s29 offen offset:{(j%4)*1024} {ld_flags}"); vm.issue(("h", j))
        A(f"buffer_load_dwordx4 {v(HR+8*(j%7)+4,4)}, v7, s[20:23], s30 offen offset:{(j%4)*1024} {ld_flags}"); vm.issue(("h", j))
    def wread(j):
        for jn in range(2):
            for p in range(2):
                A(f"ds_read_b64_tr_b16 {v(WF+8*(j%2)+4*jn+2*p,2)}, v{10+jn} offset:{(j%7)*2048 + p*1024}"); lg.issue(("w", j, jn))
    return dict(vm=vm, lg=lg, dma=dma, hload=hload, wread=wread, ACC=ACC, HR=HR, WF=WF, PD=PD)

def sk_main(A, L, barrier, nks, ctx, mode, pre_w=True, wait_act=None, lds0=0, after_red_reads=None, gbuf=None):
    vm, lg, dma, hload, wread = ctx["vm"], ctx["lg"], ctx["dma"], ctx["hload"], ctx["wread"]
    ACC, HR, WF = ctx["ACC"], ctx["HR"], ctx["WF"]
    for j in range(6): dma(j)
    if wait_act: wait_act(A)
    for j in range(7): hload(j)
    if mode == "out":
        A("v_lshrrev_b32 v1, 3, v0")
        A("s_lshl_b32 s33, s24, 6")
        A("s_lshl_b32 s34, s3, 4")
        A("s_add_u32 s33, s33, s34")
        A("v_add_u32 v1, s33, v1")
        A("v_lshlrev_b32 v1, 10, v1")
        A("v_and_b32 v2, 7, v0")
        A("v_lshl_add_u32 v1, v2, 4, v1")
        A("s_lshl_b32 s33, s25, 7")
        A("v_add_u32 v12, s33, v1")
        A("v_add_u32 v13, 8192, v12")
        srd(A, 12, 6, 2048 * 1024)
        A(f"s_mov_b32 s33, {WS_G}")
        A("buffer_load_dwordx4 v[168:171], v12, s[12:15], 0 offen"); vm.issue("xg")
        A("buffer_load_dwordx4 v[172:175], v13, s[12:15], 0 offen"); vm.issue("xg")
        A("buffer_load_dwordx4 v[176:179], v12, s[20:23], s33 offen"); vm.issue("xg")
        A("buffer_load_dwordx4 v[180:183], v13, s[20:23], s33 offen"); vm.issue("xg")
    vm.wait(("d", 0))
    wread(0)
    prio(A, 0)
    for j in range(nks):
        if j + 1 < nks:
            vm.wait(("d", j + 1))
            wread(j + 1)
        vm.wait(("h", j))
        for jn in range(2):
            lg.wait(("w", j, jn))
            for t in range(2):
                a_ = ACC + 32 * t + 16 * jn
                A(f"v_mfma_f32_32x32x16_bf16 {v(a_,16)}, {v(WF+8*(j%2)+4*jn,4)}, {v(HR+8*(j%7)+4*t,4)}, {v(a_,16) if j else 0}")
        dma(j + 6)
        hload(j + 7)
    if mode[0] == "g": tl_mark(A, 3)
    prio(A, 2)
    barrier(A)
    A("v_and_b32 v14, 31, v0")
    A(f"v_mul_u32_u24 v14, {RED_STRIDE}, v14")
    A("v_lshrrev_b32 v2, 5, v0")
    A("v_lshl_add_u32 v14, v2, 4, v14")
    A(f"s_mul_i32 s33, s3, {RED_WAVE}")
    if lds0: A(f"s_add_u32 s33, s33, {lds0}")
    A("v_add_u32 v14, s33, v14")
    A("s_nop 4")
    for t in range(2):
        for jn in range(2):
            for g in range(4):
                A(f"ds_write_b128 v14, {v(ACC+32*t+16*jn+4*g,4)} offset:{t*32*RED_STRIDE + jn*128 + g*32}"); lg.issue("rw")
    lg.wait_all()
    barrier(A)
    A("v_lshrrev_b32 v14, 3, v0")
    A("s_lshl_b32 s33, s3, 4")
    A("v_add_u32 v14, s33, v14")
    A(f"v_mul_u32_u24 v14, {RED_STRIDE}, v14")
    A("v_and_b32 v2, 7, v0")
    A("v_lshl_add_u32 v14, v2, 5, v14")
    R0 = 40
    for ps in range(2):
        for w in range(4):
            for q in range(2):
                A(f"ds_read_b128 {v(R0+32*ps+8*w+4*q,4)}, v14 offset:{lds0 + w*RED_WAVE + ps*8*RED_STRIDE + q*16}"); lg.issue(("rr", ps))
    if mode == "glds":
        lg.wait_all()
        after_red_reads(A)
        A("v_lshrrev_b32 v1, 3, v0")
        A("s_lshl_b32 s33, s3, 4")
        A("v_add_u32 v1, s33, v1")
        A(f"v_mul_u32_u24 v1, {gbuf[1]}, v1")
        A("v_lshl_add_u32 v1, v2, 4, v1")
        A(f"v_add_u32 v12, {gbuf[0]}, v1")
        A(f"v_mov_b32 v3, {hex(f2u(-LOG2E))}")
    elif mode == "g":
        A("v_lshrrev_b32 v1, 3, v0")
        A("s_lshl_b32 s33, s24, 6")
        A("s_lshl_b32 s34, s3, 4")
        A("s_add_u32 s33, s33, s34")
        A("v_add_u32 v1, s33, v1")
        A("v_lshlrev_b32 v1, 10, v1")
        A("v_lshl_add_u32 v1, v2, 4, v1")
        A("s_lshl_b32 s33, s25, 7")
        A("v_add_u32 v12, s33, v1")
        A("v_add_u32 v13, 8192, v12")
        A(f"s_mov_b32 s33, {WS_G}")
        A(f"v_mov_b32 v3, {hex(f2u(-LOG2E))}")
    else:
        srd(A, 12, 18, 2048 * 1024)
        vm.wait("xg")
    for ps in range(2):
        B = R0 + 32 * ps
        lg.wait(("rr", ps))
        for i in range(8):
            A(f"v_add_f32 v{B+i}, v{B+i}, v{B+8+i}")
            A(f"v_add_f32 v{B+16+i}, v{B+16+i}, v{B+24+i}")
        for i in range(8):
            A(f"v_add_f32 v{B+i}, v{B+i}, v{B+16+i}")
        for i in range(4):
            A(f"v_cvt_pk_bf16_f32 v{B+8+i}, v{B+2*i}, v{B+2*i+1}")
        for i in range(4):
            A(f"v_lshlrev_b32 v{B+2*i}, 16, v{B+8+i}")
            A(f"v_and_b32 v{B+2*i+1}, 0xffff0000, v{B+8+i}")
        if mode[0] == "g":
            for i in range(8): A(f"v_mul_f32 v{B+8+i}, v3, v{B+i}")
            for i in range(8): A(f"v_exp_f32 v{B+8+i}, v{B+8+i}")
            for i in range(8): A(f"v_add_f32 v{B+8+i}, 1.0, v{B+8+i}")
            for i in range(8): A(f"v_rcp_f32 v{B+8+i}, v{B+8+i}")
            for i in range(8): A(f"v_mul_f32 v{B+i}, v{B+i}, v{B+8+i}")
            for i in range(4): A(f"v_cvt_pk_bf16_f32 v{B+16+i}, v{B+2*i}, v{B+2*i+1}")
            if mode == "glds": A(f"ds_write_b128 v12, {v(B+16,4)} offset:{ps*8*gbuf[1]}")
            else: A(f"buffer_store_dwordx4 {v(B+16,4)}, v{12+ps}, s[20:23], s33 offen")
        else:
            X = 168 + 4 * ps; G = 176 + 4 * ps
            for i in range(4):
                A(f"v_lshlrev_b32 v{B+8+2*i}, 16, v{G+i}")
                A(f"v_and_b32 v{B+8+2*i+1}, 0xffff0000, v{G+i}")
            for i in range(8): A(f"v_mul_f32 v{B+i}, v{B+i}, v{B+8+i}")
            for i in range(4): A(f"v_cvt_pk_bf16_f32 v{B+16+i}, v{B+2*i}, v{B+2*i+1}")
            for i in range(4):
                A(f"v_lshlrev_b32 v{B+2*i}, 16, v{B+16+i}")
                A(f"v_and_b32 v{B+2*i+1}, 0xffff0000, v{B+16+i}")
                A(f"v_lshlrev_b32 v{B+8+2*i}, 16, v{X+i}")
                A(f"v_and_b32 v{B+8+2*i+1}, 0xffff0000, v{X+i}")
            for i in range(8): A(f"v_add_f32 v{B+i}, v{B+i}, v{B+8+i}")
            for i in range(4): A(f"v_cvt_pk_bf16_f32 v{B+16+i}, v{B+2*i}, v{B+2*i+1}")
            A(f"buffer_store_dwordx4 {v(B+16,4)}, v{12+ps}, s[12:15], 0 offen")

def gen_down(A, name="down_kernel"):
    kernel_begin(A, name)
    A("s_cmp_ge_u32 s2, 256")
    A(f"s_cbranch_scc1 {name}_end")
    tl_begin(A)
    A("s_load_dwordx2 s[4:5], s[0:1], 48")
    A("s_load_dwordx2 s[16:17], s[0:1], 72")
    A("v_lshrrev_b32 v1, 6, v0")
    A("v_and_b32 v0, 63, v0")
    A("s_nop 0")
    A("v_readfirstlane_b32 s3, v1")
    A("s_waitcnt lgkmcnt(0)")
    srd(A, 20, 16, WS_END)
    bar = lambda A: A("s_barrier")
    ctx = sk_body(A, name, bar, 28, WS_H, 112 * 1024, 1792 * 1024, "g")
    sk_main(A, name, bar, 28, ctx, "g")
    tl_end(A, 3, 20)
    A.label(f"{name}_end")
    A("s_endpgm")

def gen_k3(A, name="k3_kernel"):
    kernel_begin(A, name)
    A("s_cmp_ge_u32 s2, 256")
    A(f"s_cbranch_scc1 {name}_end")
    tl_begin(A)
    A("s_load_dwordx2 s[4:5], s[0:1], 16")
    A("s_load_dwordx2 s[6:7], s[0:1], 0")
    A("s_load_dwordx2 s[18:19], s[0:1], 56")
    A("s_load_dwordx2 s[16:17], s[0:1], 72")
    A("v_lshrrev_b32 v1, 6, v0")
    A("v_and_b32 v0, 63, v0")
    A("s_nop 0")
    A("v_readfirstlane_b32 s3, v1")
    A("s_waitcnt lgkmcnt(0)")
    srd(A, 20, 16, WS_END)
    bar = lambda A: A("s_barrier")
    ctx = sk_body(A, name, bar, 8, WS_O, 32 * 1024, 512 * 1024, "out")
    sk_main(A, name, bar, 8, ctx, "out")
    tl_end(A, 7, 20)
    A.label(f"{name}_end")
    A("s_endpgm")
```

```python
from asmlib import *
import asmlib, ffn, os, struct
def f2u(x): return struct.unpack("<I", struct.pack("<f", x))[0]
LOG2E = 1.4426950408889634
QSCALE = 0.25 * LOG2E

NAME = "recurrent_scan__mha_block__glu_gated_glu__prompt_kernel"
BOFF = 256
WQ = BOFF + 2 * ffn.GU_SLOT
LNB = BOFF
ABASE = BOFF + 3 * ffn.GU_SLOT
NCH = 6
XCH = ABASE + NCH * 8192
GBUF = XCH + 16384
GSTR = 144
K1_SLOT = 28672; K1_NS = 5; K1_D = 4
K1B = WQ - 2 * K1_SLOT
K1T = K1B + K1_SLOT * K1_NS
LNB = K1T + 5120
K1_PRO = int(os.environ.get('K1_PRO', '2'))
F_LDS = 163840
assert WQ + 98304 <= F_LDS and GBUF + 64 * GSTR <= F_LDS
C_LN, C_XF, C_W, C_WFREE, C_G = 0, 4, 8, 12, 16
F_VGPR = 168
F_THREADS = 768
WS_FLAG = 30 << 20
WS_ST = 29 << 20
FL_X = WS_FLAG
FL_A = WS_FLAG + 32768
FL_H = WS_FLAG + 65536
FL_O = WS_FLAG + 98304
C_QKV, C_O, C_GO, C_GO2 = 20, 24, 28, 32

def flag_store(A, vz, vt, soff):
    A(f"v_mov_b32 v{vt}, s68")
    A(f"v_mov_b32 v{vt+1}, s69")
    A(f"buffer_store_dwordx2 {v(vt,2)}, v{vz}, s[20:23], {soff} offen sc1")

def publish(A, cnt_off, n, vz, vone, vt, st, soff, lbl):
    A("s_mov_b64 exec, 1")
    A(f"ds_add_rtn_u32 v{vt}, v{vz}, v{vone} offset:{cnt_off}")
    A("s_waitcnt lgkmcnt(0)")
    A(f"v_readfirstlane_b32 s{st}, v{vt}")
    A(f"s_cmp_eq_u32 s{st}, {n-1}")
    A(f"s_cbranch_scc0 {lbl}")
    flag_store(A, vz, vt, soff)
    A.label(lbl)
    A("s_mov_b64 exec, -1")

def wait_ready(A, vz, vt, st):
    _lbl[0] += 1
    L = f"Lr{_lbl[0]}"
    A.label(L)
    A(f"buffer_load_dwordx2 {v(vt,2)}, v{vz}, s[52:55], 0 offen sc1")
    A("s_waitcnt vmcnt(0)")
    A(f"v_readfirstlane_b32 s68, v{vt}")
    A(f"v_readfirstlane_b32 s69, v{vt+1}")
    A("s_cmp_eq_u32 s68, 0")
    A(f"s_cbranch_scc1 {L}")

_lbl = [0]
def arrive(A, off, vz, vone):
    A("s_mov_b64 exec, 1")
    A(f"ds_add_u32 v{vz}, v{vone} offset:{off}")
    A("s_mov_b64 exec, -1")
def wait_cnt(A, off, n, vz, vt, st, sleep=1):
    _lbl[0] += 1
    L = f"Lw{_lbl[0]}"
    A.label(L)
    A(f"ds_read_b32 v{vt}, v{vz} offset:{off}")
    A("s_waitcnt lgkmcnt(0)")
    A(f"v_readfirstlane_b32 s{st}, v{vt}")
    A(f"s_cmp_ge_u32 s{st}, {n}")
    A(f"s_cbranch_scc1 {L}x")
    if sleep: A(f"s_sleep {sleep}")
    A(f"s_branch {L}")
    A.label(L + "x")

def poll_lanes(A, srd_, voff, soff, vt, sleep=2):
    _lbl[0] += 1
    L = f"Lq{_lbl[0]}"
    A.label(L)
    A(f"buffer_load_dwordx2 {v(vt,2)}, v{voff}, s[{srd_}:{srd_+3}], {soff} offen sc1")
    A("s_waitcnt vmcnt(0)")
    A(f"v_cmp_ne_u64 vcc, s[68:69], {v(vt,2)}")
    A("s_nop 1")
    A("s_cmp_eq_u64 vcc, 0")
    A(f"s_cbranch_scc1 {L}x")
    A(f"s_sleep {sleep}")
    A(f"s_branch {L}")
    A.label(L + "x")

def rc_qkv(A):
    A("s_bfe_u32 s24, s2, 0x20001")
    A("s_lshl_b32 s24, s24, 2")
    A("s_lshr_b32 s25, s2, 6")
    A("s_add_u32 s24, s24, s25")
    A("s_and_b32 s25, s2, 1")
    A("s_lshl_b32 s25, s25, 3")
    A("s_bfe_u32 s26, s2, 0x30003")
    A("s_add_u32 s25, s25, s26")

VQ = 8; VNEG = 16; VS = [32, 48]; VP = [64, 72]; VO = 80; VK = 96; VV0 = 100; VV1 = 104

def ca_role(A, name):
    rc_qkv(A)
    A("v_lshlrev_b32 v2, 4, v0")
    A("v_mov_b32 v118, 0")
    A("v_mov_b32 v119, 1")
    A("s_lshl_b32 s30, s24, 7")
    A("s_lshl_b32 s28, s25, 3")
    A("s_add_u32 s30, s30, s28")
    A("s_add_u32 s31, s30, s3")
    A("s_lshl_b32 s31, s31, 10")
    A("s_waitcnt lgkmcnt(0)")
    srd(A, 8, 4, 2048 * 1024)
    srd(A, 20, 16, WS_END)
    srd(A, 52, 18, 256)
    A("buffer_load_dwordx4 v[164:167], v2, s[8:11], s31 offen")
    A("s_or_b32 s28, s2, s3")
    A("s_cmp_eq_u32 s28, 0")
    A(f"s_cbranch_scc0 {name}_nz")
    A("s_memrealtime s[68:69]")
    A("s_waitcnt lgkmcnt(0)")
    A("s_or_b32 s68, s68, 1")
    A("v_mov_b32 v24, s68")
    A("v_mov_b32 v25, s69")
    A("s_mov_b64 exec, 1")
    A("buffer_store_dwordx2 v[24:25], v118, s[52:55], 0 offen sc1")
    A("s_mov_b64 exec, -1")
    A.label(f"{name}_nz")
    A("s_barrier")
    A("s_mul_i32 s28, s3, 1040")
    A(f"s_add_u32 s28, s28, {LNB}")
    A("v_add_u32 v140, s28, v2")
    A("v_and_b32 v141, 7, v0")
    A("v_mul_u32_u24 v142, 1040, v141")
    A("v_lshrrev_b32 v143, 3, v0")
    A("s_lshl_b32 s28, s3, 3")
    A("v_add_u32 v143, s28, v143")
    A("v_lshl_add_u32 v142, v143, 4, v142")
    A(f"v_add_u32 v142, {LNB}, v142")
    A("v_lshlrev_b32 v143, 9, v143")
    A("v_lshl_add_u32 v143, v141, 4, v143")
    A("s_lshr_b32 s28, s30, 5")
    A("s_lshl_b32 s28, s28, 15")
    A("s_and_b32 s29, s30, 31")
    A("s_lshl_b32 s29, s29, 4")
    A("s_add_u32 s28, s28, s29")
    A(f"s_add_u32 s28, s28, {WS_XF}")
    k1_setup(A)
    A("s_or_b32 s29, s2, s3")
    A("s_cmp_eq_u32 s29, 0")
    A(f"s_cbranch_scc1 {name}_w0")
    A("s_waitcnt vmcnt(0)")
    A.label(f"{name}_w0")
    A("s_waitcnt vmcnt(1)")
    T = 144
    for i in range(4):
        A(f"v_lshlrev_b32 v{T+2*i}, 16, v{164+i}")
        A(f"v_and_b32 v{T+2*i+1}, 0xffff0000, v{164+i}")
    A(f"v_add_f32 v160, v{T}, v{T+1}")
    A(f"v_mul_f32 v161, v{T}, v{T}")
    A(f"v_fmac_f32 v161, v{T+1}, v{T+1}")
    for i in range(2, 8):
        A(f"v_add_f32 v160, v160, v{T+i}")
        A(f"v_fmac_f32 v161, v{T+i}, v{T+i}")
    A("s_nop 0")
    for m in ("quad_perm:[1,0,3,2]", "quad_perm:[2,3,0,1]", "row_half_mirror", "row_mirror"):
        A(f"v_add_f32_dpp v160, v160, v160 {m} row_mask:0xf bank_mask:0xf")
        A(f"v_add_f32_dpp v161, v161, v161 {m} row_mask:0xf bank_mask:0xf")
        A("s_nop 0")
    for op in ("v_permlane16_swap_b32", "v_permlane32_swap_b32"):
        A("v_mov_b32 v162, v160")
        A("v_mov_b32 v163, v161")
        A("s_nop 0")
        A(f"{op} v162, v160")
        A(f"{op} v163, v161")
        A("s_nop 0")
        A("v_add_f32 v160, v160, v162")
        A("v_add_f32 v161, v161, v163")
    A(f"v_mul_f32 v160, {hex(f2u(1/512))}, v160")
    A(f"v_mul_f32 v161, {hex(f2u(1/512))}, v161")
    A("v_fma_f32 v161, -v160, v160, v161")
    ln_scalars(A, 160, 161, 162)
    A("s_lshr_b32 s29, s31, 7")
    A(f"s_add_u32 s29, s29, {WS_ST}")
    A("s_mov_b64 exec, 1")
    A("buffer_store_dwordx2 v[160:161], v118, s[20:23], s29 offen sc1")
    A("s_mov_b64 exec, -1")
    for i in range(8): A(f"v_sub_f32 v{T+i}, v{T+i}, v160")
    for i in range(4): A(f"v_cvt_pk_bf16_f32 v{164+i}, v{T+2*i}, v{T+2*i+1}")
    for i in range(4):
        A(f"v_lshlrev_b32 v{T+2*i}, 16, v{164+i}")
        A(f"v_and_b32 v{T+2*i+1}, 0xffff0000, v{164+i}")
    for i in range(8): A(f"v_mul_f32 v{T+i}, v{T+i}, v161")
    for i in range(4): A(f"v_cvt_pk_bf16_f32 v{164+i}, v{T+2*i}, v{T+2*i+1}")
    A("ds_write_b128 v140, v[164:167]")
    A("s_waitcnt lgkmcnt(0)")
    arrive(A, C_LN, 118, 119)
    wait_cnt(A, C_LN, 8, 118, 139, 29, sleep=0)
    A("ds_read_b128 v[164:167], v142")
    A("s_waitcnt lgkmcnt(0)")
    A("buffer_store_dwordx4 v[164:167], v143, s[20:23], s28 offen sc1")
    tl_mark(A, 0)
    A("buffer_load_dwordx2 v[116:117], v118, s[52:55], 0 offen sc1")
    A("s_cmp_lt_u32 s3, 4")
    A(f"s_cbranch_scc0 {name}_kv")
    k1_compute(A, name, 0)
    A(f"s_branch {name}_attn1")
    A.label(f"{name}_kv")
    k1_compute(A, name, 1)
    A.label(f"{name}_attn1")
    A("s_lshl_b32 s28, s25, 4")
    A("s_add_u32 s28, s28, s24")
    A("s_lshl_b32 s28, s28, 7")
    A(f"s_add_u32 s28, s28, {FL_A}")
    A("v_mov_b32 v118, 0")
    A("v_mov_b32 v119, 1")
    wait_ready(A, 118, 6, 29)
    A("s_cmp_eq_u32 s57, 0")
    A(f"s_cbranch_scc1 {name}_xdone")
    A("s_mov_b64 exec, 1")
    flag_store(A, 118, 6, "s59")
    A("s_mov_b64 exec, -1")
    A.label(f"{name}_xdone")
    publish(A, C_QKV, 8, 118, 119, 6, 29, "s28", f"{name}_pa")
    A("s_setprio 0")
    tl_mark(A, 2)
    A("v_and_b32 v116, 15, v0")
    A("v_lshlrev_b32 v116, 7, v116")
    A.label(f"{name}_attn2")
    attn(A, name)


AC0, AC1 = 32, 48
XF = 64; WFK = 80; VSEL = 112; VCS = 120; VS1, VS2 = 124, 126

def xpub(A, L):
    A("s_mov_b64 exec, 1")
    A("s_waitcnt vmcnt(0)")
    A("v_readfirstlane_b32 s29, v116")
    A("s_cmp_eq_u32 s29, 0")
    A(f"s_cbranch_scc1 {L}_c")
    A("buffer_store_dwordx2 v[116:117], v118, s[20:23], s59 offen sc1")
    A("s_mov_b32 s57, 0")
    A(f"s_branch {L}_d")
    A.label(f"{L}_c")
    A("buffer_load_dwordx2 v[116:117], v118, s[52:55], 0 offen sc1")
    A.label(f"{L}_d")
    A("s_mov_b64 exec, -1")

def k1_setup(A):
    A("s_cmp_eq_u32 s3, 7")
    A("s_cselect_b32 s57, 5, 0")
    A("s_lshl_b32 s59, s24, 4")
    A("s_add_u32 s59, s59, s25")
    A("s_lshl_b32 s59, s59, 7")
    A(f"s_add_u32 s59, s59, {FL_X}")
    A("s_lshl_b32 s60, s24, 11")
    A(f"s_add_u32 s60, s60, {FL_X}")
    A("v_and_b32 v138, 15, v0")
    A("v_lshlrev_b32 v138, 7, v138")
    A("s_lshl_b32 s61, s24, 10")
    A("s_and_b32 s62, s3, 3")
    A("s_lshl_b32 s62, s62, 8")
    A("s_add_u32 s61, s61, s62")
    A(f"s_add_u32 s61, s61, {WS_ST}")
    A("v_and_b32 v23, 31, v0")
    A("v_lshlrev_b32 v23, 3, v23")
    A("s_mov_b32 s62, 0")
    A("s_and_b32 s26, s3, 3")
    A("v_and_b32 v4, 31, v0")
    A("v_lshrrev_b32 v5, 5, v0")
    A("v_bfe_u32 v6, v0, 1, 3")
    A("v_xor_b32 v6, v5, v6")
    A("s_lshl_b32 s34, s26, 12")
    A(f"s_add_u32 s34, s34, {K1B}")
    A("v_lshlrev_b32 v4, 7, v4")
    A("v_add_u32 v4, s34, v4")
    for s_ in range(4):
        A(f"v_xor_b32 v7, {2*s_}, v6")
        A(f"v_lshl_add_u32 v{11+s_}, v7, 4, v4")
    A("v_bfe_u32 v6, v0, 2, 2")
    A("v_lshl_add_u32 v6, v5, 3, v6")
    A("v_lshlrev_b32 v6, 6, v6")
    A("v_bfe_u32 v7, v0, 4, 1")
    A("v_lshl_add_u32 v6, v7, 5, v6")
    A("v_and_b32 v7, 3, v0")
    A("v_lshl_add_u32 v6, v7, 3, v6")
    A(f"v_add_u32 v15, {K1B + 16384}, v6")
    for r in range(32): A(f"v_mov_b32 v{AC0+r}, 0")
    for r in range(VCS, 128): A(f"v_mov_b32 v{r}, 0")
    A("v_and_b32 v6, 15, v0")
    A("v_bfe_u32 v7, v0, 4, 1")
    A("v_cmp_eq_u32 vcc, v6, v7")
    A("v_mov_b32 v6, 0x3f803f80")
    A("s_nop 0")
    A(f"v_cndmask_b32 v{VSEL}, 0, v6, vcc")
    for r in range(1, 4): A(f"v_mov_b32 v{VSEL+r}, v{VSEL}")
    A(f"s_mov_b32 s36, {2*K1_SLOT}")
    A("s_mov_b32 s39, 8")

def k1_compute(A, name, role):
    L = f"{name}_c{role}"
    lg = Cnt(A, "lgkmcnt", 15)
    WF = WFK
    nt = 2 if role == 0 else 1
    t0 = 0 if role == 0 else 2
    TM = 128
    A("s_setprio 3" if role == 1 else "s_setprio 2")
    def addrs():
        for i in range(5): A(f"v_add_u32 v{16+i}, s36, v{11+i}")
        A(f"s_add_u32 s36, s36, {K1_SLOT}")
        A(f"s_cmp_eq_u32 s36, {K1_SLOT*K1_NS}")
        A("s_cselect_b32 s36, 0, s36")
    def reads(s_):
        A(f"ds_read_b128 {v(XF+4*s_,4)}, v{16+s_}"); lg.issue(("x", s_))
        for T_ in range(nt):
            for p in range(2):
                A(f"ds_read_b64_tr_b16 {v(WF+8*s_+4*T_+2*p,2)}, v20 offset:{(t0+T_)*4096 + (16*s_+4*p)*64}")
                lg.issue(("w", s_, T_))
    def stats(s_, lo, hi):
        return
        for i in range(lo, hi):
            A(f"v_lshlrev_b32 v{TM+2*i}, 16, v{XF+4*s_+i}")
            A(f"v_and_b32 v{TM+2*i+1}, 0xffff0000, v{XF+4*s_+i}")
        for i in range(2 * lo, 2 * hi):
            A(f"v_add_f32 v{VS1+i%2}, v{VS1+i%2}, v{TM+i}")
            A(f"v_fmac_f32 v{VS2+i%2}, v{TM+i}, v{TM+i}")
    def step(s_):
        X = v(XF + 4 * s_, 4)
        if role == 0:
            lg.wait(("w", s_, 0))
            A(f"v_mfma_f32_32x32x16_bf16 {v(AC0,16)}, {v(WF+8*s_,4)}, {X}, {v(AC0,16)}")
            stats(s_, 0, 1)
            lg.wait(("w", s_, 1))
            A(f"v_mfma_f32_32x32x16_bf16 {v(AC1,16)}, {v(WF+8*s_+4,4)}, {X}, {v(AC1,16)}")
            stats(s_, 1, 2)
        else:
            lg.wait(("w", s_, 0))
            A(f"v_mfma_f32_32x32x16_bf16 {v(AC0,16)}, {X}, {v(WF+8*s_,4)}, {v(AC0,16)}")
            stats(s_, 2, 4)
    def colsum(half):
        cands = [(0, 0), (1, 4)] if role == 0 else [(2, 0)]
        for tbv, off in cands:
            A(f"s_cmp_eq_u32 s26, {tbv}")
            A(f"s_cbranch_scc0 {L}_nocs{half}_{tbv}")
            for s_ in (2 * half, 2 * half + 1):
                A(f"v_mfma_f32_16x16x32_bf16 {v(VCS,4)}, {v(VSEL,4)}, {v(WF+8*s_+off,4)}, {v(VCS,4)}")
            A.label(f"{L}_nocs{half}_{tbv}")
    addrs()
    A("s_barrier")
    reads(0); reads(1); reads(2); reads(3)
    top_state = list(lg.seq)
    A.label(f"{L}_loop")
    step(0); step(1)
    colsum(0)
    A("s_sub_u32 s39, s39, 1")
    A("s_cmp_eq_u32 s39, 0")
    A(f"s_cbranch_scc1 {L}_last")
    addrs()
    A("s_cmp_eq_u32 s39, 6")
    A(f"s_cbranch_scc0 {L}_noxf")
    A("s_waitcnt vmcnt(0)")
    A.label(f"{L}_noxf")
    A("s_cmp_eq_u32 s39, 2")
    A(f"s_cbranch_scc0 {L}_ns1")
    A("buffer_load_dwordx2 v[128:129], v118, s[52:55], 0 offen sc1")
    A("buffer_load_dwordx2 v[130:131], v138, s[20:23], s60 offen sc1")
    A.label(f"{L}_ns1")
    A("s_cmp_eq_u32 s39, 1")
    A(f"s_cbranch_scc0 {L}_ns2")
    A("s_waitcnt vmcnt(0)")
    A("v_readfirstlane_b32 s29, v128")
    A("v_cmp_ne_u64 vcc, v[128:129], v[130:131]")
    A("s_cmp_eq_u32 s29, 0")
    A(f"s_cbranch_scc1 {L}_ns2")
    A("s_cmp_eq_u64 vcc, 0")
    A(f"s_cbranch_scc0 {L}_ns2")
    A(f"buffer_load_dwordx2 {v(VS1,2)}, v23, s[20:23], s61 offen sc1")
    A("s_mov_b32 s62, 1")
    A.label(f"{L}_ns2")
    if role == 1:
        A("s_cmp_gt_u32 s39, s57")
        A(f"s_cbranch_scc1 {L}_nopub")
        xpub(A, f"{L}_xp")
        A.label(f"{L}_nopub")
    lg.wait_all()
    A("s_barrier")
    reads(0); reads(1)
    step(2); step(3)
    colsum(1)
    reads(2); reads(3)
    assert lg.seq == top_state, (lg.seq, top_state)
    A(f"s_branch {L}_loop")
    A.label(f"{L}_last")
    lg.wait_all()
    L = L + "x"
    step(2); step(3)
    colsum(1)
    tl_mark(A, 1)
    TB = K1T
    A("v_lshlrev_b32 v4, 2, v0")
    A("v_cmp_gt_u32 vcc, 16, v0")
    if role == 0:
        A("s_lshl_b32 s34, s26, 7")
        A("s_cmp_lt_u32 s26, 2")
    else:
        A("s_mov_b32 s34, 256")
        A("s_cmp_eq_u32 s26, 2")
    A("s_cselect_b32 s34, s34, 512")
    A("v_mov_b32 v5, 512")
    A("v_mov_b32 v6, s34")
    A("v_cndmask_b32 v5, v5, v6, vcc")
    A("v_add_u32 v5, v5, v4")
    A(f"v_add_u32 v5, {TB}, v5")
    A("s_nop 1")
    A(f"ds_write_b32 v5, v{VCS}")
    A(f"ds_write_b32 v5, v{VCS+1} offset:64")
    A("v_and_b32 v6, 31, v0")
    A("s_lshl_b32 s34, s26, 8")
    A(f"s_add_u32 s34, s34, {TB + 1024}")
    A("v_lshl_add_u32 v7, v6, 3, s34")
    A("v_lshlrev_b32 v6, 2, v6")
    A("v_lshrrev_b32 v8, 5, v0")
    A("v_lshlrev_b32 v8, 4, v8")
    A("s_lshl_b32 s37, s25, 7")
    A("s_lshl_b32 s35, s24, 2")
    A("s_add_u32 s37, s37, s35")
    A("s_add_u32 s37, s37, s26")
    A("s_waitcnt lgkmcnt(0)")
    arrive(A, C_WFREE, 118, 119)
    wait_cnt(A, C_WFREE, 8, 118, 9, 29, sleep=0)
    lg.seq = []
    if role == 0:
        A(f"v_add_u32 v8, {TB}, v8")
        for T_ in range(2):
            for g in range(4):
                A(f"ds_read_b128 {v(WF+16*T_+4*g,4)}, v8 offset:{T_*128 + g*32}"); lg.issue(("c", T_))
    else:
        A(f"v_add_u32 v9, {TB}, v6")
        A("ds_read_b32 v4, v9 offset:256"); lg.issue("c")
    A("s_cmp_eq_u32 s62, 1")
    A(f"s_cbranch_scc1 {L}_sok")
    if role == 1:
        A("s_cmp_eq_u32 s57, 0")
        A(f"s_cbranch_scc1 {L}_np")
        wait_ready(A, 118, 128, 29)
        A("s_mov_b64 exec, 1")
        flag_store(A, 118, 128, "s59")
        A("s_mov_b64 exec, -1")
        A("s_mov_b32 s57, 0")
        A.label(f"{L}_np")
    wait_ready(A, 118, 128, 29)
    poll_lanes(A, 20, 138, "s60", 128, sleep=1)
    A(f"buffer_load_dwordx2 {v(VS1,2)}, v23, s[20:23], s61 offen sc1")
    A.label(f"{L}_sok")
    A("s_waitcnt vmcnt(0)")
    M, RS = VS1, VS1 + 1
    if role == 0:
        A("s_lshl_b32 s35, s37, 11")
        A(f"s_add_u32 s36, s35, {WS_KV + 131072}")
        A(f"s_add_u32 s35, s35, {WS_KV}")
        A(f"v_mul_f32 v6, {hex(f2u(QSCALE))}, v{RS}")
        lg.wait(("c", 1))
        for r in range(16):
            A(f"v_fma_f32 v{AC1+r}, -v{M}, v{WF+16+r}, v{AC1+r}")
            A(f"v_mul_f32 v{AC1+r}, v{AC1+r}, v{RS}")
        for i in range(8): A(f"v_cvt_pk_bf16_f32 v{XF+8+i}, v{AC1+2*i}, v{AC1+2*i+1}")
        A(f"buffer_store_dwordx4 {v(XF+8,4)}, v2, s[20:23], s35 offen sc1")
        A(f"buffer_store_dwordx4 {v(XF+12,4)}, v2, s[20:23], s36 offen sc1")
        A("s_lshl_b32 s35, s37, 10")
        A(f"s_add_u32 s36, s35, {WS_Q + 65536}")
        for r in range(16):
            A(f"v_fma_f32 v{AC0+r}, -v{M}, v{WF+r}, v{AC0+r}")
            A(f"v_mul_f32 v{AC0+r}, v{AC0+r}, v6")
        for i in range(8): A(f"v_cvt_pk_bf16_f32 v{XF+i}, v{AC0+2*i}, v{AC0+2*i+1}")
        A(f"buffer_store_dwordx4 {v(XF,4)}, v2, s[20:23], s35 offen sc1")
        A(f"buffer_store_dwordx4 {v(XF+4,4)}, v2, s[20:23], s36 offen sc1")
    else:
        A("s_lshl_b32 s34, s3, 8")
        A(f"s_add_u32 s34, s34, {TB + 3072}")
        A("v_add_u32 v6, s34, v6")
        A("v_add_u32 v8, s34, v8")
        A(f"ds_write_b32 v6, v{M}"); lg.issue("w")
        A(f"ds_write_b32 v6, v{RS} offset:128"); lg.issue("w")
        for g in range(4):
            A(f"ds_read_b128 {v(WF+4*g,4)}, v8 offset:{g*32}"); lg.issue("m2")
        for g in range(4):
            A(f"ds_read_b128 {v(WF+16+4*g,4)}, v8 offset:{128 + g*32}"); lg.issue("rs")
        A("v_bfe_u32 v7, v0, 4, 1")
        A("v_lshlrev_b32 v7, 17, v7")
        A("v_lshrrev_b32 v5, 5, v0")
        A("v_lshl_add_u32 v7, v5, 8, v7")
        A("v_and_b32 v5, 15, v0")
        A("v_lshl_add_u32 v7, v5, 4, v7")
        A("s_lshl_b32 s35, s37, 11")
        A(f"s_add_u32 s35, s35, {WS_KV}")
        lg.wait("rs")
        for r in range(16):
            A(f"v_fma_f32 v{AC0+r}, -v{WF+r}, v4, v{AC0+r}")
            A(f"v_mul_f32 v{AC0+r}, v{AC0+r}, v{WF+16+r}")
        for i in range(8): A(f"v_cvt_pk_bf16_f32 v{XF+i}, v{AC0+2*i}, v{AC0+2*i+1}")
        A(f"buffer_store_dwordx4 {v(XF,4)}, v7, s[20:23], s35 offen offset:1024 sc1")
        A(f"buffer_store_dwordx4 {v(XF+4,4)}, v7, s[20:23], s35 offen offset:1536 sc1")

def attn(A, name):
    A("s_and_b32 s16, s2, 7")
    A("s_lshr_b32 s17, s2, 3")
    A("s_and_b32 s18, s17, 3")
    A("s_lshl_b32 s16, s16, 2")
    A("s_add_u32 s16, s16, s18")
    A("s_lshr_b32 s17, s17, 2")
    A("s_lshl_b32 s17, s17, 3")
    A("s_add_u32 s17, s17, s3")
    A("s_lshl_b32 s19, s16, 6")
    A("s_add_u32 s19, s19, s17")
    A("s_lshl_b32 s19, s19, 10")
    A("s_lshl_b32 s26, s16, 17")
    A(f"s_add_u32 s26, s26, {WS_KV}")
    A("s_lshl_b32 s27, s3, 10")
    A("s_add_u32 s28, s26, s27")
    A(f"s_add_u32 s27, s27, {ABASE}")
    A("v_lshrrev_b32 v3, 5, v0")
    A("v_lshlrev_b32 v3, 8, v3")
    A("v_and_b32 v4, 15, v0")
    A("v_lshlrev_b32 v4, 4, v4")
    A("v_add_u32 v3, v3, v4")
    A(f"v_add_u32 v108, {ABASE}, v2")
    A(f"v_add_u32 v109, {ABASE + 1024}, v3")
    A("s_lshl_b32 s29, s3, 2")
    A("s_add_u32 s29, s29, 128")
    A("v_mov_b32 v114, s29")
    A("v_mov_b32 v115, 1")
    A("v_and_b32 v117, 7, v0")
    A("v_lshlrev_b32 v117, 2, v117")
    A("s_mov_b32 s24, 0x0000ffff")
    A("s_mov_b32 s25, 0x0000ffff")
    A("v_and_b32 v4, 27, v0")
    A("v_cmp_eq_u32 vcc, 16, v4")
    A("v_mov_b32 v5, 0x3f803f80")
    A("s_nop 0")
    A("v_cndmask_b32 v5, 0, v5, vcc")
    for r in range(8): A(f"v_mov_b32 {v(VV0+r)}, v5")
    for r in range(16): A(f"v_mov_b32 {v(VO+r)}, 0")
    for r in range(4, 8): A(f"v_mov_b32 {v(VP[1]+r)}, 0")
    A("s_lshr_b32 s29, s16, 1")
    A("s_lshl_b32 s29, s29, 11")
    A(f"s_add_u32 s29, s29, {FL_A}")
    A("s_cmp_eq_u32 s3, 0")
    A(f"s_cbranch_scc0 {name}_gw")
    poll_lanes(A, 20, 116, "s29", 6, sleep=int(os.environ.get("PSL", "3")))
    arrive(A, C_GO, 118, 119)
    A(f"s_branch {name}_go")
    A.label(f"{name}_gw")
    wait_cnt(A, C_GO, 1, 118, 6, 30, sleep=2)
    A.label(f"{name}_go")
    tl_mark(A, 3)
    A(f"buffer_load_dwordx4 {v(VQ,4)}, v2, s[20:23], s19 offen sc1")
    A(f"buffer_load_dwordx4 {v(VK,4)}, v2, s[20:23], s26 offen sc1")
    def dma(off):
        A(f"s_add_u32 m0, s27, {off}")
        A("s_nop 0")
        A("buffer_load_dwordx4 v2, s[20:23], s28 offen sc1 lds")
        A("s_add_u32 s28, s28, 8192")
    for c in range(4): dma(c * 8192)
    A("s_waitcnt vmcnt(4)")
    A(f"v_mfma_f32_32x32x16_bf16 {v(VS[0],16)}, {v(VK,4)}, {v(VQ,4)}, 0")
    A("s_waitcnt vmcnt(2)")
    A("s_mov_b64 exec, 1")
    A("ds_write_b32 v114, v115")
    A("s_mov_b64 exec, -1")
    A("s_nop 7")
    A(f"v_max3_f32 v6, {v(VS[0])}, {v(VS[0]+1)}, {v(VS[0]+2)}")
    for r in range(3, 15, 2):
        A(f"v_max3_f32 v6, v6, {v(VS[0]+r)}, {v(VS[0]+r+1)}")
    A(f"v_max_f32 v6, v6, {v(VS[0]+15)}")
    def negm_fill():
        A("v_mov_b32 v4, v6")
        A("s_nop 1")
        A("v_permlane32_swap_b32 v4, v6")
        A("s_nop 1")
        A("v_max_f32 v6, v4, v6")
        A("v_sub_f32 v6, 0, v6")
        for r in range(16): A(f"v_mov_b32 {v(VNEG+r)}, v6")
    negm_fill()
    A(f"v_mov_b32 {v(VS[1]+14)}, 0")
    A(f"v_mov_b32 {v(VS[1]+15)}, 0")
    A(f"v_mfma_f32_32x32x16_bf16 {v(VS[0],16)}, {v(VK,4)}, {v(VQ,4)}, {v(VNEG,16)}")
    A.label(f"{name}_aw0")
    A("ds_read_b32 v116, v117 offset:128")
    A("s_waitcnt lgkmcnt(0)")
    A("v_cmp_eq_u32 vcc, 0, v116")
    A("s_nop 1")
    A("s_cmp_eq_u64 vcc, 0")
    A(f"s_cbranch_scc0 {name}_aw0")
    A("v_mov_b32 v115, 2")
    A(f"ds_read_b128 {v(VK,4)}, v108 offset:2048")
    A("s_mov_b64 exec, s[24:25]")
    A(f"ds_read_b128 {v(VV0,4)}, v109")
    A("s_mov_b64 exec, -1")
    A("s_mov_b32 s30, 0")
    A("s_mov_b32 s31, 1")
    A(f"s_mov_b32 s33, {4*8192}")
    A("s_mov_b32 s34, 16")
    A("s_xor_b32 s35, s3, 4")
    A("v_mov_b32 v110, v108")
    A("v_mov_b32 v111, v109")
    A("s_waitcnt lgkmcnt(0)")
    A.raw(".p2align 6")
    A.label(f"{name}_aloop")
    for tt in range(4):
        X = tt % 2; Y = 1 - X
        S = VS[X]; P = VP[X]; PP = VP[Y]; SY = VS[Y]
        e = lambda i: A(f"v_exp_f32 {v(S+i)}, {v(S+i)}")
        c = lambda i: A(f"v_cvt_pk_bf16_f32 {v(P+i)}, {v(S+2*i)}, {v(S+2*i+1)}")
        e(0)
        A(f"v_cvt_pk_bf16_f32 {v(PP+7)}, {v(SY+14)}, {v(SY+15)}")
        e(1)
        A(f"s_waitcnt lgkmcnt({0 if tt == 2 else 2})")
        A(f"v_mfma_f32_32x32x16_bf16 {v(SY,16)}, {v(VK,4)}, {v(VQ,4)}, {v(VNEG,16)}")
        if tt < 2:
            A(f"ds_read_b128 {v(VK,4)}, v110 offset:{(tt+2)*2048}")
        elif tt == 2:
            if asmlib.TIMELINE:
                A("s_mov_b32 m0, s34")
                A("s_nop 0")
                A("v_writelane_b32 v166, s94, m0")
                A("v_writelane_b32 v167, s96, m0")
            A("v_cmp_gt_u32 vcc, s31, v116")
            A("s_add_u32 s30, s30, 8192")
            A(f"s_cmp_eq_u32 s30, {NCH*8192}")
            A("s_cselect_b32 s30, 0, s30")
            A("v_add_u32 v112, s30, v108")
            A("v_add_u32 v113, s30, v109")
            A("s_cmp_eq_u64 vcc, 0")
            A(f"s_cbranch_scc0 {name}_aspin")
            A.label(f"{name}_aspin_ret")
            A(f"ds_read_b128 {v(VK,4)}, v112")
            A("s_add_u32 s31, s31, 1")
            A("v_readlane_b32 s29, v116, s35")
            A("s_cmp_lt_u32 s29, s31")
            A(f"s_cbranch_scc1 {name}_alow")
            A("s_setprio 1")
            A(f"s_branch {name}_aprio")
            A.label(f"{name}_alow")
            A("s_setprio 0")
            A.label(f"{name}_aprio")
            A("s_cmp_gt_u32 s34, 4")
            A(f"s_cbranch_scc0 {name}_anodma")
            dma("s33")
            A("s_add_u32 s33, s33, 8192")
            A(f"s_cmp_eq_u32 s33, {NCH*8192}")
            A("s_cselect_b32 s33, 0, s33")
            A.label(f"{name}_anodma")
        else:
            A(f"ds_read_b128 {v(VK,4)}, v112 offset:2048")
        e(2); c(0); e(3); e(4); c(1)
        A("s_waitcnt lgkmcnt(2)")
        if not os.environ.get("E2"): A(f"v_mfma_f32_32x32x16_bf16 {v(VO,16)}, {v(VV1,4)}, {v(PP+4,4)}, {v(VO,16)}")
        A("s_mov_b64 exec, s[24:25]" if not os.environ.get("E1") else "s_mov_b64 exec, 1")
        A(f"ds_read_b128 {v(VV1,4)}, v111 offset:{tt*2048+512}")
        if tt == 0:
            A("s_cmp_gt_u32 s34, 3")
            A("s_cbranch_scc1 " + f"{name}_aw1")
            A("s_waitcnt vmcnt(0)")
            A.label(f"{name}_aw1")
            A("s_waitcnt vmcnt(1)")
            A("s_mov_b64 exec, 1")
            A("ds_write_b32 v114, v115")
        A("s_mov_b64 exec, -1")
        e(5); e(6); c(2); e(7); e(8); c(3); e(9); e(10)
        A(f"s_waitcnt lgkmcnt({3 if tt == 0 else 2})")
        A(f"v_mfma_f32_32x32x16_bf16 {v(VO,16)}, {v(VV0,4)}, {v(P,4)}, {v(VO,16)}")
        A("s_mov_b64 exec, s[24:25]" if not os.environ.get("E1") else "s_mov_b64 exec, 1")
        if tt < 3: A(f"ds_read_b128 {v(VV0,4)}, v111 offset:{(tt+1)*2048}")
        else: A(f"ds_read_b128 {v(VV0,4)}, v113")
        A("s_mov_b64 exec, -1")
        if tt == 1 and asmlib.TIMELINE:
            A("s_memtime s[94:95]")
            A("s_memrealtime s[96:97]")
        if tt == 1:
            A("ds_read_b32 v116, v117 offset:128")
            A("v_add_u32 v115, 1, v115")
        c(4); e(11); e(12); c(5); e(13); e(14); c(6)
        if tt == 3:
            A("v_mov_b32 v110, v112")
            A("v_mov_b32 v111, v113")
            A("s_sub_u32 s34, s34, 1")
            A("s_cmp_lg_u32 s34, 0")
        e(15)
    A(f"s_cbranch_scc1 {name}_aloop")
    A("s_waitcnt lgkmcnt(0)")
    A(f"v_cvt_pk_bf16_f32 {v(VP[1]+7)}, {v(VS[1]+14)}, {v(VS[1]+15)}")
    A("s_setprio 2")
    A("s_nop 0")
    A(f"v_mfma_f32_32x32x16_bf16 {v(VO,16)}, {v(VV1,4)}, {v(VP[1]+4,4)}, {v(VO,16)}")
    A("s_lshl_b32 s19, s17, 5")
    A("s_add_u32 s19, s19, s16")
    A("s_lshr_b32 s18, s17, 3")
    A("s_lshl_b32 s18, s18, 5")
    A("s_add_u32 s18, s18, s16")
    A("s_lshl_b32 s18, s18, 7")
    A(f"s_add_u32 s18, s18, {FL_O}")
    A("s_lshl_b32 s19, s19, 10")
    A(f"s_add_u32 s19, s19, {WS_O}")
    A("s_mov_b32 s29, 0x7b800000")
    A("s_nop 1")
    A(f"v_add_f32_e64 v4, abs({v(VO)}), {v(VO+8)}")
    for r in range(1, 8):
        A(f"v_add_f32_e64 v4, abs({v(VO+r)}), v4")
    A("v_cmp_gt_f32 vcc, s29, v4")
    A("s_nop 1")
    A("s_cmp_eq_u64 vcc, -1")
    A(f"s_cbranch_scc0 {name}_aslow")
    A.label(f"{name}_astore")
    A(f"v_rcp_f32 v4, {v(VO+8)}")
    A("s_nop 0")
    for r in range(8): A(f"v_mul_f32 {v(VO+r)}, {v(VO+r)}, v4")
    for r in range(4): A(f"v_cvt_pk_bf16_f32 {v(VP[0]+r)}, {v(VO+2*r)}, {v(VO+2*r+1)}")
    A(f"buffer_store_dwordx4 {v(VP[0],4)}, v2, s[20:23], s19 offen sc1")
    tl_mark(A, 4)
    final(A, name)
    A(f"s_branch {name}_end")
    A.label(f"{name}_aspin")
    A("s_sleep 2")
    A("ds_read_b32 v116, v117 offset:128")
    A("s_waitcnt lgkmcnt(0)")
    A("v_cmp_gt_u32 vcc, s31, v116")
    A("s_nop 1")
    A("s_cmp_eq_u64 vcc, 0")
    A(f"s_cbranch_scc0 {name}_aspin")
    A(f"s_branch {name}_aspin_ret")
    A.label(f"{name}_aslow")
    A("s_waitcnt vmcnt(0) lgkmcnt(0)")
    A("v_mov_b32 v6, 0xff800000")
    A("s_mov_b32 s28, s26")
    A("s_mov_b32 s34, 64")
    A.label(f"{name}_smax")
    A(f"buffer_load_dwordx4 {v(VK,4)}, v2, s[20:23], s28 offen sc1")
    A("s_waitcnt vmcnt(0)")
    A(f"v_mfma_f32_32x32x16_bf16 {v(VS[0],16)}, {v(VK,4)}, {v(VQ,4)}, 0")
    A("s_add_u32 s28, s28, 2048")
    A("s_sub_u32 s34, s34, 1")
    A("s_nop 7")
    A("s_nop 1")
    for r in range(0, 16, 2):
        A(f"v_max3_f32 v6, v6, {v(VS[0]+r)}, {v(VS[0]+r+1)}")
    A("s_cmp_lg_u32 s34, 0")
    A(f"s_cbranch_scc1 {name}_smax")
    negm_fill()
    for r in range(16): A(f"v_mov_b32 {v(VO+r)}, 0")
    A("s_mov_b32 s28, s26")
    A("s_mov_b32 s34, 64")
    A.label(f"{name}_sloop")
    A(f"buffer_load_dwordx4 {v(VK,4)}, v2, s[20:23], s28 offen sc1")
    A("s_mov_b64 exec, s[24:25]")
    A(f"buffer_load_dwordx4 {v(VV0,4)}, v3, s[20:23], s28 offen offset:1024 sc1")
    A(f"buffer_load_dwordx4 {v(VV1,4)}, v3, s[20:23], s28 offen offset:1536 sc1")
    A("s_mov_b64 exec, -1")
    A("s_waitcnt vmcnt(0)")
    A(f"v_mfma_f32_32x32x16_bf16 {v(VS[0],16)}, {v(VK,4)}, {v(VQ,4)}, {v(VNEG,16)}")
    A("s_add_u32 s28, s28, 2048")
    A("s_sub_u32 s34, s34, 1")
    A("s_nop 7")
    A("s_nop 1")
    for r in range(16): A(f"v_exp_f32 {v(VS[0]+r)}, {v(VS[0]+r)}")
    A("s_nop 0")
    for r in range(8): A(f"v_cvt_pk_bf16_f32 {v(VP[0]+r)}, {v(VS[0]+2*r)}, {v(VS[0]+2*r+1)}")
    A("s_nop 1")
    A(f"v_mfma_f32_32x32x16_bf16 {v(VO,16)}, {v(VV0,4)}, {v(VP[0],4)}, {v(VO,16)}")
    A(f"v_mfma_f32_32x32x16_bf16 {v(VO,16)}, {v(VV1,4)}, {v(VP[0]+4,4)}, {v(VO,16)}")
    A("s_cmp_lg_u32 s34, 0")
    A(f"s_cbranch_scc1 {name}_sloop")
    A("s_nop 7")
    A("s_nop 3")
    A(f"s_branch {name}_astore")

def final(A, name):
    WR = 8; OR = 72; AC = 136
    A("s_and_b32 s24, s2, 3")
    A("s_lshl_b32 s24, s24, 3")
    A("s_bfe_u32 s25, s2, 0x30003")
    A("s_add_u32 s24, s24, s25")
    A("s_bfe_u32 s25, s2, 0x10002")
    A("s_lshl_b32 s25, s25, 2")
    A("s_lshr_b32 s26, s2, 6")
    A("s_add_u32 s25, s25, s26")
    A("s_and_b32 s26, s3, 1")
    A("s_bfe_u32 s27, s3, 0x10001")
    A("s_lshr_b32 s28, s3, 2")
    A("v_mov_b32 v160, 0")
    A("v_mov_b32 v161, 1")
    A("v_lshrrev_b32 v3, 5, v0")
    A("v_bfe_u32 v4, v0, 2, 2")
    A("v_lshl_add_u32 v4, v3, 2, v4")
    A("v_lshlrev_b32 v4, 7, v4")
    A("v_bfe_u32 v5, v0, 4, 1")
    A("v_lshlrev_b32 v5, 1, v5")
    A("v_bfe_u32 v6, v0, 1, 1")
    A("v_add_u32 v5, v5, v6")
    A("v_bfe_u32 v6, v0, 3, 1")
    A("v_xor_b32 v6, s27, v6")
    A("v_lshl_add_u32 v5, v6, 2, v5")
    A("v_lshl_add_u32 v4, v5, 4, v4")
    A("v_and_b32 v6, 1, v0")
    A("v_lshl_add_u32 v4, v6, 3, v4")
    A("s_lshl_b32 s29, s28, 15")
    A(f"s_add_u32 s29, s29, {BOFF}")
    A("v_add_u32 v4, s29, v4")
    A("v_and_b32 v5, 31, v0")
    A("s_lshl_b32 s29, s26, 5")
    A("v_add_u32 v5, s29, v5")
    A("s_lshl_b32 s29, s27, 6")
    A("s_lshl_b32 s30, s28, 5")
    A("s_add_u32 s29, s29, s30")
    A("v_lshl_add_u32 v6, v3, 4, s29")
    A(f"v_mul_u32_u24 v7, {GSTR}, v5")
    A("v_add_u32 v7, v7, v6")
    A(f"v_add_u32 v7, {GBUF}, v7")
    A("v_lshl_add_u32 v6, v5, 10, v6")
    A("s_lshl_b32 s30, s24, 16")
    A("s_lshl_b32 s31, s25, 7")
    A("s_add_u32 s30, s30, s31")
    A("buffer_load_dwordx4 v[152:155], v6, s[8:11], s30 offen")
    A("s_waitcnt vmcnt(1)")
    publish(A, C_O, 8, 160, 161, 162, 33, "s18", f"{name}_po")
    A("s_lshl_b32 s31, s24, 1")
    A("s_add_u32 s31, s31, s26")
    A("s_lshl_b32 s31, s31, 5")
    A("s_lshl_b32 s32, s28, 4")
    A("s_add_u32 s31, s31, s32")
    A("s_lshr_b32 s32, s24, 2")
    A("s_lshl_b32 s32, s32, 1")
    A("s_add_u32 s32, s32, s28")
    A("s_lshl_b32 s32, s32, 11")
    A(f"s_add_u32 s32, s32, {FL_O}")
    A("s_lshl_b32 s31, s31, 10")
    A(f"s_add_u32 s31, s31, {WS_O}")
    A("v_and_b32 v5, 15, v0")
    A("v_lshlrev_b32 v5, 7, v5")
    srd(A, 12, 44, 2048 * 1024)
    wait_cnt(A, C_G, 4, 160, 162, 33, sleep=2)
    lg = Cnt(A, "lgkmcnt", 15)
    for j in range(16):
        for p in range(2):
            A(f"ds_read_b64_tr_b16 {v(WR+4*j+2*p,2)}, v4 offset:{j*2048 + p*1024}"); lg.issue("w")
    A("ds_read_b128 v[156:159], v7"); lg.issue("w")
    A("s_lshl_b32 s33, s28, 2")
    A("v_mov_b32 v165, s33")
    A("s_and_b32 s33, s3, 3")
    A("s_cmp_eq_u32 s33, 0")
    A(f"s_cbranch_scc0 {name}_gw2")
    poll_lanes(A, 20, 5, "s32", 162, sleep=2)
    arrive(A, C_GO2, 165, 161)
    A(f"s_branch {name}_go2")
    A.label(f"{name}_gw2")
    wait_cnt(A, C_GO2, 1, 165, 162, 33, sleep=1)
    A("s_waitcnt vmcnt(0)")
    A.label(f"{name}_go2")
    tl_mark(A, 5)
    vm = Cnt(A, "vmcnt", 63)
    for j in range(16):
        if j % 4 == 0 and j: A("s_add_u32 s31, s31, 4096")
        A(f"buffer_load_dwordx4 {v(OR+4*j,4)}, v2, s[20:23], s31 offen offset:{(j%4)*1024} sc1"); vm.issue(("o", j))
    lg.wait_all()
    A("s_lshl_b32 s33, s3, 11")
    A(f"s_add_u32 s33, s33, {XCH}")
    A("v_add_u32 v3, s33, v2")
    A("v_xor_b32 v5, 8192, v3") if (XCH % 16384 == 0) else None
    if XCH % 16384:
        A("s_xor_b32 s33, s3, 4")
        A("s_lshl_b32 s33, s33, 11")
        A(f"s_add_u32 s33, s33, {XCH}")
        A("v_add_u32 v5, s33, v2")
    A("s_lshl_b32 s33, s3, 2")
    A("v_mov_b32 v163, s33")
    A("v_xor_b32 v164, 16, v163")
    for j in range(16):
        vm.wait(("o", j))
        A(f"v_mfma_f32_32x32x16_bf16 {v(AC,16)}, {v(WR+4*j,4)}, {v(OR+4*j,4)}, {v(AC,16) if j else 0}")
    A("s_cmp_eq_u32 s28, 0")
    A(f"s_cbranch_scc0 {name}_fk1")
    A("s_nop 7")
    A("s_nop 1")
    A(f"ds_write_b128 v3, {v(AC+8,4)}")
    A(f"ds_write_b128 v3, {v(AC+12,4)} offset:1024")
    A(f"s_branch {name}_fk")
    A.label(f"{name}_fk1")
    A("s_nop 7")
    A("s_nop 1")
    A(f"ds_write_b128 v3, {v(AC,4)}")
    A(f"ds_write_b128 v3, {v(AC+4,4)} offset:1024")
    A("s_waitcnt lgkmcnt(0)")
    for r in range(8): A(f"v_mov_b32 v{AC+r}, v{AC+8+r}")
    A.label(f"{name}_fk")
    A("s_waitcnt lgkmcnt(0)")
    A("s_mov_b64 exec, 1")
    A("ds_write_b32 v163, v161 offset:160")
    A("s_mov_b64 exec, -1")
    for i in range(4):
        A(f"v_lshlrev_b32 v{8+2*i}, 16, v{156+i}")
        A(f"v_and_b32 v{9+2*i}, 0xffff0000, v{156+i}")
        A(f"v_lshlrev_b32 v{16+2*i}, 16, v{152+i}")
        A(f"v_and_b32 v{17+2*i}, 0xffff0000, v{152+i}")
    wait_cnt(A, 160, 1, 164, 162, 33, sleep=0)
    A("ds_read_b128 v[24:27], v5")
    A("ds_read_b128 v[28:31], v5 offset:1024")
    A("s_waitcnt lgkmcnt(0)")
    for r in range(8): A(f"v_add_f32 v{AC+r}, v{AC+r}, v{24+r}")
    for i in range(4): A(f"v_cvt_pk_bf16_f32 v{24+i}, v{AC+2*i}, v{AC+2*i+1}")
    A("s_nop 1")
    A("v_permlane32_swap_b32 v24, v26")
    A("v_permlane32_swap_b32 v25, v27")
    A("s_nop 1")
    for i in range(4):
        A(f"v_lshlrev_b32 v{32+2*i}, 16, v{24+i}")
        A(f"v_and_b32 v{33+2*i}, 0xffff0000, v{24+i}")
    for i in range(8): A(f"v_mul_f32 v{32+i}, v{32+i}, v{8+i}")
    for i in range(4): A(f"v_cvt_pk_bf16_f32 v{24+i}, v{32+2*i}, v{33+2*i}")
    for i in range(4):
        A(f"v_lshlrev_b32 v{32+2*i}, 16, v{24+i}")
        A(f"v_and_b32 v{33+2*i}, 0xffff0000, v{24+i}")
    for i in range(8): A(f"v_add_f32 v{32+i}, v{32+i}, v{16+i}")
    for i in range(4): A(f"v_cvt_pk_bf16_f32 v{24+i}, v{32+2*i}, v{33+2*i}")
    A("buffer_store_dwordx4 v[24:27], v6, s[12:15], s30 offen")
    tl_end(A, 0, 20)
    tl_marks_out(A, 1, 6, 20)
    if asmlib.TIMELINE:
        A("s_lshl_b32 s58, s2, 3")
        A("s_add_u32 s58, s58, s3")
        A("s_lshl_b32 s58, s58, 9")
        A(f"s_add_u32 s58, s58, {100<<20}")
        A("v_lshlrev_b32 v1, 3, v0")
        A("buffer_store_dwordx2 v[166:167], v1, s[20:23], s58 offen")

class BBar:
    def __init__(self, name): self.n = 0; self.name = name; self.lg = None; self.boost = False
    def __call__(self, A):
        self.n += 1
        if self.boost: A("s_setprio 2")
        A("s_mov_b64 exec, 2")
        A("ds_add_u32 v7, v7 offset:64")
        A("s_mov_b64 exec, 1")
        A.label(f"{self.name}_bb{self.n}")
        A("ds_read_b32 v1, v7 offset:80")
        A("s_waitcnt lgkmcnt(0)")
        A("v_readfirstlane_b32 s56, v1")
        A(f"s_cmp_ge_u32 s56, {64*self.n}")
        A(f"s_cbranch_scc0 {self.name}_bb{self.n}")
        A("s_mov_b64 exec, -1")
        if self.boost: A("s_setprio 0")
        if self.lg is not None: self.lg.seq = []

def lb_role(A, name):
    A("s_sub_u32 s3, s3, 8")
    A("v_lshlrev_b32 v7, 2, v0")
    A("v_mov_b32 v1, 0")
    A("ds_write_b32 v7, v1")
    A("v_lshlrev_b32 v7, 4, v0")
    rc_qkv(A)
    A("v_lshrrev_b32 v4, 3, v0")
    A("v_and_b32 v5, 7, v0")
    A("v_lshrrev_b32 v6, 4, v0")
    A("v_xor_b32 v5, v5, v6")
    A("v_xor_b32 v8, 4, v5")
    A("s_lshl_b32 s28, s3, 15")
    A("v_lshlrev_b32 v4, 10, v4")
    A("v_add_u32 v4, s28, v4")
    A("v_lshl_add_u32 v60, v5, 4, v4")
    A("v_lshl_add_u32 v61, v8, 4, v4")
    A("v_add_u32 v61, 8192, v61")
    A("v_add_u32 v62, 16384, v60")
    A("v_add_u32 v63, 16384, v61")
    A("v_lshrrev_b32 v4, 2, v0")
    A("s_lshl_b32 s28, s3, 4")
    A("v_add_u32 v4, s28, v4")
    A("v_mul_u32_u24 v4, 3072, v4")
    A("v_and_b32 v5, 3, v0")
    A("v_lshl_add_u32 v64, v5, 4, v4")
    A("s_lshl_b32 s28, s25, 6")
    A("v_add_u32 v64, s28, v64")
    A("v_add_u32 v65, 1024, v64")
    A("v_add_u32 v66, 2048, v64")
    A("s_lshl_b32 s70, s24, 1")
    A("s_add_u32 s70, s70, s25")
    A("s_and_b32 s70, s70, 7")
    A("s_lshl_b32 s71, s24, 17")
    A("s_lshl_b32 s72, s3, 12")
    A(f"s_add_u32 s72, s72, {K1B}")
    A("s_lshl_b32 s73, s3, 10")
    A(f"s_add_u32 s73, s73, {K1B + 16384}")
    A(f"s_mov_b32 s74, {2*K1_SLOT}")
    A("s_waitcnt lgkmcnt(0)")
    A("s_barrier")
    srd(A, 60, 4, 2048 * 1024)
    srd(A, 64, 6, 512 * 3072)
    srd(A, 20, 16, WS_END)
    srd(A, 52, 18, 256)
    def ldma():
        A("s_lshl_b32 s75, s70, 7")
        A("s_add_u32 s75, s75, s71")
        A(f"s_mul_i32 s76, s70, {64*3072}")
        A("s_add_u32 s70, s70, 1")
        A("s_and_b32 s70, s70, 7")
        A("s_add_u32 s77, s72, s74")
        A("s_add_u32 s78, s73, s74")
        for e in range(4):
            A(f"s_add_u32 m0, s77, {e*1024}")
            A("s_nop 0")
            A(f"buffer_load_dwordx4 v{60+e}, s[60:63], s75 offen lds")
        for T_ in range(3):
            A(f"s_add_u32 m0, s78, {T_*4096}")
            A("s_nop 0")
            A(f"buffer_load_dwordx4 v{64+T_}, s[64:67], s76 offen lds")
        A(f"s_add_u32 s74, s74, {K1_SLOT}")
        A(f"s_cmp_eq_u32 s74, {K1_SLOT*K1_NS}")
        A("s_cselect_b32 s74, 0, s74")
    A("s_mov_b32 s79, 0")
    A.label(f"{name}_lpro")
    ldma()
    A("s_add_u32 s79, s79, 1")
    A(f"s_cmp_lt_u32 s79, {K1_PRO}")
    A(f"s_cbranch_scc1 {name}_lpro")
    A("s_mov_b32 s4, s48")
    A("s_mov_b32 s5, s49")
    A("s_mov_b32 s6, s50")
    A("s_mov_b32 s7, s51")
    bar = BBar(name)
    def prologue(A, dma, vm):
        issued = K1_PRO; seq = [("k", st) for st in range(K1_PRO) for _ in range(7)]
        A("s_lshl_b32 s36, s24, 11")
        A(f"s_add_u32 s36, s36, {FL_X}")
        A("v_and_b32 v1, 15, v0")
        A("v_lshlrev_b32 v1, 7, v1")
        A("v_mov_b32 v67, 0")
        A("s_and_b32 s37, s24, 7")
        A("s_lshl_b32 s37, s37, 1")
        A("s_and_b32 s38, s3, 1")
        A("s_add_u32 s37, s37, s38")
        A("s_lshl_b32 s37, s37, 5")
        A("v_and_b32 v68, 31, v0")
        A("v_add_u32 v68, s37, v68")
        A("v_mul_u32_u24 v68, 3584, v68")
        A("v_add_u32 v68, s28, v68")
        A("v_lshrrev_b32 v69, 5, v0")
        A("v_lshl_add_u32 v69, v69, 7, v68")
        TJ = int(os.environ.get("TJ", "-1"))
        for j in range(8):
            idx = max(i for i, t in enumerate(seq) if t == ("k", j))
            A(f"s_waitcnt vmcnt({len(seq) - 1 - idx})")
            A("s_barrier")
            if issued < 8 and issued - 4 <= j:
                ldma(); seq += [("k", issued)] * 7; issued += 1
                if j == TJ:
                    A("buffer_load_dword v70, v69, s[8:11], 0 offen")
                    A("buffer_load_dword v71, v68, s[8:11], 0 offen offset:220")
                    seq += [("t", 0)] * 2
            elif j == 6:
                A("buffer_load_dwordx2 v[12:13], v67, s[52:55], 0 offen sc1")
                A("buffer_load_dwordx2 v[14:15], v1, s[20:23], s36 offen sc1")
                dma(0); seq += [("g", 0)] * 9
        assert issued == 8
        A("s_waitcnt vmcnt(7)")
        A("v_readfirstlane_b32 s68, v12")
        A("v_readfirstlane_b32 s69, v13")
        A("v_cmp_ne_u64 vcc, v[12:13], v[14:15]")
        A("s_cmp_eq_u32 s68, 0")
        A(f"s_cbranch_scc1 {name}_xslow")
        A("s_cmp_eq_u64 vcc, 0")
        A(f"s_cbranch_scc1 {name}_xok")
        A.label(f"{name}_xslow")
        wait_ready(A, 67, 12, 37)
        poll_lanes(A, 20, 1, "s36", 12, sleep=1)
        A.label(f"{name}_xok")
        if os.environ.get("BWAIT"):
            wait_cnt(A, C_QKV, 8, 67, 71, 37, sleep=2)
        tl_mark(A, 4)
    def wait_slot2(A, lg):
        A("v_mov_b32 v0, 0")
        wait_cnt(A, C_WFREE, 8, 0, 1, 37)
        lg.seq = []
    ffn.gu_body(A, name + "_gu", bar, st_flags="sc1", lds0=BOFF, x_flags=os.environ.get("XFL", "sc1"), prologue=prologue, wait_slot2=wait_slot2)
    A("s_waitcnt vmcnt(0)")
    bar(A)
    A("s_cmp_eq_u32 s3, 0")
    A(f"s_cbranch_scc0 {name}_noflag")
    A("s_lshl_b32 s34, s24, 4")
    A("s_add_u32 s34, s34, s25")
    A("s_lshl_b32 s34, s34, 7")
    A(f"s_add_u32 s34, s34, {FL_H}")
    A("v_mov_b32 v1, 0")
    A("s_mov_b64 exec, 1")
    flag_store(A, 1, 2, "s34")
    A("s_mov_b64 exec, -1")
    A.label(f"{name}_noflag")
    tl_mark(A, 1)
    A("s_mov_b32 s4, s46")
    A("s_mov_b32 s5, s47")
    A("v_lshrrev_b32 v0, 4, v7")
    ctx = ffn.sk_body(A, name + "_dn", bar, 28, WS_H, 112 * 1024, 1792 * 1024, "g", ld_flags="sc1", lds0=BOFF)
    def wait_act(A):
        A("s_lshr_b32 s34, s24, 1")
        A("s_lshl_b32 s34, s34, 11")
        A("s_lshl_b32 s35, s3, 9")
        A("s_add_u32 s34, s34, s35")
        A(f"s_add_u32 s34, s34, {FL_H}")
        A("v_and_b32 v1, 3, v0")
        A("v_lshlrev_b32 v1, 7, v1")
        poll_lanes(A, 20, 1, "s34", 16, sleep=4)
        tl_mark(A, 2)
        ctx["vm"].seq = []
    bar.lg = ctx["lg"]
    def after_red_reads(A):
        bar(A)
        srd(A, 8, 42, 512 * 1024)
        A("s_lshl_b32 s27, s3, 17")
        A("s_lshl_b32 s28, s3, 14")
        A(f"s_add_u32 s28, s28, {BOFF}")
        for j in range(8):
            A(f"s_add_u32 s31, s27, {j*16384}")
            A(f"s_add_u32 m0, s28, {j*2048}")
            A("s_nop 0")
            A("buffer_load_dwordx4 v8, s[8:11], s31 offen lds")
            A(f"s_add_u32 m0, s28, {j*2048 + 1024}")
            A("s_nop 0")
            A("buffer_load_dwordx4 v9, s[8:11], s31 offen lds")
    ffn.sk_main(A, name + "_dn", bar, 28, ctx, "glds", wait_act=wait_act, lds0=BOFF, after_red_reads=after_red_reads, gbuf=(GBUF, GSTR))
    A("s_waitcnt vmcnt(0) lgkmcnt(0)")
    A("v_mov_b32 v1, 0")
    A("v_mov_b32 v2, 1")
    arrive(A, C_G, 1, 2)
    A("s_add_u32 s3, s3, 8")
    tl_end(A, 8, 20)
    tl_marks_out(A, 9, 7 if os.environ.get('GUT') else 5, 20)

def gen(A, name=NAME):
    kernel_begin(A, name)
    A("s_cmp_ge_u32 s2, 256")
    A(f"s_cbranch_scc1 F_end")
    tl_begin(A)
    A("s_load_dwordx4 s[4:7], s[0:1], 0")
    A("s_load_dwordx2 s[42:43], s[0:1], 16")
    A("s_load_dwordx4 s[48:51], s[0:1], 32")
    A("s_load_dwordx2 s[46:47], s[0:1], 48")
    A("s_load_dwordx2 s[44:45], s[0:1], 56")
    A("s_load_dwordx2 s[18:19], s[0:1], 64")
    A("s_load_dwordx2 s[16:17], s[0:1], 72")
    A("v_lshrrev_b32 v1, 6, v0")
    A("v_and_b32 v0, 63, v0")
    A("s_nop 0")
    A("v_readfirstlane_b32 s3, v1")
    A("s_cmp_lt_u32 s3, 8")
    A("s_cbranch_scc0 F_lb")
    ca_role(A, "F")
    A.label("F_lb")
    ffn.PRIO = True
    A("s_setprio 2")
    asmlib.MARK_OFF = bool(os.environ.get("GUT"))
    lb_role(A, "F")
    ffn.PRIO = False
    A.label("F_end")
    A("s_endpgm")
```

```python
from asmlib import *
import asmlib, ffn, os, struct
def f2u(x): return struct.unpack("<I", struct.pack("<f", x))[0]
LOG2E = 1.4426950408889634
QSCALE = 0.25 * LOG2E

NAME = "recurrent_scan__mha_block__glu_gated_glu__prompt_kernel"
BOFF = 256
WQ = BOFF + 2 * ffn.GU_SLOT
LNB = BOFF
ABASE = BOFF + 3 * ffn.GU_SLOT
NCH = 6
XCH = ABASE + NCH * 8192
GBUF = XCH + 16384
GSTR = 144
K1_SLOT = 28672; K1_NS = 5; K1_D = 4
K1B = WQ - 2 * K1_SLOT
K1T = K1B + K1_SLOT * K1_NS
LNB = K1T + 5120
K1_PRO = int(os.environ.get('K1_PRO', '2'))
F_LDS = 163840
assert WQ + 98304 <= F_LDS and GBUF + 64 * GSTR <= F_LDS
C_LN, C_XF, C_W, C_WFREE, C_G = 0, 4, 8, 12, 16
F_VGPR = 168
F_THREADS = 768
WS_FLAG = 30 << 20
WS_ST = 29 << 20
FL_X = WS_FLAG
FL_A = WS_FLAG + 32768
FL_H = WS_FLAG + 65536
FL_O = WS_FLAG + 98304
C_QKV, C_O, C_GO, C_GO2 = 20, 24, 28, 32

def flag_store(A, vz, vt, soff):
    A(f"v_mov_b32 v{vt}, s68")
    A(f"v_mov_b32 v{vt+1}, s69")
    A(f"buffer_store_dwordx2 {v(vt,2)}, v{vz}, s[20:23], {soff} offen sc1")

def publish(A, cnt_off, n, vz, vone, vt, st, soff, lbl):
    A("s_mov_b64 exec, 1")
    A(f"ds_add_rtn_u32 v{vt}, v{vz}, v{vone} offset:{cnt_off}")
    A("s_waitcnt lgkmcnt(0)")
    A(f"v_readfirstlane_b32 s{st}, v{vt}")
    A(f"s_cmp_eq_u32 s{st}, {n-1}")
    A(f"s_cbranch_scc0 {lbl}")
    flag_store(A, vz, vt, soff)
    A.label(lbl)
    A("s_mov_b64 exec, -1")

def wait_ready(A, vz, vt, st):
    _lbl[0] += 1
    L = f"Lr{_lbl[0]}"
    A.label(L)
    A(f"buffer_load_dwordx2 {v(vt,2)}, v{vz}, s[52:55], 0 offen sc1")
    A("s_waitcnt vmcnt(0)")
    A(f"v_readfirstlane_b32 s68, v{vt}")
    A(f"v_readfirstlane_b32 s69, v{vt+1}")
    A("s_cmp_eq_u32 s68, 0")
    A(f"s_cbranch_scc1 {L}")

_lbl = [0]
def arrive(A, off, vz, vone):
    A("s_mov_b64 exec, 1")
    A(f"ds_add_u32 v{vz}, v{vone} offset:{off}")
    A("s_mov_b64 exec, -1")
def wait_cnt(A, off, n, vz, vt, st, sleep=1):
    _lbl[0] += 1
    L = f"Lw{_lbl[0]}"
    A.label(L)
    A(f"ds_read_b32 v{vt}, v{vz} offset:{off}")
    A("s_waitcnt lgkmcnt(0)")
    A(f"v_readfirstlane_b32 s{st}, v{vt}")
    A(f"s_cmp_ge_u32 s{st}, {n}")
    A(f"s_cbranch_scc1 {L}x")
    if sleep: A(f"s_sleep {sleep}")
    A(f"s_branch {L}")
    A.label(L + "x")

def poll_lanes(A, srd_, voff, soff, vt, sleep=2):
    _lbl[0] += 1
    L = f"Lq{_lbl[0]}"
    A.label(L)
    A(f"buffer_load_dwordx2 {v(vt,2)}, v{voff}, s[{srd_}:{srd_+3}], {soff} offen sc1")
    A("s_waitcnt vmcnt(0)")
    A(f"v_cmp_ne_u64 vcc, s[68:69], {v(vt,2)}")
    A("s_nop 1")
    A("s_cmp_eq_u64 vcc, 0")
    A(f"s_cbranch_scc1 {L}x")
    A(f"s_sleep {sleep}")
    A(f"s_branch {L}")
    A.label(L + "x")

def rc_qkv(A):
    A("s_bfe_u32 s24, s2, 0x20001")
    A("s_lshl_b32 s24, s24, 2")
    A("s_lshr_b32 s25, s2, 6")
    A("s_add_u32 s24, s24, s25")
    A("s_and_b32 s25, s2, 1")
    A("s_lshl_b32 s25, s25, 3")
    A("s_bfe_u32 s26, s2, 0x30003")
    A("s_add_u32 s25, s25, s26")

VQ = 8; VNEG = 16; VS = [32, 48]; VP = [64, 72]; VO = 80; VK = 96; VV0 = 100; VV1 = 104

def ca_role(A, name):
    rc_qkv(A)
    A("v_lshlrev_b32 v2, 4, v0")
    A("v_mov_b32 v118, 0")
    A("v_mov_b32 v119, 1")
    A("s_lshl_b32 s30, s24, 7")
    A("s_lshl_b32 s28, s25, 3")
    A("s_add_u32 s30, s30, s28")
    A("s_add_u32 s31, s30, s3")
    A("s_lshl_b32 s31, s31, 10")
    A("s_waitcnt lgkmcnt(0)")
    srd(A, 8, 4, 2048 * 1024)
    srd(A, 20, 16, WS_END)
    srd(A, 52, 18, 256)
    A("buffer_load_dwordx4 v[164:167], v2, s[8:11], s31 offen")
    A("s_or_b32 s28, s2, s3")
    A("s_cmp_eq_u32 s28, 0")
    A(f"s_cbranch_scc0 {name}_nz")
    A("s_memrealtime s[68:69]")
    A("s_waitcnt lgkmcnt(0)")
    A("s_or_b32 s68, s68, 1")
    A("v_mov_b32 v24, s68")
    A("v_mov_b32 v25, s69")
    A("s_mov_b64 exec, 1")
    A("buffer_store_dwordx2 v[24:25], v118, s[52:55], 0 offen sc1")
    A("s_mov_b64 exec, -1")
    A.label(f"{name}_nz")
    A("s_barrier")
    A("s_mul_i32 s28, s3, 1040")
    A(f"s_add_u32 s28, s28, {LNB}")
    A("v_add_u32 v140, s28, v2")
    A("v_and_b32 v141, 7, v0")
    A("v_mul_u32_u24 v142, 1040, v141")
    A("v_lshrrev_b32 v143, 3, v0")
    A("s_lshl_b32 s28, s3, 3")
    A("v_add_u32 v143, s28, v143")
    A("v_lshl_add_u32 v142, v143, 4, v142")
    A(f"v_add_u32 v142, {LNB}, v142")
    A("v_lshlrev_b32 v143, 9, v143")
    A("v_lshl_add_u32 v143, v141, 4, v143")
    A("s_lshr_b32 s28, s30, 5")
    A("s_lshl_b32 s28, s28, 15")
    A("s_and_b32 s29, s30, 31")
    A("s_lshl_b32 s29, s29, 4")
    A("s_add_u32 s28, s28, s29")
    A(f"s_add_u32 s28, s28, {WS_XF}")
    k1_setup(A)
    A("s_or_b32 s29, s2, s3")
    A("s_cmp_eq_u32 s29, 0")
    A(f"s_cbranch_scc1 {name}_w0")
    A("s_waitcnt vmcnt(0)")
    A.label(f"{name}_w0")
    A("s_waitcnt vmcnt(1)")
    T = 144
    for i in range(4):
        A(f"v_lshlrev_b32 v{T+2*i}, 16, v{164+i}")
        A(f"v_and_b32 v{T+2*i+1}, 0xffff0000, v{164+i}")
    A(f"v_add_f32 v160, v{T}, v{T+1}")
    A(f"v_mul_f32 v161, v{T}, v{T}")
    A(f"v_fmac_f32 v161, v{T+1}, v{T+1}")
    for i in range(2, 8):
        A(f"v_add_f32 v160, v160, v{T+i}")
        A(f"v_fmac_f32 v161, v{T+i}, v{T+i}")
    A("s_nop 0")
    for m in ("quad_perm:[1,0,3,2]", "quad_perm:[2,3,0,1]", "row_half_mirror", "row_mirror"):
        A(f"v_add_f32_dpp v160, v160, v160 {m} row_mask:0xf bank_mask:0xf")
        A(f"v_add_f32_dpp v161, v161, v161 {m} row_mask:0xf bank_mask:0xf")
        A("s_nop 0")
    for op in ("v_permlane16_swap_b32", "v_permlane32_swap_b32"):
        A("v_mov_b32 v162, v160")
        A("v_mov_b32 v163, v161")
        A("s_nop 0")
        A(f"{op} v162, v160")
        A(f"{op} v163, v161")
        A("s_nop 0")
        A("v_add_f32 v160, v160, v162")
        A("v_add_f32 v161, v161, v163")
    A(f"v_mul_f32 v160, {hex(f2u(1/512))}, v160")
    A(f"v_mul_f32 v161, {hex(f2u(1/512))}, v161")
    A("v_fma_f32 v161, -v160, v160, v161")
    ln_scalars(A, 160, 161, 162)
    A("s_lshr_b32 s29, s31, 7")
    A(f"s_add_u32 s29, s29, {WS_ST}")
    A("s_mov_b64 exec, 1")
    A("buffer_store_dwordx2 v[160:161], v118, s[20:23], s29 offen sc1")
    A("s_mov_b64 exec, -1")
    for i in range(8): A(f"v_sub_f32 v{T+i}, v{T+i}, v160")
    for i in range(4): A(f"v_cvt_pk_bf16_f32 v{164+i}, v{T+2*i}, v{T+2*i+1}")
    for i in range(4):
        A(f"v_lshlrev_b32 v{T+2*i}, 16, v{164+i}")
        A(f"v_and_b32 v{T+2*i+1}, 0xffff0000, v{164+i}")
    for i in range(8): A(f"v_mul_f32 v{T+i}, v{T+i}, v161")
    for i in range(4): A(f"v_cvt_pk_bf16_f32 v{164+i}, v{T+2*i}, v{T+2*i+1}")
    A("ds_write_b128 v140, v[164:167]")
    A("s_waitcnt lgkmcnt(0)")
    arrive(A, C_LN, 118, 119)
    wait_cnt(A, C_LN, 8, 118, 139, 29, sleep=0)
    A("ds_read_b128 v[164:167], v142")
    A("s_waitcnt lgkmcnt(0)")
    A("buffer_store_dwordx4 v[164:167], v143, s[20:23], s28 offen sc1")
    tl_mark(A, 0)
    A("buffer_load_dwordx2 v[116:117], v118, s[52:55], 0 offen sc1")
    A("s_cmp_lt_u32 s3, 4")
    A(f"s_cbranch_scc0 {name}_kv")
    k1_compute(A, name, 0)
    A(f"s_branch {name}_attn1")
    A.label(f"{name}_kv")
    k1_compute(A, name, 1)
    A.label(f"{name}_attn1")
    A("s_lshl_b32 s28, s25, 4")
    A("s_add_u32 s28, s28, s24")
    A("s_lshl_b32 s28, s28, 7")
    A(f"s_add_u32 s28, s28, {FL_A}")
    A("v_mov_b32 v118, 0")
    A("v_mov_b32 v119, 1")
    wait_ready(A, 118, 6, 29)
    A("s_cmp_eq_u32 s57, 0")
    A(f"s_cbranch_scc1 {name}_xdone")
    A("s_mov_b64 exec, 1")
    flag_store(A, 118, 6, "s59")
    A("s_mov_b64 exec, -1")
    A.label(f"{name}_xdone")
    publish(A, C_QKV, 8, 118, 119, 6, 29, "s28", f"{name}_pa")
    A("s_setprio 0")
    tl_mark(A, 2)
    A("v_and_b32 v116, 15, v0")
    A("v_lshlrev_b32 v116, 7, v116")
    A.label(f"{name}_attn2")
    attn(A, name)


AC0, AC1 = 32, 48
XF = 64; WFK = 80; VSEL = 112; VCS = 120; VS1, VS2 = 124, 126

def xpub(A, L):
    A("s_mov_b64 exec, 1")
    A("s_waitcnt vmcnt(0)")
    A("v_readfirstlane_b32 s29, v116")
    A("s_cmp_eq_u32 s29, 0")
    A(f"s_cbranch_scc1 {L}_c")
    A("buffer_store_dwordx2 v[116:117], v118, s[20:23], s59 offen sc1")
    A("s_mov_b32 s57, 0")
    A(f"s_branch {L}_d")
    A.label(f"{L}_c")
    A("buffer_load_dwordx2 v[116:117], v118, s[52:55], 0 offen sc1")
    A.label(f"{L}_d")
    A("s_mov_b64 exec, -1")

def k1_setup(A):
    A("s_cmp_eq_u32 s3, 7")
    A("s_cselect_b32 s57, 5, 0")
    A("s_lshl_b32 s59, s24, 4")
    A("s_add_u32 s59, s59, s25")
    A("s_lshl_b32 s59, s59, 7")
    A(f"s_add_u32 s59, s59, {FL_X}")
    A("s_lshl_b32 s60, s24, 11")
    A(f"s_add_u32 s60, s60, {FL_X}")
    A("v_and_b32 v138, 15, v0")
    A("v_lshlrev_b32 v138, 7, v138")
    A("s_lshl_b32 s61, s24, 10")
    A("s_and_b32 s62, s3, 3")
    A("s_lshl_b32 s62, s62, 8")
    A("s_add_u32 s61, s61, s62")
    A(f"s_add_u32 s61, s61, {WS_ST}")
    A("v_and_b32 v23, 31, v0")
    A("v_lshlrev_b32 v23, 3, v23")
    A("s_mov_b32 s62, 0")
    A("s_and_b32 s26, s3, 3")
    A("v_and_b32 v4, 31, v0")
    A("v_lshrrev_b32 v5, 5, v0")
    A("v_bfe_u32 v6, v0, 1, 3")
    A("v_xor_b32 v6, v5, v6")
    A("s_lshl_b32 s34, s26, 12")
    A(f"s_add_u32 s34, s34, {K1B}")
    A("v_lshlrev_b32 v4, 7, v4")
    A("v_add_u32 v4, s34, v4")
    for s_ in range(4):
        A(f"v_xor_b32 v7, {2*s_}, v6")
        A(f"v_lshl_add_u32 v{11+s_}, v7, 4, v4")
    A("v_bfe_u32 v6, v0, 2, 2")
    A("v_lshl_add_u32 v6, v5, 3, v6")
    A("v_lshlrev_b32 v6, 6, v6")
    A("v_bfe_u32 v7, v0, 4, 1")
    A("v_lshl_add_u32 v6, v7, 5, v6")
    A("v_and_b32 v7, 3, v0")
    A("v_lshl_add_u32 v6, v7, 3, v6")
    A(f"v_add_u32 v15, {K1B + 16384}, v6")
    for r in range(32): A(f"v_mov_b32 v{AC0+r}, 0")
    for r in range(VCS, 128): A(f"v_mov_b32 v{r}, 0")
    A("v_and_b32 v6, 15, v0")
    A("v_bfe_u32 v7, v0, 4, 1")
    A("v_cmp_eq_u32 vcc, v6, v7")
    A("v_mov_b32 v6, 0x3f803f80")
    A("s_nop 0")
    A(f"v_cndmask_b32 v{VSEL}, 0, v6, vcc")
    for r in range(1, 4): A(f"v_mov_b32 v{VSEL+r}, v{VSEL}")
    A(f"s_mov_b32 s36, {2*K1_SLOT}")
    A("s_mov_b32 s39, 8")

def k1_compute(A, name, role):
    L = f"{name}_c{role}"
    lg = Cnt(A, "lgkmcnt", 15)
    WF = WFK
    nt = 2 if role == 0 else 1
    t0 = 0 if role == 0 else 2
    TM = 128
    A("s_setprio 3" if role == 1 else "s_setprio 2")
    def addrs():
        for i in range(5): A(f"v_add_u32 v{16+i}, s36, v{11+i}")
        A(f"s_add_u32 s36, s36, {K1_SLOT}")
        A(f"s_cmp_eq_u32 s36, {K1_SLOT*K1_NS}")
        A("s_cselect_b32 s36, 0, s36")
    def reads(s_):
        A(f"ds_read_b128 {v(XF+4*s_,4)}, v{16+s_}"); lg.issue(("x", s_))
        for T_ in range(nt):
            for p in range(2):
                A(f"ds_read_b64_tr_b16 {v(WF+8*s_+4*T_+2*p,2)}, v20 offset:{(t0+T_)*4096 + (16*s_+4*p)*64}")
                lg.issue(("w", s_, T_))
    def stats(s_, lo, hi):
        return
        for i in range(lo, hi):
            A(f"v_lshlrev_b32 v{TM+2*i}, 16, v{XF+4*s_+i}")
            A(f"v_and_b32 v{TM+2*i+1}, 0xffff0000, v{XF+4*s_+i}")
        for i in range(2 * lo, 2 * hi):
            A(f"v_add_f32 v{VS1+i%2}, v{VS1+i%2}, v{TM+i}")
            A(f"v_fmac_f32 v{VS2+i%2}, v{TM+i}, v{TM+i}")
    def step(s_):
        X = v(XF + 4 * s_, 4)
        if role == 0:
            lg.wait(("w", s_, 0))
            A(f"v_mfma_f32_32x32x16_bf16 {v(AC0,16)}, {v(WF+8*s_,4)}, {X}, {v(AC0,16)}")
            stats(s_, 0, 1)
            lg.wait(("w", s_, 1))
            A(f"v_mfma_f32_32x32x16_bf16 {v(AC1,16)}, {v(WF+8*s_+4,4)}, {X}, {v(AC1,16)}")
            stats(s_, 1, 2)
        else:
            lg.wait(("w", s_, 0))
            A(f"v_mfma_f32_32x32x16_bf16 {v(AC0,16)}, {X}, {v(WF+8*s_,4)}, {v(AC0,16)}")
            stats(s_, 2, 4)
    def colsum(half):
        cands = [(0, 0), (1, 4)] if role == 0 else [(2, 0)]
        for tbv, off in cands:
            A(f"s_cmp_eq_u32 s26, {tbv}")
            A(f"s_cbranch_scc0 {L}_nocs{half}_{tbv}")
            for s_ in (2 * half, 2 * half + 1):
                A(f"v_mfma_f32_16x16x32_bf16 {v(VCS,4)}, {v(VSEL,4)}, {v(WF+8*s_+off,4)}, {v(VCS,4)}")
            A.label(f"{L}_nocs{half}_{tbv}")
    addrs()
    A("s_barrier")
    reads(0); reads(1); reads(2); reads(3)
    top_state = list(lg.seq)
    A.label(f"{L}_loop")
    step(0); step(1)
    colsum(0)
    A("s_sub_u32 s39, s39, 1")
    A("s_cmp_eq_u32 s39, 0")
    A(f"s_cbranch_scc1 {L}_last")
    addrs()
    A("s_cmp_eq_u32 s39, 6")
    A(f"s_cbranch_scc0 {L}_noxf")
    A("s_waitcnt vmcnt(0)")
    A.label(f"{L}_noxf")
    A("s_cmp_eq_u32 s39, 2")
    A(f"s_cbranch_scc0 {L}_ns1")
    A("buffer_load_dwordx2 v[128:129], v118, s[52:55], 0 offen sc1")
    A("buffer_load_dwordx2 v[130:131], v138, s[20:23], s60 offen sc1")
    A.label(f"{L}_ns1")
    A("s_cmp_eq_u32 s39, 1")
    A(f"s_cbranch_scc0 {L}_ns2")
    A("s_waitcnt vmcnt(0)")
    A("v_readfirstlane_b32 s29, v128")
    A("v_cmp_ne_u64 vcc, v[128:129], v[130:131]")
    A("s_cmp_eq_u32 s29, 0")
    A(f"s_cbranch_scc1 {L}_ns2")
    A("s_cmp_eq_u64 vcc, 0")
    A(f"s_cbranch_scc0 {L}_ns2")
    A(f"buffer_load_dwordx2 {v(VS1,2)}, v23, s[20:23], s61 offen sc1")
    A("s_mov_b32 s62, 1")
    A.label(f"{L}_ns2")
    if role == 1:
        A("s_cmp_gt_u32 s39, s57")
        A(f"s_cbranch_scc1 {L}_nopub")
        xpub(A, f"{L}_xp")
        A.label(f"{L}_nopub")
    lg.wait_all()
    A("s_barrier")
    reads(0); reads(1)
    step(2); step(3)
    colsum(1)
    reads(2); reads(3)
    assert lg.seq == top_state, (lg.seq, top_state)
    A(f"s_branch {L}_loop")
    A.label(f"{L}_last")
    lg.wait_all()
    L = L + "x"
    step(2); step(3)
    colsum(1)
    tl_mark(A, 1)
    TB = K1T
    A("v_lshlrev_b32 v4, 2, v0")
    A("v_cmp_gt_u32 vcc, 16, v0")
    if role == 0:
        A("s_lshl_b32 s34, s26, 7")
        A("s_cmp_lt_u32 s26, 2")
    else:
        A("s_mov_b32 s34, 256")
        A("s_cmp_eq_u32 s26, 2")
    A("s_cselect_b32 s34, s34, 512")
    A("v_mov_b32 v5, 512")
    A("v_mov_b32 v6, s34")
    A("v_cndmask_b32 v5, v5, v6, vcc")
    A("v_add_u32 v5, v5, v4")
    A(f"v_add_u32 v5, {TB}, v5")
    A("s_nop 1")
    A(f"ds_write_b32 v5, v{VCS}")
    A(f"ds_write_b32 v5, v{VCS+1} offset:64")
    A("v_and_b32 v6, 31, v0")
    A("s_lshl_b32 s34, s26, 8")
    A(f"s_add_u32 s34, s34, {TB + 1024}")
    A("v_lshl_add_u32 v7, v6, 3, s34")
    A("v_lshlrev_b32 v6, 2, v6")
    A("v_lshrrev_b32 v8, 5, v0")
    A("v_lshlrev_b32 v8, 4, v8")
    A("s_lshl_b32 s37, s25, 7")
    A("s_lshl_b32 s35, s24, 2")
    A("s_add_u32 s37, s37, s35")
    A("s_add_u32 s37, s37, s26")
    A("s_waitcnt lgkmcnt(0)")
    arrive(A, C_WFREE, 118, 119)
    wait_cnt(A, C_WFREE, 8, 118, 9, 29, sleep=0)
    lg.seq = []
    if role == 0:
        A(f"v_add_u32 v8, {TB}, v8")
        for T_ in range(2):
            for g in range(4):
                A(f"ds_read_b128 {v(WF+16*T_+4*g,4)}, v8 offset:{T_*128 + g*32}"); lg.issue(("c", T_))
    else:
        A(f"v_add_u32 v9, {TB}, v6")
        A("ds_read_b32 v4, v9 offset:256"); lg.issue("c")
    A("s_cmp_eq_u32 s62, 1")
    A(f"s_cbranch_scc1 {L}_sok")
    if role == 1:
        A("s_cmp_eq_u32 s57, 0")
        A(f"s_cbranch_scc1 {L}_np")
        wait_ready(A, 118, 128, 29)
        A("s_mov_b64 exec, 1")
        flag_store(A, 118, 128, "s59")
        A("s_mov_b64 exec, -1")
        A("s_mov_b32 s57, 0")
        A.label(f"{L}_np")
    wait_ready(A, 118, 128, 29)
    poll_lanes(A, 20, 138, "s60", 128, sleep=1)
    A(f"buffer_load_dwordx2 {v(VS1,2)}, v23, s[20:23], s61 offen sc1")
    A.label(f"{L}_sok")
    A("s_waitcnt vmcnt(0)")
    M, RS = VS1, VS1 + 1
    if role == 0:
        A("s_lshl_b32 s35, s37, 11")
        A(f"s_add_u32 s36, s35, {WS_KV + 131072}")
        A(f"s_add_u32 s35, s35, {WS_KV}")
        A(f"v_mul_f32 v6, {hex(f2u(QSCALE))}, v{RS}")
        lg.wait(("c", 1))
        for r in range(16):
            A(f"v_fma_f32 v{AC1+r}, -v{M}, v{WF+16+r}, v{AC1+r}")
            A(f"v_mul_f32 v{AC1+r}, v{AC1+r}, v{RS}")
        for i in range(8): A(f"v_cvt_pk_bf16_f32 v{XF+8+i}, v{AC1+2*i}, v{AC1+2*i+1}")
        A(f"buffer_store_dwordx4 {v(XF+8,4)}, v2, s[20:23], s35 offen sc1")
        A(f"buffer_store_dwordx4 {v(XF+12,4)}, v2, s[20:23], s36 offen sc1")
        A("s_lshl_b32 s35, s37, 10")
        A(f"s_add_u32 s36, s35, {WS_Q + 65536}")
        for r in range(16):
            A(f"v_fma_f32 v{AC0+r}, -v{M}, v{WF+r}, v{AC0+r}")
            A(f"v_mul_f32 v{AC0+r}, v{AC0+r}, v6")
        for i in range(8): A(f"v_cvt_pk_bf16_f32 v{XF+i}, v{AC0+2*i}, v{AC0+2*i+1}")
        A(f"buffer_store_dwordx4 {v(XF,4)}, v2, s[20:23], s35 offen sc1")
        A(f"buffer_store_dwordx4 {v(XF+4,4)}, v2, s[20:23], s36 offen sc1")
    else:
        A("s_lshl_b32 s34, s3, 8")
        A(f"s_add_u32 s34, s34, {TB + 3072}")
        A("v_add_u32 v6, s34, v6")
        A("v_add_u32 v8, s34, v8")
        A(f"ds_write_b32 v6, v{M}"); lg.issue("w")
        A(f"ds_write_b32 v6, v{RS} offset:128"); lg.issue("w")
        for g in range(4):
            A(f"ds_read_b128 {v(WF+4*g,4)}, v8 offset:{g*32}"); lg.issue("m2")
        for g in range(4):
            A(f"ds_read_b128 {v(WF+16+4*g,4)}, v8 offset:{128 + g*32}"); lg.issue("rs")
        A("v_bfe_u32 v7, v0, 4, 1")
        A("v_lshlrev_b32 v7, 17, v7")
        A("v_lshrrev_b32 v5, 5, v0")
        A("v_lshl_add_u32 v7, v5, 8, v7")
        A("v_and_b32 v5, 15, v0")
        A("v_lshl_add_u32 v7, v5, 4, v7")
        A("s_lshl_b32 s35, s37, 11")
        A(f"s_add_u32 s35, s35, {WS_KV}")
        lg.wait("rs")
        for r in range(16):
            A(f"v_fma_f32 v{AC0+r}, -v{WF+r}, v4, v{AC0+r}")
            A(f"v_mul_f32 v{AC0+r}, v{AC0+r}, v{WF+16+r}")
        for i in range(8): A(f"v_cvt_pk_bf16_f32 v{XF+i}, v{AC0+2*i}, v{AC0+2*i+1}")
        A(f"buffer_store_dwordx4 {v(XF,4)}, v7, s[20:23], s35 offen offset:1024 sc1")
        A(f"buffer_store_dwordx4 {v(XF+4,4)}, v7, s[20:23], s35 offen offset:1536 sc1")

def attn(A, name):
    A("s_and_b32 s16, s2, 7")
    A("s_lshr_b32 s17, s2, 3")
    A("s_and_b32 s18, s17, 3")
    A("s_lshl_b32 s16, s16, 2")
    A("s_add_u32 s16, s16, s18")
    A("s_lshr_b32 s17, s17, 2")
    A("s_lshl_b32 s17, s17, 3")
    A("s_add_u32 s17, s17, s3")
    A("s_lshl_b32 s19, s16, 6")
    A("s_add_u32 s19, s19, s17")
    A("s_lshl_b32 s19, s19, 10")
    A("s_lshl_b32 s26, s16, 17")
    A(f"s_add_u32 s26, s26, {WS_KV}")
    A("s_lshl_b32 s27, s3, 10")
    A("s_add_u32 s28, s26, s27")
    A(f"s_add_u32 s27, s27, {ABASE}")
    A("v_lshrrev_b32 v3, 5, v0")
    A("v_lshlrev_b32 v3, 8, v3")
    A("v_and_b32 v4, 15, v0")
    A("v_lshlrev_b32 v4, 4, v4")
    A("v_add_u32 v3, v3, v4")
    A(f"v_add_u32 v108, {ABASE}, v2")
    A(f"v_add_u32 v109, {ABASE + 1024}, v3")
    A("s_lshl_b32 s29, s3, 2")
    A("s_add_u32 s29, s29, 128")
    A("v_mov_b32 v114, s29")
    A("v_mov_b32 v115, 1")
    A("v_and_b32 v117, 7, v0")
    A("v_lshlrev_b32 v117, 2, v117")
    A("s_mov_b32 s24, 0x0000ffff")
    A("s_mov_b32 s25, 0x0000ffff")
    A("v_and_b32 v4, 27, v0")
    A("v_cmp_eq_u32 vcc, 16, v4")
    A("v_mov_b32 v5, 0x3f803f80")
    A("s_nop 0")
    A("v_cndmask_b32 v5, 0, v5, vcc")
    for r in range(8): A(f"v_mov_b32 {v(VV0+r)}, v5")
    for r in range(16): A(f"v_mov_b32 {v(VO+r)}, 0")
    for r in range(4, 8): A(f"v_mov_b32 {v(VP[1]+r)}, 0")
    A("s_lshr_b32 s29, s16, 1")
    A("s_lshl_b32 s29, s29, 11")
    A(f"s_add_u32 s29, s29, {FL_A}")
    A("s_cmp_eq_u32 s3, 0")
    A(f"s_cbranch_scc0 {name}_gw")
    poll_lanes(A, 20, 116, "s29", 6, sleep=int(os.environ.get("PSL", "3")))
    arrive(A, C_GO, 118, 119)
    A(f"s_branch {name}_go")
    A.label(f"{name}_gw")
    wait_cnt(A, C_GO, 1, 118, 6, 30, sleep=2)
    A.label(f"{name}_go")
    tl_mark(A, 3)
    A(f"buffer_load_dwordx4 {v(VQ,4)}, v2, s[20:23], s19 offen sc1")
    A(f"buffer_load_dwordx4 {v(VK,4)}, v2, s[20:23], s26 offen sc1")
    def dma(off):
        A(f"s_add_u32 m0, s27, {off}")
        A("s_nop 0")
        A("buffer_load_dwordx4 v2, s[20:23], s28 offen sc1 lds")
        A("s_add_u32 s28, s28, 8192")
    for c in range(4): dma(c * 8192)
    A("s_waitcnt vmcnt(4)")
    A(f"v_mfma_f32_32x32x16_bf16 {v(VS[0],16)}, {v(VK,4)}, {v(VQ,4)}, 0")
    A("s_waitcnt vmcnt(2)")
    A("s_mov_b64 exec, 1")
    A("ds_write_b32 v114, v115")
    A("s_mov_b64 exec, -1")
    A("s_nop 7")
    A(f"v_max3_f32 v6, {v(VS[0])}, {v(VS[0]+1)}, {v(VS[0]+2)}")
    for r in range(3, 15, 2):
        A(f"v_max3_f32 v6, v6, {v(VS[0]+r)}, {v(VS[0]+r+1)}")
    A(f"v_max_f32 v6, v6, {v(VS[0]+15)}")
    def negm_fill():
        A("v_mov_b32 v4, v6")
        A("s_nop 1")
        A("v_permlane32_swap_b32 v4, v6")
        A("s_nop 1")
        A("v_max_f32 v6, v4, v6")
        A("v_sub_f32 v6, 0, v6")
        for r in range(16): A(f"v_mov_b32 {v(VNEG+r)}, v6")
    negm_fill()
    A(f"v_mov_b32 {v(VS[1]+14)}, 0")
    A(f"v_mov_b32 {v(VS[1]+15)}, 0")
    A(f"v_mfma_f32_32x32x16_bf16 {v(VS[0],16)}, {v(VK,4)}, {v(VQ,4)}, {v(VNEG,16)}")
    A.label(f"{name}_aw0")
    A("ds_read_b32 v116, v117 offset:128")
    A("s_waitcnt lgkmcnt(0)")
    A("v_cmp_eq_u32 vcc, 0, v116")
    A("s_nop 1")
    A("s_cmp_eq_u64 vcc, 0")
    A(f"s_cbranch_scc0 {name}_aw0")
    A("v_mov_b32 v115, 2")
    A(f"ds_read_b128 {v(VK,4)}, v108 offset:2048")
    A("s_mov_b64 exec, s[24:25]")
    A(f"ds_read_b128 {v(VV0,4)}, v109")
    A("s_mov_b64 exec, -1")
    A("s_mov_b32 s30, 0")
    A("s_mov_b32 s31, 1")
    A(f"s_mov_b32 s33, {4*8192}")
    A("s_mov_b32 s34, 16")
    A("s_xor_b32 s35, s3, 4")
    A("v_mov_b32 v110, v108")
    A("v_mov_b32 v111, v109")
    A("s_waitcnt lgkmcnt(0)")
    A.raw(".p2align 6")
    A.label(f"{name}_aloop")
    for tt in range(4):
        X = tt % 2; Y = 1 - X
        S = VS[X]; P = VP[X]; PP = VP[Y]; SY = VS[Y]
        e = lambda i: A(f"v_exp_f32 {v(S+i)}, {v(S+i)}")
        c = lambda i: A(f"v_cvt_pk_bf16_f32 {v(P+i)}, {v(S+2*i)}, {v(S+2*i+1)}")
        e(0)
        A(f"v_cvt_pk_bf16_f32 {v(PP+7)}, {v(SY+14)}, {v(SY+15)}")
        e(1)
        A(f"s_waitcnt lgkmcnt({0 if tt == 2 else 2})")
        A(f"v_mfma_f32_32x32x16_bf16 {v(SY,16)}, {v(VK,4)}, {v(VQ,4)}, {v(VNEG,16)}")
        if tt < 2:
            A(f"ds_read_b128 {v(VK,4)}, v110 offset:{(tt+2)*2048}")
        elif tt == 2:
            if asmlib.TIMELINE:
                A("s_mov_b32 m0, s34")
                A("s_nop 0")
                A("v_writelane_b32 v166, s94, m0")
                A("v_writelane_b32 v167, s96, m0")
            A("v_cmp_gt_u32 vcc, s31, v116")
            A("s_add_u32 s30, s30, 8192")
            A(f"s_cmp_eq_u32 s30, {NCH*8192}")
            A("s_cselect_b32 s30, 0, s30")
            A("v_add_u32 v112, s30, v108")
            A("v_add_u32 v113, s30, v109")
            A("s_cmp_eq_u64 vcc, 0")
            A(f"s_cbranch_scc0 {name}_aspin")
            A.label(f"{name}_aspin_ret")
            A(f"ds_read_b128 {v(VK,4)}, v112")
            A("s_add_u32 s31, s31, 1")
            A("v_readlane_b32 s29, v116, s35")
            A("s_cmp_lt_u32 s29, s31")
            A(f"s_cbranch_scc1 {name}_alow")
            A("s_setprio 1")
            A(f"s_branch {name}_aprio")
            A.label(f"{name}_alow")
            A("s_setprio 0")
            A.label(f"{name}_aprio")
            A("s_cmp_gt_u32 s34, 4")
            A(f"s_cbranch_scc0 {name}_anodma")
            dma("s33")
            A("s_add_u32 s33, s33, 8192")
            A(f"s_cmp_eq_u32 s33, {NCH*8192}")
            A("s_cselect_b32 s33, 0, s33")
            A.label(f"{name}_anodma")
        else:
            A(f"ds_read_b128 {v(VK,4)}, v112 offset:2048")
        e(2); c(0); e(3); e(4); c(1)
        A("s_waitcnt lgkmcnt(2)")
        if not os.environ.get("E2"): A(f"v_mfma_f32_32x32x16_bf16 {v(VO,16)}, {v(VV1,4)}, {v(PP+4,4)}, {v(VO,16)}")
        A("s_mov_b64 exec, s[24:25]" if not os.environ.get("E1") else "s_mov_b64 exec, 1")
        A(f"ds_read_b128 {v(VV1,4)}, v111 offset:{tt*2048+512}")
        if tt == 0:
            A("s_cmp_gt_u32 s34, 3")
            A("s_cbranch_scc1 " + f"{name}_aw1")
            A("s_waitcnt vmcnt(0)")
            A.label(f"{name}_aw1")
            A("s_waitcnt vmcnt(1)")
            A("s_mov_b64 exec, 1")
            A("ds_write_b32 v114, v115")
        A("s_mov_b64 exec, -1")
        e(5); e(6); c(2); e(7); e(8); c(3); e(9); e(10)
        A(f"s_waitcnt lgkmcnt({3 if tt == 0 else 2})")
        A(f"v_mfma_f32_32x32x16_bf16 {v(VO,16)}, {v(VV0,4)}, {v(P,4)}, {v(VO,16)}")
        A("s_mov_b64 exec, s[24:25]" if not os.environ.get("E1") else "s_mov_b64 exec, 1")
        if tt < 3: A(f"ds_read_b128 {v(VV0,4)}, v111 offset:{(tt+1)*2048}")
        else: A(f"ds_read_b128 {v(VV0,4)}, v113")
        A("s_mov_b64 exec, -1")
        if tt == 1 and asmlib.TIMELINE:
            A("s_memtime s[94:95]")
            A("s_memrealtime s[96:97]")
        if tt == 1:
            A("ds_read_b32 v116, v117 offset:128")
            A("v_add_u32 v115, 1, v115")
        c(4); e(11); e(12); c(5); e(13); e(14); c(6)
        if tt == 3:
            A("v_mov_b32 v110, v112")
            A("v_mov_b32 v111, v113")
            A("s_sub_u32 s34, s34, 1")
            A("s_cmp_lg_u32 s34, 0")
        e(15)
    A(f"s_cbranch_scc1 {name}_aloop")
    A("s_waitcnt lgkmcnt(0)")
    A(f"v_cvt_pk_bf16_f32 {v(VP[1]+7)}, {v(VS[1]+14)}, {v(VS[1]+15)}")
    A("s_setprio 2")
    A("s_nop 0")
    A(f"v_mfma_f32_32x32x16_bf16 {v(VO,16)}, {v(VV1,4)}, {v(VP[1]+4,4)}, {v(VO,16)}")
    A("s_lshl_b32 s19, s17, 5")
    A("s_add_u32 s19, s19, s16")
    A("s_lshr_b32 s18, s17, 3")
    A("s_lshl_b32 s18, s18, 5")
    A("s_add_u32 s18, s18, s16")
    A("s_lshl_b32 s18, s18, 7")
    A(f"s_add_u32 s18, s18, {FL_O}")
    A("s_lshl_b32 s19, s19, 10")
    A(f"s_add_u32 s19, s19, {WS_O}")
    A("s_mov_b32 s29, 0x7b800000")
    A("s_nop 1")
    A(f"v_add_f32_e64 v4, abs({v(VO)}), {v(VO+8)}")
    for r in range(1, 8):
        A(f"v_add_f32_e64 v4, abs({v(VO+r)}), v4")
    A("v_cmp_gt_f32 vcc, s29, v4")
    A("s_nop 1")
    A("s_cmp_eq_u64 vcc, -1")
    A(f"s_cbranch_scc0 {name}_aslow")
    A.label(f"{name}_astore")
    A(f"v_rcp_f32 v4, {v(VO+8)}")
    A("s_nop 0")
    for r in range(8): A(f"v_mul_f32 {v(VO+r)}, {v(VO+r)}, v4")
    for r in range(4): A(f"v_cvt_pk_bf16_f32 {v(VP[0]+r)}, {v(VO+2*r)}, {v(VO+2*r+1)}")
    A(f"buffer_store_dwordx4 {v(VP[0],4)}, v2, s[20:23], s19 offen sc1")
    tl_mark(A, 4)
    final(A, name)
    A(f"s_branch {name}_end")
    A.label(f"{name}_aspin")
    A("s_sleep 2")
    A("ds_read_b32 v116, v117 offset:128")
    A("s_waitcnt lgkmcnt(0)")
    A("v_cmp_gt_u32 vcc, s31, v116")
    A("s_nop 1")
    A("s_cmp_eq_u64 vcc, 0")
    A(f"s_cbranch_scc0 {name}_aspin")
    A(f"s_branch {name}_aspin_ret")
    A.label(f"{name}_aslow")
    A("s_waitcnt vmcnt(0) lgkmcnt(0)")
    A("v_mov_b32 v6, 0xff800000")
    A("s_mov_b32 s28, s26")
    A("s_mov_b32 s34, 64")
    A.label(f"{name}_smax")
    A(f"buffer_load_dwordx4 {v(VK,4)}, v2, s[20:23], s28 offen sc1")
    A("s_waitcnt vmcnt(0)")
    A(f"v_mfma_f32_32x32x16_bf16 {v(VS[0],16)}, {v(VK,4)}, {v(VQ,4)}, 0")
    A("s_add_u32 s28, s28, 2048")
    A("s_sub_u32 s34, s34, 1")
    A("s_nop 7")
    A("s_nop 1")
    for r in range(0, 16, 2):
        A(f"v_max3_f32 v6, v6, {v(VS[0]+r)}, {v(VS[0]+r+1)}")
    A("s_cmp_lg_u32 s34, 0")
    A(f"s_cbranch_scc1 {name}_smax")
    negm_fill()
    for r in range(16): A(f"v_mov_b32 {v(VO+r)}, 0")
    A("s_mov_b32 s28, s26")
    A("s_mov_b32 s34, 64")
    A.label(f"{name}_sloop")
    A(f"buffer_load_dwordx4 {v(VK,4)}, v2, s[20:23], s28 offen sc1")
    A("s_mov_b64 exec, s[24:25]")
    A(f"buffer_load_dwordx4 {v(VV0,4)}, v3, s[20:23], s28 offen offset:1024 sc1")
    A(f"buffer_load_dwordx4 {v(VV1,4)}, v3, s[20:23], s28 offen offset:1536 sc1")
    A("s_mov_b64 exec, -1")
    A("s_waitcnt vmcnt(0)")
    A(f"v_mfma_f32_32x32x16_bf16 {v(VS[0],16)}, {v(VK,4)}, {v(VQ,4)}, {v(VNEG,16)}")
    A("s_add_u32 s28, s28, 2048")
    A("s_sub_u32 s34, s34, 1")
    A("s_nop 7")
    A("s_nop 1")
    for r in range(16): A(f"v_exp_f32 {v(VS[0]+r)}, {v(VS[0]+r)}")
    A("s_nop 0")
    for r in range(8): A(f"v_cvt_pk_bf16_f32 {v(VP[0]+r)}, {v(VS[0]+2*r)}, {v(VS[0]+2*r+1)}")
    A("s_nop 1")
    A(f"v_mfma_f32_32x32x16_bf16 {v(VO,16)}, {v(VV0,4)}, {v(VP[0],4)}, {v(VO,16)}")
    A(f"v_mfma_f32_32x32x16_bf16 {v(VO,16)}, {v(VV1,4)}, {v(VP[0]+4,4)}, {v(VO,16)}")
    A("s_cmp_lg_u32 s34, 0")
    A(f"s_cbranch_scc1 {name}_sloop")
    A("s_nop 7")
    A("s_nop 3")
    A(f"s_branch {name}_astore")

def final(A, name):
    WR = 8; OR = 72; AC = 136
    A("s_and_b32 s24, s2, 3")
    A("s_lshl_b32 s24, s24, 3")
    A("s_bfe_u32 s25, s2, 0x30003")
    A("s_add_u32 s24, s24, s25")
    A("s_bfe_u32 s25, s2, 0x10002")
    A("s_lshl_b32 s25, s25, 2")
    A("s_lshr_b32 s26, s2, 6")
    A("s_add_u32 s25, s25, s26")
    A("s_and_b32 s26, s3, 1")
    A("s_bfe_u32 s27, s3, 0x10001")
    A("s_lshr_b32 s28, s3, 2")
    A("v_mov_b32 v160, 0")
    A("v_mov_b32 v161, 1")
    A("v_lshrrev_b32 v3, 5, v0")
    A("v_bfe_u32 v4, v0, 2, 2")
    A("v_lshl_add_u32 v4, v3, 2, v4")
    A("v_lshlrev_b32 v4, 7, v4")
    A("v_bfe_u32 v5, v0, 4, 1")
    A("v_lshlrev_b32 v5, 1, v5")
    A("v_bfe_u32 v6, v0, 1, 1")
    A("v_add_u32 v5, v5, v6")
    A("v_bfe_u32 v6, v0, 3, 1")
    A("v_xor_b32 v6, s27, v6")
    A("v_lshl_add_u32 v5, v6, 2, v5")
    A("v_lshl_add_u32 v4, v5, 4, v4")
    A("v_and_b32 v6, 1, v0")
    A("v_lshl_add_u32 v4, v6, 3, v4")
    A("s_lshl_b32 s29, s28, 15")
    A(f"s_add_u32 s29, s29, {BOFF}")
    A("v_add_u32 v4, s29, v4")
    A("v_and_b32 v5, 31, v0")
    A("s_lshl_b32 s29, s26, 5")
    A("v_add_u32 v5, s29, v5")
    A("s_lshl_b32 s29, s27, 6")
    A("s_lshl_b32 s30, s28, 5")
    A("s_add_u32 s29, s29, s30")
    A("v_lshl_add_u32 v6, v3, 4, s29")
    A(f"v_mul_u32_u24 v7, {GSTR}, v5")
    A("v_add_u32 v7, v7, v6")
    A(f"v_add_u32 v7, {GBUF}, v7")
    A("v_lshl_add_u32 v6, v5, 10, v6")
    A("s_lshl_b32 s30, s24, 16")
    A("s_lshl_b32 s31, s25, 7")
    A("s_add_u32 s30, s30, s31")
    A("buffer_load_dwordx4 v[152:155], v6, s[8:11], s30 offen")
    A("s_waitcnt vmcnt(1)")
    publish(A, C_O, 8, 160, 161, 162, 33, "s18", f"{name}_po")
    A("s_lshl_b32 s31, s24, 1")
    A("s_add_u32 s31, s31, s26")
    A("s_lshl_b32 s31, s31, 5")
    A("s_lshl_b32 s32, s28, 4")
    A("s_add_u32 s31, s31, s32")
    A("s_lshr_b32 s32, s24, 2")
    A("s_lshl_b32 s32, s32, 1")
    A("s_add_u32 s32, s32, s28")
    A("s_lshl_b32 s32, s32, 11")
    A(f"s_add_u32 s32, s32, {FL_O}")
    A("s_lshl_b32 s31, s31, 10")
    A(f"s_add_u32 s31, s31, {WS_O}")
    A("v_and_b32 v5, 15, v0")
    A("v_lshlrev_b32 v5, 7, v5")
    srd(A, 12, 44, 2048 * 1024)
    wait_cnt(A, C_G, 4, 160, 162, 33, sleep=2)
    lg = Cnt(A, "lgkmcnt", 15)
    for j in range(16):
        for p in range(2):
            A(f"ds_read_b64_tr_b16 {v(WR+4*j+2*p,2)}, v4 offset:{j*2048 + p*1024}"); lg.issue("w")
    A("ds_read_b128 v[156:159], v7"); lg.issue("w")
    A("s_lshl_b32 s33, s28, 2")
    A("v_mov_b32 v165, s33")
    A("s_and_b32 s33, s3, 3")
    A("s_cmp_eq_u32 s33, 0")
    A(f"s_cbranch_scc0 {name}_gw2")
    poll_lanes(A, 20, 5, "s32", 162, sleep=2)
    arrive(A, C_GO2, 165, 161)
    A(f"s_branch {name}_go2")
    A.label(f"{name}_gw2")
    wait_cnt(A, C_GO2, 1, 165, 162, 33, sleep=1)
    A("s_waitcnt vmcnt(0)")
    A.label(f"{name}_go2")
    tl_mark(A, 5)
    vm = Cnt(A, "vmcnt", 63)
    for j in range(16):
        if j % 4 == 0 and j: A("s_add_u32 s31, s31, 4096")
        A(f"buffer_load_dwordx4 {v(OR+4*j,4)}, v2, s[20:23], s31 offen offset:{(j%4)*1024} sc1"); vm.issue(("o", j))
    lg.wait_all()
    A("s_lshl_b32 s33, s3, 11")
    A(f"s_add_u32 s33, s33, {XCH}")
    A("v_add_u32 v3, s33, v2")
    A("v_xor_b32 v5, 8192, v3") if (XCH % 16384 == 0) else None
    if XCH % 16384:
        A("s_xor_b32 s33, s3, 4")
        A("s_lshl_b32 s33, s33, 11")
        A(f"s_add_u32 s33, s33, {XCH}")
        A("v_add_u32 v5, s33, v2")
    A("s_lshl_b32 s33, s3, 2")
    A("v_mov_b32 v163, s33")
    A("v_xor_b32 v164, 16, v163")
    for j in range(16):
        vm.wait(("o", j))
        A(f"v_mfma_f32_32x32x16_bf16 {v(AC,16)}, {v(WR+4*j,4)}, {v(OR+4*j,4)}, {v(AC,16) if j else 0}")
    A("s_cmp_eq_u32 s28, 0")
    A(f"s_cbranch_scc0 {name}_fk1")
    A("s_nop 7")
    A("s_nop 1")
    A(f"ds_write_b128 v3, {v(AC+8,4)}")
    A(f"ds_write_b128 v3, {v(AC+12,4)} offset:1024")
    A(f"s_branch {name}_fk")
    A.label(f"{name}_fk1")
    A("s_nop 7")
    A("s_nop 1")
    A(f"ds_write_b128 v3, {v(AC,4)}")
    A(f"ds_write_b128 v3, {v(AC+4,4)} offset:1024")
    A("s_waitcnt lgkmcnt(0)")
    for r in range(8): A(f"v_mov_b32 v{AC+r}, v{AC+8+r}")
    A.label(f"{name}_fk")
    A("s_waitcnt lgkmcnt(0)")
    A("s_mov_b64 exec, 1")
    A("ds_write_b32 v163, v161 offset:160")
    A("s_mov_b64 exec, -1")
    for i in range(4):
        A(f"v_lshlrev_b32 v{8+2*i}, 16, v{156+i}")
        A(f"v_and_b32 v{9+2*i}, 0xffff0000, v{156+i}")
        A(f"v_lshlrev_b32 v{16+2*i}, 16, v{152+i}")
        A(f"v_and_b32 v{17+2*i}, 0xffff0000, v{152+i}")
    wait_cnt(A, 160, 1, 164, 162, 33, sleep=0)
    A("ds_read_b128 v[24:27], v5")
    A("ds_read_b128 v[28:31], v5 offset:1024")
    A("s_waitcnt lgkmcnt(0)")
    for r in range(8): A(f"v_add_f32 v{AC+r}, v{AC+r}, v{24+r}")
    for i in range(4): A(f"v_cvt_pk_bf16_f32 v{24+i}, v{AC+2*i}, v{AC+2*i+1}")
    A("s_nop 1")
    A("v_permlane32_swap_b32 v24, v26")
    A("v_permlane32_swap_b32 v25, v27")
    A("s_nop 1")
    for i in range(4):
        A(f"v_lshlrev_b32 v{32+2*i}, 16, v{24+i}")
        A(f"v_and_b32 v{33+2*i}, 0xffff0000, v{24+i}")
    for i in range(8): A(f"v_mul_f32 v{32+i}, v{32+i}, v{8+i}")
    for i in range(4): A(f"v_cvt_pk_bf16_f32 v{24+i}, v{32+2*i}, v{33+2*i}")
    for i in range(4):
        A(f"v_lshlrev_b32 v{32+2*i}, 16, v{24+i}")
        A(f"v_and_b32 v{33+2*i}, 0xffff0000, v{24+i}")
    for i in range(8): A(f"v_add_f32 v{32+i}, v{32+i}, v{16+i}")
    for i in range(4): A(f"v_cvt_pk_bf16_f32 v{24+i}, v{32+2*i}, v{33+2*i}")
    A("buffer_store_dwordx4 v[24:27], v6, s[12:15], s30 offen")
    tl_end(A, 0, 20)
    tl_marks_out(A, 1, 6, 20)
    if asmlib.TIMELINE:
        A("s_lshl_b32 s58, s2, 3")
        A("s_add_u32 s58, s58, s3")
        A("s_lshl_b32 s58, s58, 9")
        A(f"s_add_u32 s58, s58, {100<<20}")
        A("v_lshlrev_b32 v1, 3, v0")
        A("buffer_store_dwordx2 v[166:167], v1, s[20:23], s58 offen")

class BBar:
    def __init__(self, name): self.n = 0; self.name = name; self.lg = None; self.boost = False
    def __call__(self, A):
        self.n += 1
        if self.boost: A("s_setprio 2")
        A("s_mov_b64 exec, 2")
        A("ds_add_u32 v7, v7 offset:64")
        A("s_mov_b64 exec, 1")
        A.label(f"{self.name}_bb{self.n}")
        A("ds_read_b32 v1, v7 offset:80")
        A("s_waitcnt lgkmcnt(0)")
        A("v_readfirstlane_b32 s56, v1")
        A(f"s_cmp_ge_u32 s56, {64*self.n}")
        A(f"s_cbranch_scc0 {self.name}_bb{self.n}")
        A("s_mov_b64 exec, -1")
        if self.boost: A("s_setprio 0")
        if self.lg is not None: self.lg.seq = []

def lb_role(A, name):
    A("s_sub_u32 s3, s3, 8")
    A("v_lshlrev_b32 v7, 2, v0")
    A("v_mov_b32 v1, 0")
    A("ds_write_b32 v7, v1")
    A("v_lshlrev_b32 v7, 4, v0")
    rc_qkv(A)
    A("v_lshrrev_b32 v4, 3, v0")
    A("v_and_b32 v5, 7, v0")
    A("v_lshrrev_b32 v6, 4, v0")
    A("v_xor_b32 v5, v5, v6")
    A("v_xor_b32 v8, 4, v5")
    A("s_lshl_b32 s28, s3, 15")
    A("v_lshlrev_b32 v4, 10, v4")
    A("v_add_u32 v4, s28, v4")
    A("v_lshl_add_u32 v60, v5, 4, v4")
    A("v_lshl_add_u32 v61, v8, 4, v4")
    A("v_add_u32 v61, 8192, v61")
    A("v_add_u32 v62, 16384, v60")
    A("v_add_u32 v63, 16384, v61")
    A("v_lshrrev_b32 v4, 2, v0")
    A("s_lshl_b32 s28, s3, 4")
    A("v_add_u32 v4, s28, v4")
    A("v_mul_u32_u24 v4, 3072, v4")
    A("v_and_b32 v5, 3, v0")
    A("v_lshl_add_u32 v64, v5, 4, v4")
    A("s_lshl_b32 s28, s25, 6")
    A("v_add_u32 v64, s28, v64")
    A("v_add_u32 v65, 1024, v64")
    A("v_add_u32 v66, 2048, v64")
    A("s_lshl_b32 s70, s24, 1")
    A("s_add_u32 s70, s70, s25")
    A("s_and_b32 s70, s70, 7")
    A("s_lshl_b32 s71, s24, 17")
    A("s_lshl_b32 s72, s3, 12")
    A(f"s_add_u32 s72, s72, {K1B}")
    A("s_lshl_b32 s73, s3, 10")
    A(f"s_add_u32 s73, s73, {K1B + 16384}")
    A(f"s_mov_b32 s74, {2*K1_SLOT}")
    A("s_waitcnt lgkmcnt(0)")
    A("s_barrier")
    srd(A, 60, 4, 2048 * 1024)
    srd(A, 64, 6, 512 * 3072)
    srd(A, 20, 16, WS_END)
    srd(A, 52, 18, 256)
    def ldma():
        A("s_lshl_b32 s75, s70, 7")
        A("s_add_u32 s75, s75, s71")
        A(f"s_mul_i32 s76, s70, {64*3072}")
        A("s_add_u32 s70, s70, 1")
        A("s_and_b32 s70, s70, 7")
        A("s_add_u32 s77, s72, s74")
        A("s_add_u32 s78, s73, s74")
        for e in range(4):
            A(f"s_add_u32 m0, s77, {e*1024}")
            A("s_nop 0")
            A(f"buffer_load_dwordx4 v{60+e}, s[60:63], s75 offen lds")
        for T_ in range(3):
            A(f"s_add_u32 m0, s78, {T_*4096}")
            A("s_nop 0")
            A(f"buffer_load_dwordx4 v{64+T_}, s[64:67], s76 offen lds")
        A(f"s_add_u32 s74, s74, {K1_SLOT}")
        A(f"s_cmp_eq_u32 s74, {K1_SLOT*K1_NS}")
        A("s_cselect_b32 s74, 0, s74")
    A("s_mov_b32 s79, 0")
    A.label(f"{name}_lpro")
    ldma()
    A("s_add_u32 s79, s79, 1")
    A(f"s_cmp_lt_u32 s79, {K1_PRO}")
    A(f"s_cbranch_scc1 {name}_lpro")
    A("s_mov_b32 s4, s48")
    A("s_mov_b32 s5, s49")
    A("s_mov_b32 s6, s50")
    A("s_mov_b32 s7, s51")
    bar = BBar(name)
    def prologue(A, dma, vm):
        issued = K1_PRO; seq = [("k", st) for st in range(K1_PRO) for _ in range(7)]
        A("s_lshl_b32 s36, s24, 11")
        A(f"s_add_u32 s36, s36, {FL_X}")
        A("v_and_b32 v1, 15, v0")
        A("v_lshlrev_b32 v1, 7, v1")
        A("v_mov_b32 v67, 0")
        A("s_and_b32 s37, s24, 7")
        A("s_lshl_b32 s37, s37, 1")
        A("s_and_b32 s38, s3, 1")
        A("s_add_u32 s37, s37, s38")
        A("s_lshl_b32 s37, s37, 5")
        A("v_and_b32 v68, 31, v0")
        A("v_add_u32 v68, s37, v68")
        A("v_mul_u32_u24 v68, 3584, v68")
        A("v_add_u32 v68, s28, v68")
        A("v_lshrrev_b32 v69, 5, v0")
        A("v_lshl_add_u32 v69, v69, 7, v68")
        TJ = int(os.environ.get("TJ", "-1"))
        for j in range(8):
            idx = max(i for i, t in enumerate(seq) if t == ("k", j))
            A(f"s_waitcnt vmcnt({len(seq) - 1 - idx})")
            A("s_barrier")
            if issued < 8 and issued - 4 <= j:
                ldma(); seq += [("k", issued)] * 7; issued += 1
                if j == TJ:
                    A("buffer_load_dword v70, v69, s[8:11], 0 offen")
                    A("buffer_load_dword v71, v68, s[8:11], 0 offen offset:220")
                    seq += [("t", 0)] * 2
            elif j == 6:
                A("buffer_load_dwordx2 v[12:13], v67, s[52:55], 0 offen sc1")
                A("buffer_load_dwordx2 v[14:15], v1, s[20:23], s36 offen sc1")
                dma(0); seq += [("g", 0)] * 9
        assert issued == 8
        A("s_waitcnt vmcnt(7)")
        A("v_readfirstlane_b32 s68, v12")
        A("v_readfirstlane_b32 s69, v13")
        A("v_cmp_ne_u64 vcc, v[12:13], v[14:15]")
        A("s_cmp_eq_u32 s68, 0")
        A(f"s_cbranch_scc1 {name}_xslow")
        A("s_cmp_eq_u64 vcc, 0")
        A(f"s_cbranch_scc1 {name}_xok")
        A.label(f"{name}_xslow")
        wait_ready(A, 67, 12, 37)
        poll_lanes(A, 20, 1, "s36", 12, sleep=1)
        A.label(f"{name}_xok")
        if os.environ.get("BWAIT"):
            wait_cnt(A, C_QKV, 8, 67, 71, 37, sleep=2)
        tl_mark(A, 4)
    def wait_slot2(A, lg):
        A("v_mov_b32 v0, 0")
        wait_cnt(A, C_WFREE, 8, 0, 1, 37)
        lg.seq = []
    ffn.gu_body(A, name + "_gu", bar, st_flags="sc1", lds0=BOFF, x_flags=os.environ.get("XFL", "sc1"), prologue=prologue, wait_slot2=wait_slot2)
    A("s_waitcnt vmcnt(0)")
    bar(A)
    A("s_cmp_eq_u32 s3, 0")
    A(f"s_cbranch_scc0 {name}_noflag")
    A("s_lshl_b32 s34, s24, 4")
    A("s_add_u32 s34, s34, s25")
    A("s_lshl_b32 s34, s34, 7")
    A(f"s_add_u32 s34, s34, {FL_H}")
    A("v_mov_b32 v1, 0")
    A("s_mov_b64 exec, 1")
    flag_store(A, 1, 2, "s34")
    A("s_mov_b64 exec, -1")
    A.label(f"{name}_noflag")
    tl_mark(A, 1)
    A("s_mov_b32 s4, s46")
    A("s_mov_b32 s5, s47")
    A("v_lshrrev_b32 v0, 4, v7")
    ctx = ffn.sk_body(A, name + "_dn", bar, 28, WS_H, 112 * 1024, 1792 * 1024, "g", ld_flags="sc1", lds0=BOFF)
    def wait_act(A):
        A("s_lshr_b32 s34, s24, 1")
        A("s_lshl_b32 s34, s34, 11")
        A("s_lshl_b32 s35, s3, 9")
        A("s_add_u32 s34, s34, s35")
        A(f"s_add_u32 s34, s34, {FL_H}")
        A("v_and_b32 v1, 3, v0")
        A("v_lshlrev_b32 v1, 7, v1")
        poll_lanes(A, 20, 1, "s34", 16, sleep=4)
        tl_mark(A, 2)
        ctx["vm"].seq = []
    bar.lg = ctx["lg"]
    def after_red_reads(A):
        bar(A)
        srd(A, 8, 42, 512 * 1024)
        A("s_lshl_b32 s27, s3, 17")
        A("s_lshl_b32 s28, s3, 14")
        A(f"s_add_u32 s28, s28, {BOFF}")
        for j in range(8):
            A(f"s_add_u32 s31, s27, {j*16384}")
            A(f"s_add_u32 m0, s28, {j*2048}")
            A("s_nop 0")
            A("buffer_load_dwordx4 v8, s[8:11], s31 offen lds")
            A(f"s_add_u32 m0, s28, {j*2048 + 1024}")
            A("s_nop 0")
            A("buffer_load_dwordx4 v9, s[8:11], s31 offen lds")
    ffn.sk_main(A, name + "_dn", bar, 28, ctx, "glds", wait_act=wait_act, lds0=BOFF, after_red_reads=after_red_reads, gbuf=(GBUF, GSTR))
    A("s_waitcnt vmcnt(0) lgkmcnt(0)")
    A("v_mov_b32 v1, 0")
    A("v_mov_b32 v2, 1")
    arrive(A, C_G, 1, 2)
    A("s_add_u32 s3, s3, 8")
    tl_end(A, 8, 20)
    tl_marks_out(A, 9, 7 if os.environ.get('GUT') else 5, 20)

def gen(A, name=NAME):
    kernel_begin(A, name)
    A("s_cmp_ge_u32 s2, 256")
    A(f"s_cbranch_scc1 F_end")
    if os.environ.get("PERM"):
        A("s_lshr_b32 s3, s2, 5")
        A("s_and_b32 s2, s2, 31")
        A("s_lshl_b32 s2, s2, 3")
        A("s_or_b32 s2, s2, s3")
    tl_begin(A)
    A("s_load_dwordx4 s[4:7], s[0:1], 0")
    A("s_load_dwordx2 s[42:43], s[0:1], 16")
    A("s_load_dwordx4 s[48:51], s[0:1], 32")
    A("s_load_dwordx2 s[46:47], s[0:1], 48")
    A("s_load_dwordx2 s[44:45], s[0:1], 56")
    A("s_load_dwordx2 s[18:19], s[0:1], 64")
    A("s_load_dwordx2 s[16:17], s[0:1], 72")
    A("v_lshrrev_b32 v1, 6, v0")
    A("v_and_b32 v0, 63, v0")
    A("s_nop 0")
    A("v_readfirstlane_b32 s3, v1")
    A("s_cmp_lt_u32 s3, 8")
    A("s_cbranch_scc0 F_lb")
    ca_role(A, "F")
    A.label("F_lb")
    ffn.PRIO = True
    A("s_setprio 2")
    asmlib.MARK_OFF = bool(os.environ.get("GUT"))
    lb_role(A, "F")
    ffn.PRIO = False
    A.label("F_end")
    A("s_endpgm")
```

```python
from asmlib import *
import asmlib, ffn, os, struct
def f2u(x): return struct.unpack("<I", struct.pack("<f", x))[0]
LOG2E = 1.4426950408889634
QSCALE = 0.25 * LOG2E

NAME = "recurrent_scan__mha_block__glu_gated_glu__prompt_kernel"
BOFF = 256
WQ = BOFF + 2 * ffn.GU_SLOT
LNB = BOFF
ABASE = BOFF + 3 * ffn.GU_SLOT
NCH = 6
XCH = ABASE + NCH * 8192
GBUF = XCH + 16384
GSTR = 144
K1_SLOT = 28672; K1_NS = 5; K1_D = 4
K1B = WQ - 2 * K1_SLOT
K1T = K1B + K1_SLOT * K1_NS
LNB = K1T + 5120
K1_PRO = int(os.environ.get('K1_PRO', '2'))
F_LDS = 163840
assert WQ + 98304 <= F_LDS and GBUF + 64 * GSTR <= F_LDS
C_LN, C_XF, C_W, C_WFREE, C_G = 0, 4, 8, 12, 16
F_VGPR = 168
F_THREADS = 768
WS_FLAG = 30 << 20
WS_ST = 29 << 20
FL_X = WS_FLAG
FL_A = WS_FLAG + 32768
FL_H = WS_FLAG + 65536
FL_O = WS_FLAG + 98304
C_QKV, C_O, C_GO, C_GO2 = 20, 24, 28, 32

def flag_store(A, vz, vt, soff):
    A(f"v_mov_b32 v{vt}, s68")
    A(f"v_mov_b32 v{vt+1}, s69")
    A(f"buffer_store_dwordx2 {v(vt,2)}, v{vz}, s[20:23], {soff} offen sc1")

def publish(A, cnt_off, n, vz, vone, vt, st, soff, lbl):
    A("s_mov_b64 exec, 1")
    A(f"ds_add_rtn_u32 v{vt}, v{vz}, v{vone} offset:{cnt_off}")
    A("s_waitcnt lgkmcnt(0)")
    A(f"v_readfirstlane_b32 s{st}, v{vt}")
    A(f"s_cmp_eq_u32 s{st}, {n-1}")
    A(f"s_cbranch_scc0 {lbl}")
    flag_store(A, vz, vt, soff)
    A.label(lbl)
    A("s_mov_b64 exec, -1")

def wait_ready(A, vz, vt, st):
    _lbl[0] += 1
    L = f"Lr{_lbl[0]}"
    A.label(L)
    A(f"buffer_load_dwordx2 {v(vt,2)}, v{vz}, s[52:55], 0 offen sc1")
    A("s_waitcnt vmcnt(0)")
    A(f"v_readfirstlane_b32 s68, v{vt}")
    A(f"v_readfirstlane_b32 s69, v{vt+1}")
    A("s_cmp_eq_u32 s68, 0")
    A(f"s_cbranch_scc1 {L}")

_lbl = [0]
def arrive(A, off, vz, vone):
    A("s_mov_b64 exec, 1")
    A(f"ds_add_u32 v{vz}, v{vone} offset:{off}")
    A("s_mov_b64 exec, -1")
def wait_cnt(A, off, n, vz, vt, st, sleep=1):
    _lbl[0] += 1
    L = f"Lw{_lbl[0]}"
    A.label(L)
    A(f"ds_read_b32 v{vt}, v{vz} offset:{off}")
    A("s_waitcnt lgkmcnt(0)")
    A(f"v_readfirstlane_b32 s{st}, v{vt}")
    A(f"s_cmp_ge_u32 s{st}, {n}")
    A(f"s_cbranch_scc1 {L}x")
    if sleep: A(f"s_sleep {sleep}")
    A(f"s_branch {L}")
    A.label(L + "x")

def poll_lanes(A, srd_, voff, soff, vt, sleep=2):
    _lbl[0] += 1
    L = f"Lq{_lbl[0]}"
    A.label(L)
    A(f"buffer_load_dwordx2 {v(vt,2)}, v{voff}, s[{srd_}:{srd_+3}], {soff} offen sc1")
    A("s_waitcnt vmcnt(0)")
    A(f"v_cmp_ne_u64 vcc, s[68:69], {v(vt,2)}")
    A("s_nop 1")
    A("s_cmp_eq_u64 vcc, 0")
    A(f"s_cbranch_scc1 {L}x")
    A(f"s_sleep {sleep}")
    A(f"s_branch {L}")
    A.label(L + "x")

def rc_qkv(A):
    A("s_bfe_u32 s24, s2, 0x20001")
    A("s_lshl_b32 s24, s24, 2")
    A("s_lshr_b32 s25, s2, 6")
    A("s_add_u32 s24, s24, s25")
    A("s_and_b32 s25, s2, 1")
    A("s_lshl_b32 s25, s25, 3")
    A("s_bfe_u32 s26, s2, 0x30003")
    A("s_add_u32 s25, s25, s26")

VQ = 8; VNEG = 16; VS = [32, 48]; VP = [64, 72]; VO = 80; VK = 96; VV0 = 100; VV1 = 104

def ca_role(A, name):
    rc_qkv(A)
    A("v_lshlrev_b32 v2, 4, v0")
    A("v_mov_b32 v118, 0")
    A("v_mov_b32 v119, 1")
    A("s_lshl_b32 s30, s24, 7")
    A("s_lshl_b32 s28, s25, 3")
    A("s_add_u32 s30, s30, s28")
    A("s_add_u32 s31, s30, s3")
    A("s_lshl_b32 s31, s31, 10")
    A("s_waitcnt lgkmcnt(0)")
    srd(A, 8, 4, 2048 * 1024)
    srd(A, 20, 16, WS_END)
    srd(A, 52, 18, 256)
    A("buffer_load_dwordx4 v[164:167], v2, s[8:11], s31 offen")
    A("s_or_b32 s28, s2, s3")
    A("s_cmp_eq_u32 s28, 0")
    A(f"s_cbranch_scc0 {name}_nz")
    A("s_memrealtime s[68:69]")
    A("s_waitcnt lgkmcnt(0)")
    A("s_or_b32 s68, s68, 1")
    A("v_mov_b32 v24, s68")
    A("v_mov_b32 v25, s69")
    A("s_mov_b64 exec, 1")
    A("buffer_store_dwordx2 v[24:25], v118, s[52:55], 0 offen sc1")
    A("s_mov_b64 exec, -1")
    A.label(f"{name}_nz")
    A("s_barrier")
    A("s_mul_i32 s28, s3, 1040")
    A(f"s_add_u32 s28, s28, {LNB}")
    A("v_add_u32 v140, s28, v2")
    A("v_and_b32 v141, 7, v0")
    A("v_mul_u32_u24 v142, 1040, v141")
    A("v_lshrrev_b32 v143, 3, v0")
    A("s_lshl_b32 s28, s3, 3")
    A("v_add_u32 v143, s28, v143")
    A("v_lshl_add_u32 v142, v143, 4, v142")
    A(f"v_add_u32 v142, {LNB}, v142")
    A("v_lshlrev_b32 v143, 9, v143")
    A("v_lshl_add_u32 v143, v141, 4, v143")
    A("s_lshr_b32 s28, s30, 5")
    A("s_lshl_b32 s28, s28, 15")
    A("s_and_b32 s29, s30, 31")
    A("s_lshl_b32 s29, s29, 4")
    A("s_add_u32 s28, s28, s29")
    A(f"s_add_u32 s28, s28, {WS_XF}")
    k1_setup(A)
    A("s_or_b32 s29, s2, s3")
    A("s_cmp_eq_u32 s29, 0")
    A(f"s_cbranch_scc1 {name}_w0")
    A("s_waitcnt vmcnt(0)")
    A.label(f"{name}_w0")
    A("s_waitcnt vmcnt(1)")
    T = 144
    for i in range(4):
        A(f"v_lshlrev_b32 v{T+2*i}, 16, v{164+i}")
        A(f"v_and_b32 v{T+2*i+1}, 0xffff0000, v{164+i}")
    A(f"v_add_f32 v160, v{T}, v{T+1}")
    A(f"v_mul_f32 v161, v{T}, v{T}")
    A(f"v_fmac_f32 v161, v{T+1}, v{T+1}")
    for i in range(2, 8):
        A(f"v_add_f32 v160, v160, v{T+i}")
        A(f"v_fmac_f32 v161, v{T+i}, v{T+i}")
    A("s_nop 0")
    for m in ("quad_perm:[1,0,3,2]", "quad_perm:[2,3,0,1]", "row_half_mirror", "row_mirror"):
        A(f"v_add_f32_dpp v160, v160, v160 {m} row_mask:0xf bank_mask:0xf")
        A(f"v_add_f32_dpp v161, v161, v161 {m} row_mask:0xf bank_mask:0xf")
        A("s_nop 0")
    for op in ("v_permlane16_swap_b32", "v_permlane32_swap_b32"):
        A("v_mov_b32 v162, v160")
        A("v_mov_b32 v163, v161")
        A("s_nop 0")
        A(f"{op} v162, v160")
        A(f"{op} v163, v161")
        A("s_nop 0")
        A("v_add_f32 v160, v160, v162")
        A("v_add_f32 v161, v161, v163")
    A(f"v_mul_f32 v160, {hex(f2u(1/512))}, v160")
    A(f"v_mul_f32 v161, {hex(f2u(1/512))}, v161")
    A("v_fma_f32 v161, -v160, v160, v161")
    ln_scalars(A, 160, 161, 162)
    A("s_lshr_b32 s29, s31, 7")
    A(f"s_add_u32 s29, s29, {WS_ST}")
    A("s_mov_b64 exec, 1")
    A("buffer_store_dwordx2 v[160:161], v118, s[20:23], s29 offen sc1")
    A("s_mov_b64 exec, -1")
    for i in range(8): A(f"v_sub_f32 v{T+i}, v{T+i}, v160")
    for i in range(4): A(f"v_cvt_pk_bf16_f32 v{164+i}, v{T+2*i}, v{T+2*i+1}")
    for i in range(4):
        A(f"v_lshlrev_b32 v{T+2*i}, 16, v{164+i}")
        A(f"v_and_b32 v{T+2*i+1}, 0xffff0000, v{164+i}")
    for i in range(8): A(f"v_mul_f32 v{T+i}, v{T+i}, v161")
    for i in range(4): A(f"v_cvt_pk_bf16_f32 v{164+i}, v{T+2*i}, v{T+2*i+1}")
    A("ds_write_b128 v140, v[164:167]")
    A("s_waitcnt lgkmcnt(0)")
    arrive(A, C_LN, 118, 119)
    wait_cnt(A, C_LN, 8, 118, 139, 29, sleep=0)
    A("ds_read_b128 v[164:167], v142")
    A("s_waitcnt lgkmcnt(0)")
    A("buffer_store_dwordx4 v[164:167], v143, s[20:23], s28 offen sc1")
    tl_mark(A, 0)
    A("buffer_load_dwordx2 v[116:117], v118, s[52:55], 0 offen sc1")
    A("s_cmp_lt_u32 s3, 4")
    A(f"s_cbranch_scc0 {name}_kv")
    k1_compute(A, name, 0)
    A(f"s_branch {name}_attn1")
    A.label(f"{name}_kv")
    k1_compute(A, name, 1)
    A.label(f"{name}_attn1")
    A("s_lshl_b32 s28, s25, 4")
    A("s_add_u32 s28, s28, s24")
    A("s_lshl_b32 s28, s28, 7")
    A(f"s_add_u32 s28, s28, {FL_A}")
    A("v_mov_b32 v118, 0")
    A("v_mov_b32 v119, 1")
    wait_ready(A, 118, 6, 29)
    A("s_cmp_eq_u32 s57, 0")
    A(f"s_cbranch_scc1 {name}_xdone")
    A("s_mov_b64 exec, 1")
    flag_store(A, 118, 6, "s59")
    A("s_mov_b64 exec, -1")
    A.label(f"{name}_xdone")
    publish(A, C_QKV, 8, 118, 119, 6, 29, "s28", f"{name}_pa")
    A("s_setprio 0")
    tl_mark(A, 2)
    A("v_and_b32 v116, 15, v0")
    A("v_lshlrev_b32 v116, 7, v116")
    A.label(f"{name}_attn2")
    attn(A, name)


AC0, AC1 = 32, 48
XF = 64; WFK = 80; VSEL = 112; VCS = 120; VS1, VS2 = 124, 126

def xpub(A, L):
    A("s_mov_b64 exec, 1")
    A("s_waitcnt vmcnt(0)")
    A("v_readfirstlane_b32 s29, v116")
    A("s_cmp_eq_u32 s29, 0")
    A(f"s_cbranch_scc1 {L}_c")
    A("buffer_store_dwordx2 v[116:117], v118, s[20:23], s59 offen sc1")
    A("s_mov_b32 s57, 0")
    A(f"s_branch {L}_d")
    A.label(f"{L}_c")
    A("buffer_load_dwordx2 v[116:117], v118, s[52:55], 0 offen sc1")
    A.label(f"{L}_d")
    A("s_mov_b64 exec, -1")

def k1_setup(A):
    A("s_cmp_eq_u32 s3, 7")
    A("s_cselect_b32 s57, 5, 0")
    A("s_lshl_b32 s59, s24, 4")
    A("s_add_u32 s59, s59, s25")
    A("s_lshl_b32 s59, s59, 7")
    A(f"s_add_u32 s59, s59, {FL_X}")
    A("s_lshl_b32 s60, s24, 11")
    A(f"s_add_u32 s60, s60, {FL_X}")
    A("v_and_b32 v138, 15, v0")
    A("v_lshlrev_b32 v138, 7, v138")
    A("s_lshl_b32 s61, s24, 10")
    A("s_and_b32 s62, s3, 3")
    A("s_lshl_b32 s62, s62, 8")
    A("s_add_u32 s61, s61, s62")
    A(f"s_add_u32 s61, s61, {WS_ST}")
    A("v_and_b32 v23, 31, v0")
    A("v_lshlrev_b32 v23, 3, v23")
    A("s_mov_b32 s62, 0")
    A("s_and_b32 s26, s3, 3")
    A("v_and_b32 v4, 31, v0")
    A("v_lshrrev_b32 v5, 5, v0")
    A("v_bfe_u32 v6, v0, 1, 3")
    A("v_xor_b32 v6, v5, v6")
    A("s_lshl_b32 s34, s26, 12")
    A(f"s_add_u32 s34, s34, {K1B}")
    A("v_lshlrev_b32 v4, 7, v4")
    A("v_add_u32 v4, s34, v4")
    for s_ in range(4):
        A(f"v_xor_b32 v7, {2*s_}, v6")
        A(f"v_lshl_add_u32 v{11+s_}, v7, 4, v4")
    A("v_bfe_u32 v6, v0, 2, 2")
    A("v_lshl_add_u32 v6, v5, 3, v6")
    A("v_lshlrev_b32 v6, 6, v6")
    A("v_bfe_u32 v7, v0, 4, 1")
    A("v_lshl_add_u32 v6, v7, 5, v6")
    A("v_and_b32 v7, 3, v0")
    A("v_lshl_add_u32 v6, v7, 3, v6")
    A(f"v_add_u32 v15, {K1B + 16384}, v6")
    for r in range(32): A(f"v_mov_b32 v{AC0+r}, 0")
    for r in range(VCS, 128): A(f"v_mov_b32 v{r}, 0")
    A("v_and_b32 v6, 15, v0")
    A("v_bfe_u32 v7, v0, 4, 1")
    A("v_cmp_eq_u32 vcc, v6, v7")
    A("v_mov_b32 v6, 0x3f803f80")
    A("s_nop 0")
    A(f"v_cndmask_b32 v{VSEL}, 0, v6, vcc")
    for r in range(1, 4): A(f"v_mov_b32 v{VSEL+r}, v{VSEL}")
    A(f"s_mov_b32 s36, {2*K1_SLOT}")
    A("s_mov_b32 s39, 8")

def k1_compute(A, name, role):
    L = f"{name}_c{role}"
    lg = Cnt(A, "lgkmcnt", 15)
    WF = WFK
    nt = 2 if role == 0 else 1
    t0 = 0 if role == 0 else 2
    TM = 128
    A("s_setprio 3" if role == 1 else "s_setprio 2")
    def addrs():
        for i in range(5): A(f"v_add_u32 v{16+i}, s36, v{11+i}")
        A(f"s_add_u32 s36, s36, {K1_SLOT}")
        A(f"s_cmp_eq_u32 s36, {K1_SLOT*K1_NS}")
        A("s_cselect_b32 s36, 0, s36")
    def reads(s_):
        A(f"ds_read_b128 {v(XF+4*s_,4)}, v{16+s_}"); lg.issue(("x", s_))
        for T_ in range(nt):
            for p in range(2):
                A(f"ds_read_b64_tr_b16 {v(WF+8*s_+4*T_+2*p,2)}, v20 offset:{(t0+T_)*4096 + (16*s_+4*p)*64}")
                lg.issue(("w", s_, T_))
    def stats(s_, lo, hi):
        return
        for i in range(lo, hi):
            A(f"v_lshlrev_b32 v{TM+2*i}, 16, v{XF+4*s_+i}")
            A(f"v_and_b32 v{TM+2*i+1}, 0xffff0000, v{XF+4*s_+i}")
        for i in range(2 * lo, 2 * hi):
            A(f"v_add_f32 v{VS1+i%2}, v{VS1+i%2}, v{TM+i}")
            A(f"v_fmac_f32 v{VS2+i%2}, v{TM+i}, v{TM+i}")
    def step(s_):
        X = v(XF + 4 * s_, 4)
        if role == 0:
            lg.wait(("w", s_, 0))
            A(f"v_mfma_f32_32x32x16_bf16 {v(AC0,16)}, {v(WF+8*s_,4)}, {X}, {v(AC0,16)}")
            stats(s_, 0, 1)
            lg.wait(("w", s_, 1))
            A(f"v_mfma_f32_32x32x16_bf16 {v(AC1,16)}, {v(WF+8*s_+4,4)}, {X}, {v(AC1,16)}")
            stats(s_, 1, 2)
        else:
            lg.wait(("w", s_, 0))
            A(f"v_mfma_f32_32x32x16_bf16 {v(AC0,16)}, {X}, {v(WF+8*s_,4)}, {v(AC0,16)}")
            stats(s_, 2, 4)
    def colsum(half):
        cands = [(0, 0), (1, 4)] if role == 0 else [(2, 0)]
        for tbv, off in cands:
            A(f"s_cmp_eq_u32 s26, {tbv}")
            A(f"s_cbranch_scc0 {L}_nocs{half}_{tbv}")
            for s_ in (2 * half, 2 * half + 1):
                A(f"v_mfma_f32_16x16x32_bf16 {v(VCS,4)}, {v(VSEL,4)}, {v(WF+8*s_+off,4)}, {v(VCS,4)}")
            A.label(f"{L}_nocs{half}_{tbv}")
    addrs()
    A("s_barrier")
    reads(0); reads(1); reads(2); reads(3)
    top_state = list(lg.seq)
    A.label(f"{L}_loop")
    step(0); step(1)
    colsum(0)
    A("s_sub_u32 s39, s39, 1")
    A("s_cmp_eq_u32 s39, 0")
    A(f"s_cbranch_scc1 {L}_last")
    addrs()
    A("s_cmp_eq_u32 s39, 6")
    A(f"s_cbranch_scc0 {L}_noxf")
    A("s_waitcnt vmcnt(0)")
    A.label(f"{L}_noxf")
    A("s_cmp_eq_u32 s39, 2")
    A(f"s_cbranch_scc0 {L}_ns1")
    A("buffer_load_dwordx2 v[128:129], v118, s[52:55], 0 offen sc1")
    A("buffer_load_dwordx2 v[130:131], v138, s[20:23], s60 offen sc1")
    A.label(f"{L}_ns1")
    A("s_cmp_eq_u32 s39, 1")
    A(f"s_cbranch_scc0 {L}_ns2")
    A("s_waitcnt vmcnt(0)")
    A("v_readfirstlane_b32 s29, v128")
    A("v_cmp_ne_u64 vcc, v[128:129], v[130:131]")
    A("s_cmp_eq_u32 s29, 0")
    A(f"s_cbranch_scc1 {L}_ns2")
    A("s_cmp_eq_u64 vcc, 0")
    A(f"s_cbranch_scc0 {L}_ns2")
    A(f"buffer_load_dwordx2 {v(VS1,2)}, v23, s[20:23], s61 offen sc1")
    A("s_mov_b32 s62, 1")
    A.label(f"{L}_ns2")
    if role == 1:
        A("s_cmp_gt_u32 s39, s57")
        A(f"s_cbranch_scc1 {L}_nopub")
        xpub(A, f"{L}_xp")
        A.label(f"{L}_nopub")
    lg.wait_all()
    A("s_barrier")
    reads(0); reads(1)
    step(2); step(3)
    colsum(1)
    reads(2); reads(3)
    assert lg.seq == top_state, (lg.seq, top_state)
    A(f"s_branch {L}_loop")
    A.label(f"{L}_last")
    lg.wait_all()
    L = L + "x"
    step(2); step(3)
    colsum(1)
    tl_mark(A, 1)
    TB = K1T
    A("v_lshlrev_b32 v4, 2, v0")
    A("v_cmp_gt_u32 vcc, 16, v0")
    if role == 0:
        A("s_lshl_b32 s34, s26, 7")
        A("s_cmp_lt_u32 s26, 2")
    else:
        A("s_mov_b32 s34, 256")
        A("s_cmp_eq_u32 s26, 2")
    A("s_cselect_b32 s34, s34, 512")
    A("v_mov_b32 v5, 512")
    A("v_mov_b32 v6, s34")
    A("v_cndmask_b32 v5, v5, v6, vcc")
    A("v_add_u32 v5, v5, v4")
    A(f"v_add_u32 v5, {TB}, v5")
    A("s_nop 1")
    A(f"ds_write_b32 v5, v{VCS}")
    A(f"ds_write_b32 v5, v{VCS+1} offset:64")
    A("v_and_b32 v6, 31, v0")
    A("s_lshl_b32 s34, s26, 8")
    A(f"s_add_u32 s34, s34, {TB + 1024}")
    A("v_lshl_add_u32 v7, v6, 3, s34")
    A("v_lshlrev_b32 v6, 2, v6")
    A("v_lshrrev_b32 v8, 5, v0")
    A("v_lshlrev_b32 v8, 4, v8")
    A("s_lshl_b32 s37, s25, 7")
    A("s_lshl_b32 s35, s24, 2")
    A("s_add_u32 s37, s37, s35")
    A("s_add_u32 s37, s37, s26")
    A("s_waitcnt lgkmcnt(0)")
    arrive(A, C_WFREE, 118, 119)
    wait_cnt(A, C_WFREE, 8, 118, 9, 29, sleep=0)
    lg.seq = []
    if role == 0:
        A(f"v_add_u32 v8, {TB}, v8")
        for T_ in range(2):
            for g in range(4):
                A(f"ds_read_b128 {v(WF+16*T_+4*g,4)}, v8 offset:{T_*128 + g*32}"); lg.issue(("c", T_))
    else:
        A(f"v_add_u32 v9, {TB}, v6")
        A("ds_read_b32 v4, v9 offset:256"); lg.issue("c")
    A("s_cmp_eq_u32 s62, 1")
    A(f"s_cbranch_scc1 {L}_sok")
    if role == 1:
        A("s_cmp_eq_u32 s57, 0")
        A(f"s_cbranch_scc1 {L}_np")
        wait_ready(A, 118, 128, 29)
        A("s_mov_b64 exec, 1")
        flag_store(A, 118, 128, "s59")
        A("s_mov_b64 exec, -1")
        A("s_mov_b32 s57, 0")
        A.label(f"{L}_np")
    wait_ready(A, 118, 128, 29)
    poll_lanes(A, 20, 138, "s60", 128, sleep=1)
    A(f"buffer_load_dwordx2 {v(VS1,2)}, v23, s[20:23], s61 offen sc1")
    A.label(f"{L}_sok")
    A("s_waitcnt vmcnt(0)")
    M, RS = VS1, VS1 + 1
    if role == 0:
        A("s_lshl_b32 s35, s37, 11")
        A(f"s_add_u32 s36, s35, {WS_KV + 131072}")
        A(f"s_add_u32 s35, s35, {WS_KV}")
        A(f"v_mul_f32 v6, {hex(f2u(QSCALE))}, v{RS}")
        lg.wait(("c", 1))
        for r in range(16):
            A(f"v_fma_f32 v{AC1+r}, -v{M}, v{WF+16+r}, v{AC1+r}")
            A(f"v_mul_f32 v{AC1+r}, v{AC1+r}, v{RS}")
        for i in range(8): A(f"v_cvt_pk_bf16_f32 v{XF+8+i}, v{AC1+2*i}, v{AC1+2*i+1}")
        A(f"buffer_store_dwordx4 {v(XF+8,4)}, v2, s[20:23], s35 offen sc1")
        A(f"buffer_store_dwordx4 {v(XF+12,4)}, v2, s[20:23], s36 offen sc1")
        A("s_lshl_b32 s35, s37, 10")
        A(f"s_add_u32 s36, s35, {WS_Q + 65536}")
        for r in range(16):
            A(f"v_fma_f32 v{AC0+r}, -v{M}, v{WF+r}, v{AC0+r}")
            A(f"v_mul_f32 v{AC0+r}, v{AC0+r}, v6")
        for i in range(8): A(f"v_cvt_pk_bf16_f32 v{XF+i}, v{AC0+2*i}, v{AC0+2*i+1}")
        A(f"buffer_store_dwordx4 {v(XF,4)}, v2, s[20:23], s35 offen sc1")
        A(f"buffer_store_dwordx4 {v(XF+4,4)}, v2, s[20:23], s36 offen sc1")
    else:
        A("s_lshl_b32 s34, s3, 8")
        A(f"s_add_u32 s34, s34, {TB + 3072}")
        A("v_add_u32 v6, s34, v6")
        A("v_add_u32 v8, s34, v8")
        A(f"ds_write_b32 v6, v{M}"); lg.issue("w")
        A(f"ds_write_b32 v6, v{RS} offset:128"); lg.issue("w")
        for g in range(4):
            A(f"ds_read_b128 {v(WF+4*g,4)}, v8 offset:{g*32}"); lg.issue("m2")
        for g in range(4):
            A(f"ds_read_b128 {v(WF+16+4*g,4)}, v8 offset:{128 + g*32}"); lg.issue("rs")
        A("v_bfe_u32 v7, v0, 4, 1")
        A("v_lshlrev_b32 v7, 17, v7")
        A("v_lshrrev_b32 v5, 5, v0")
        A("v_lshl_add_u32 v7, v5, 8, v7")
        A("v_and_b32 v5, 15, v0")
        A("v_lshl_add_u32 v7, v5, 4, v7")
        A("s_lshl_b32 s35, s37, 11")
        A(f"s_add_u32 s35, s35, {WS_KV}")
        lg.wait("rs")
        for r in range(16):
            A(f"v_fma_f32 v{AC0+r}, -v{WF+r}, v4, v{AC0+r}")
            A(f"v_mul_f32 v{AC0+r}, v{AC0+r}, v{WF+16+r}")
        for i in range(8): A(f"v_cvt_pk_bf16_f32 v{XF+i}, v{AC0+2*i}, v{AC0+2*i+1}")
        A(f"buffer_store_dwordx4 {v(XF,4)}, v7, s[20:23], s35 offen offset:1024 sc1")
        A(f"buffer_store_dwordx4 {v(XF+4,4)}, v7, s[20:23], s35 offen offset:1536 sc1")

def attn(A, name):
    A("s_and_b32 s16, s2, 7")
    A("s_lshr_b32 s17, s2, 3")
    A("s_and_b32 s18, s17, 3")
    A("s_lshl_b32 s16, s16, 2")
    A("s_add_u32 s16, s16, s18")
    A("s_lshr_b32 s17, s17, 2")
    A("s_lshl_b32 s17, s17, 3")
    A("s_add_u32 s17, s17, s3")
    A("s_lshl_b32 s19, s16, 6")
    A("s_add_u32 s19, s19, s17")
    A("s_lshl_b32 s19, s19, 10")
    A("s_lshl_b32 s26, s16, 17")
    A(f"s_add_u32 s26, s26, {WS_KV}")
    A("s_lshl_b32 s27, s3, 10")
    A("s_add_u32 s28, s26, s27")
    A(f"s_add_u32 s27, s27, {ABASE}")
    A("v_lshrrev_b32 v3, 5, v0")
    A("v_lshlrev_b32 v3, 8, v3")
    A("v_and_b32 v4, 15, v0")
    A("v_lshlrev_b32 v4, 4, v4")
    A("v_add_u32 v3, v3, v4")
    A(f"v_add_u32 v108, {ABASE}, v2")
    A(f"v_add_u32 v109, {ABASE + 1024}, v3")
    A("s_lshl_b32 s29, s3, 2")
    A("s_add_u32 s29, s29, 128")
    A("v_mov_b32 v114, s29")
    A("v_mov_b32 v115, 1")
    A("v_and_b32 v117, 7, v0")
    A("v_lshlrev_b32 v117, 2, v117")
    A("s_mov_b32 s24, 0x0000ffff")
    A("s_mov_b32 s25, 0x0000ffff")
    A("v_and_b32 v4, 27, v0")
    A("v_cmp_eq_u32 vcc, 16, v4")
    A("v_mov_b32 v5, 0x3f803f80")
    A("s_nop 0")
    A("v_cndmask_b32 v5, 0, v5, vcc")
    for r in range(8): A(f"v_mov_b32 {v(VV0+r)}, v5")
    for r in range(16): A(f"v_mov_b32 {v(VO+r)}, 0")
    for r in range(4, 8): A(f"v_mov_b32 {v(VP[1]+r)}, 0")
    A("s_lshr_b32 s29, s16, 1")
    A("s_lshl_b32 s29, s29, 11")
    A(f"s_add_u32 s29, s29, {FL_A}")
    A("s_cmp_eq_u32 s3, 0")
    A(f"s_cbranch_scc0 {name}_gw")
    poll_lanes(A, 20, 116, "s29", 6, sleep=int(os.environ.get("PSL", "3")))
    arrive(A, C_GO, 118, 119)
    A(f"s_branch {name}_go")
    A.label(f"{name}_gw")
    wait_cnt(A, C_GO, 1, 118, 6, 30, sleep=2)
    A.label(f"{name}_go")
    tl_mark(A, 3)
    if os.environ.get("DBGSPAN"):
        A("s_memrealtime s[98:99]")
        A("s_waitcnt lgkmcnt(0)")
        A("s_sub_u32 s98, s98, s68")
        A("v_mov_b32 v6, s98")
        A("s_mov_b64 exec, 1")
        A("buffer_atomic_umax v6, v118, s[52:55], 0 offen offset:20")
        A("s_mov_b64 exec, -1")
        A("s_waitcnt vmcnt(0)")
    A(f"buffer_load_dwordx4 {v(VQ,4)}, v2, s[20:23], s19 offen sc1")
    A(f"buffer_load_dwordx4 {v(VK,4)}, v2, s[20:23], s26 offen sc1")
    def dma(off):
        A(f"s_add_u32 m0, s27, {off}")
        A("s_nop 0")
        A("buffer_load_dwordx4 v2, s[20:23], s28 offen sc1 lds")
        A("s_add_u32 s28, s28, 8192")
    for c in range(4): dma(c * 8192)
    A("s_waitcnt vmcnt(4)")
    A(f"v_mfma_f32_32x32x16_bf16 {v(VS[0],16)}, {v(VK,4)}, {v(VQ,4)}, 0")
    A("s_waitcnt vmcnt(2)")
    A("s_mov_b64 exec, 1")
    A("ds_write_b32 v114, v115")
    A("s_mov_b64 exec, -1")
    A("s_nop 7")
    A(f"v_max3_f32 v6, {v(VS[0])}, {v(VS[0]+1)}, {v(VS[0]+2)}")
    for r in range(3, 15, 2):
        A(f"v_max3_f32 v6, v6, {v(VS[0]+r)}, {v(VS[0]+r+1)}")
    A(f"v_max_f32 v6, v6, {v(VS[0]+15)}")
    def negm_fill():
        A("v_mov_b32 v4, v6")
        A("s_nop 1")
        A("v_permlane32_swap_b32 v4, v6")
        A("s_nop 1")
        A("v_max_f32 v6, v4, v6")
        A("v_sub_f32 v6, 0, v6")
        for r in range(16): A(f"v_mov_b32 {v(VNEG+r)}, v6")
    negm_fill()
    A(f"v_mov_b32 {v(VS[1]+14)}, 0")
    A(f"v_mov_b32 {v(VS[1]+15)}, 0")
    A(f"v_mfma_f32_32x32x16_bf16 {v(VS[0],16)}, {v(VK,4)}, {v(VQ,4)}, {v(VNEG,16)}")
    A.label(f"{name}_aw0")
    A("ds_read_b32 v116, v117 offset:128")
    A("s_waitcnt lgkmcnt(0)")
    A("v_cmp_eq_u32 vcc, 0, v116")
    A("s_nop 1")
    A("s_cmp_eq_u64 vcc, 0")
    A(f"s_cbranch_scc0 {name}_aw0")
    A("v_mov_b32 v115, 2")
    A(f"ds_read_b128 {v(VK,4)}, v108 offset:2048")
    A("s_mov_b64 exec, s[24:25]")
    A(f"ds_read_b128 {v(VV0,4)}, v109")
    A("s_mov_b64 exec, -1")
    A("s_mov_b32 s30, 0")
    A("s_mov_b32 s31, 1")
    A(f"s_mov_b32 s33, {4*8192}")
    A("s_mov_b32 s34, 16")
    A("s_xor_b32 s35, s3, 4")
    A("v_mov_b32 v110, v108")
    A("v_mov_b32 v111, v109")
    A("s_waitcnt lgkmcnt(0)")
    A.raw(".p2align 6")
    A.label(f"{name}_aloop")
    for tt in range(4):
        X = tt % 2; Y = 1 - X
        S = VS[X]; P = VP[X]; PP = VP[Y]; SY = VS[Y]
        e = lambda i: A(f"v_exp_f32 {v(S+i)}, {v(S+i)}")
        c = lambda i: A(f"v_cvt_pk_bf16_f32 {v(P+i)}, {v(S+2*i)}, {v(S+2*i+1)}")
        e(0)
        A(f"v_cvt_pk_bf16_f32 {v(PP+7)}, {v(SY+14)}, {v(SY+15)}")
        e(1)
        A(f"s_waitcnt lgkmcnt({0 if tt == 2 else 2})")
        A(f"v_mfma_f32_32x32x16_bf16 {v(SY,16)}, {v(VK,4)}, {v(VQ,4)}, {v(VNEG,16)}")
        if tt < 2:
            A(f"ds_read_b128 {v(VK,4)}, v110 offset:{(tt+2)*2048}")
        elif tt == 2:
            if asmlib.TIMELINE:
                A("s_mov_b32 m0, s34")
                A("s_nop 0")
                A("v_writelane_b32 v166, s94, m0")
                A("v_writelane_b32 v167, s96, m0")
            A("v_cmp_gt_u32 vcc, s31, v116")
            A("s_add_u32 s30, s30, 8192")
            A(f"s_cmp_eq_u32 s30, {NCH*8192}")
            A("s_cselect_b32 s30, 0, s30")
            A("v_add_u32 v112, s30, v108")
            A("v_add_u32 v113, s30, v109")
            A("s_cmp_eq_u64 vcc, 0")
            A(f"s_cbranch_scc0 {name}_aspin")
            A.label(f"{name}_aspin_ret")
            A(f"ds_read_b128 {v(VK,4)}, v112")
            A("s_add_u32 s31, s31, 1")
            A("v_readlane_b32 s29, v116, s35")
            A("s_cmp_lt_u32 s29, s31")
            A(f"s_cbranch_scc1 {name}_alow")
            A("s_setprio 1")
            A(f"s_branch {name}_aprio")
            A.label(f"{name}_alow")
            A("s_setprio 0")
            A.label(f"{name}_aprio")
            A("s_cmp_gt_u32 s34, 4")
            A(f"s_cbranch_scc0 {name}_anodma")
            dma("s33")
            A("s_add_u32 s33, s33, 8192")
            A(f"s_cmp_eq_u32 s33, {NCH*8192}")
            A("s_cselect_b32 s33, 0, s33")
            A.label(f"{name}_anodma")
        else:
            A(f"ds_read_b128 {v(VK,4)}, v112 offset:2048")
        e(2); c(0); e(3); e(4); c(1)
        A("s_waitcnt lgkmcnt(2)")
        if not os.environ.get("E2"): A(f"v_mfma_f32_32x32x16_bf16 {v(VO,16)}, {v(VV1,4)}, {v(PP+4,4)}, {v(VO,16)}")
        A("s_mov_b64 exec, s[24:25]" if not os.environ.get("E1") else "s_mov_b64 exec, 1")
        A(f"ds_read_b128 {v(VV1,4)}, v111 offset:{tt*2048+512}")
        if tt == 0:
            A("s_cmp_gt_u32 s34, 3")
            A("s_cbranch_scc1 " + f"{name}_aw1")
            A("s_waitcnt vmcnt(0)")
            A.label(f"{name}_aw1")
            A("s_waitcnt vmcnt(1)")
            A("s_mov_b64 exec, 1")
            A("ds_write_b32 v114, v115")
        A("s_mov_b64 exec, -1")
        e(5); e(6); c(2); e(7); e(8); c(3); e(9); e(10)
        A(f"s_waitcnt lgkmcnt({3 if tt == 0 else 2})")
        A(f"v_mfma_f32_32x32x16_bf16 {v(VO,16)}, {v(VV0,4)}, {v(P,4)}, {v(VO,16)}")
        A("s_mov_b64 exec, s[24:25]" if not os.environ.get("E1") else "s_mov_b64 exec, 1")
        if tt < 3: A(f"ds_read_b128 {v(VV0,4)}, v111 offset:{(tt+1)*2048}")
        else: A(f"ds_read_b128 {v(VV0,4)}, v113")
        A("s_mov_b64 exec, -1")
        if tt == 1 and asmlib.TIMELINE:
            A("s_memtime s[94:95]")
            A("s_memrealtime s[96:97]")
        if tt == 1:
            A("ds_read_b32 v116, v117 offset:128")
            A("v_add_u32 v115, 1, v115")
        c(4); e(11); e(12); c(5); e(13); e(14); c(6)
        if tt == 3:
            A("v_mov_b32 v110, v112")
            A("v_mov_b32 v111, v113")
            A("s_sub_u32 s34, s34, 1")
            A("s_cmp_lg_u32 s34, 0")
        e(15)
    A(f"s_cbranch_scc1 {name}_aloop")
    A("s_waitcnt lgkmcnt(0)")
    A(f"v_cvt_pk_bf16_f32 {v(VP[1]+7)}, {v(VS[1]+14)}, {v(VS[1]+15)}")
    A("s_setprio 2")
    A("s_nop 0")
    A(f"v_mfma_f32_32x32x16_bf16 {v(VO,16)}, {v(VV1,4)}, {v(VP[1]+4,4)}, {v(VO,16)}")
    A("s_lshl_b32 s19, s17, 5")
    A("s_add_u32 s19, s19, s16")
    A("s_lshr_b32 s18, s17, 3")
    A("s_lshl_b32 s18, s18, 5")
    A("s_add_u32 s18, s18, s16")
    A("s_lshl_b32 s18, s18, 7")
    A(f"s_add_u32 s18, s18, {FL_O}")
    A("s_lshl_b32 s19, s19, 10")
    A(f"s_add_u32 s19, s19, {WS_O}")
    A("s_mov_b32 s29, 0x7b800000")
    A("s_nop 1")
    A(f"v_add_f32_e64 v4, abs({v(VO)}), {v(VO+8)}")
    for r in range(1, 8):
        A(f"v_add_f32_e64 v4, abs({v(VO+r)}), v4")
    A("v_cmp_gt_f32 vcc, s29, v4")
    A("s_nop 1")
    A("s_cmp_eq_u64 vcc, -1")
    A(f"s_cbranch_scc0 {name}_aslow")
    A.label(f"{name}_astore")
    A(f"v_rcp_f32 v4, {v(VO+8)}")
    A("s_nop 0")
    for r in range(8): A(f"v_mul_f32 {v(VO+r)}, {v(VO+r)}, v4")
    for r in range(4): A(f"v_cvt_pk_bf16_f32 {v(VP[0]+r)}, {v(VO+2*r)}, {v(VO+2*r+1)}")
    A(f"buffer_store_dwordx4 {v(VP[0],4)}, v2, s[20:23], s19 offen sc1")
    tl_mark(A, 4)
    final(A, name)
    A(f"s_branch {name}_end")
    A.label(f"{name}_aspin")
    A("s_sleep 2")
    A("ds_read_b32 v116, v117 offset:128")
    A("s_waitcnt lgkmcnt(0)")
    A("v_cmp_gt_u32 vcc, s31, v116")
    A("s_nop 1")
    A("s_cmp_eq_u64 vcc, 0")
    A(f"s_cbranch_scc0 {name}_aspin")
    A(f"s_branch {name}_aspin_ret")
    A.label(f"{name}_aslow")
    A("s_waitcnt vmcnt(0) lgkmcnt(0)")
    A("v_mov_b32 v6, 0xff800000")
    A("s_mov_b32 s28, s26")
    A("s_mov_b32 s34, 64")
    A.label(f"{name}_smax")
    A(f"buffer_load_dwordx4 {v(VK,4)}, v2, s[20:23], s28 offen sc1")
    A("s_waitcnt vmcnt(0)")
    A(f"v_mfma_f32_32x32x16_bf16 {v(VS[0],16)}, {v(VK,4)}, {v(VQ,4)}, 0")
    A("s_add_u32 s28, s28, 2048")
    A("s_sub_u32 s34, s34, 1")
    A("s_nop 7")
    A("s_nop 1")
    for r in range(0, 16, 2):
        A(f"v_max3_f32 v6, v6, {v(VS[0]+r)}, {v(VS[0]+r+1)}")
    A("s_cmp_lg_u32 s34, 0")
    A(f"s_cbranch_scc1 {name}_smax")
    negm_fill()
    for r in range(16): A(f"v_mov_b32 {v(VO+r)}, 0")
    A("s_mov_b32 s28, s26")
    A("s_mov_b32 s34, 64")
    A.label(f"{name}_sloop")
    A(f"buffer_load_dwordx4 {v(VK,4)}, v2, s[20:23], s28 offen sc1")
    A("s_mov_b64 exec, s[24:25]")
    A(f"buffer_load_dwordx4 {v(VV0,4)}, v3, s[20:23], s28 offen offset:1024 sc1")
    A(f"buffer_load_dwordx4 {v(VV1,4)}, v3, s[20:23], s28 offen offset:1536 sc1")
    A("s_mov_b64 exec, -1")
    A("s_waitcnt vmcnt(0)")
    A(f"v_mfma_f32_32x32x16_bf16 {v(VS[0],16)}, {v(VK,4)}, {v(VQ,4)}, {v(VNEG,16)}")
    A("s_add_u32 s28, s28, 2048")
    A("s_sub_u32 s34, s34, 1")
    A("s_nop 7")
    A("s_nop 1")
    for r in range(16): A(f"v_exp_f32 {v(VS[0]+r)}, {v(VS[0]+r)}")
    A("s_nop 0")
    for r in range(8): A(f"v_cvt_pk_bf16_f32 {v(VP[0]+r)}, {v(VS[0]+2*r)}, {v(VS[0]+2*r+1)}")
    A("s_nop 1")
    A(f"v_mfma_f32_32x32x16_bf16 {v(VO,16)}, {v(VV0,4)}, {v(VP[0],4)}, {v(VO,16)}")
    A(f"v_mfma_f32_32x32x16_bf16 {v(VO,16)}, {v(VV1,4)}, {v(VP[0]+4,4)}, {v(VO,16)}")
    A("s_cmp_lg_u32 s34, 0")
    A(f"s_cbranch_scc1 {name}_sloop")
    A("s_nop 7")
    A("s_nop 3")
    A(f"s_branch {name}_astore")

def final(A, name):
    WR = 8; OR = 72; AC = 136
    A("s_and_b32 s24, s2, 3")
    A("s_lshl_b32 s24, s24, 3")
    A("s_bfe_u32 s25, s2, 0x30003")
    A("s_add_u32 s24, s24, s25")
    A("s_bfe_u32 s25, s2, 0x10002")
    A("s_lshl_b32 s25, s25, 2")
    A("s_lshr_b32 s26, s2, 6")
    A("s_add_u32 s25, s25, s26")
    A("s_and_b32 s26, s3, 1")
    A("s_bfe_u32 s27, s3, 0x10001")
    A("s_lshr_b32 s28, s3, 2")
    A("v_mov_b32 v160, 0")
    A("v_mov_b32 v161, 1")
    A("v_lshrrev_b32 v3, 5, v0")
    A("v_bfe_u32 v4, v0, 2, 2")
    A("v_lshl_add_u32 v4, v3, 2, v4")
    A("v_lshlrev_b32 v4, 7, v4")
    A("v_bfe_u32 v5, v0, 4, 1")
    A("v_lshlrev_b32 v5, 1, v5")
    A("v_bfe_u32 v6, v0, 1, 1")
    A("v_add_u32 v5, v5, v6")
    A("v_bfe_u32 v6, v0, 3, 1")
    A("v_xor_b32 v6, s27, v6")
    A("v_lshl_add_u32 v5, v6, 2, v5")
    A("v_lshl_add_u32 v4, v5, 4, v4")
    A("v_and_b32 v6, 1, v0")
    A("v_lshl_add_u32 v4, v6, 3, v4")
    A("s_lshl_b32 s29, s28, 15")
    A(f"s_add_u32 s29, s29, {BOFF}")
    A("v_add_u32 v4, s29, v4")
    A("v_and_b32 v5, 31, v0")
    A("s_lshl_b32 s29, s26, 5")
    A("v_add_u32 v5, s29, v5")
    A("s_lshl_b32 s29, s27, 6")
    A("s_lshl_b32 s30, s28, 5")
    A("s_add_u32 s29, s29, s30")
    A("v_lshl_add_u32 v6, v3, 4, s29")
    A(f"v_mul_u32_u24 v7, {GSTR}, v5")
    A("v_add_u32 v7, v7, v6")
    A(f"v_add_u32 v7, {GBUF}, v7")
    A("v_lshl_add_u32 v6, v5, 10, v6")
    A("s_lshl_b32 s30, s24, 16")
    A("s_lshl_b32 s31, s25, 7")
    A("s_add_u32 s30, s30, s31")
    A("buffer_load_dwordx4 v[152:155], v6, s[8:11], s30 offen")
    A("s_waitcnt vmcnt(1)")
    publish(A, C_O, 8, 160, 161, 162, 33, "s18", f"{name}_po")
    A("s_lshl_b32 s31, s24, 1")
    A("s_add_u32 s31, s31, s26")
    A("s_lshl_b32 s31, s31, 5")
    A("s_lshl_b32 s32, s28, 4")
    A("s_add_u32 s31, s31, s32")
    A("s_lshr_b32 s32, s24, 2")
    A("s_lshl_b32 s32, s32, 1")
    A("s_add_u32 s32, s32, s28")
    A("s_lshl_b32 s32, s32, 11")
    A(f"s_add_u32 s32, s32, {FL_O}")
    A("s_lshl_b32 s31, s31, 10")
    A(f"s_add_u32 s31, s31, {WS_O}")
    A("v_and_b32 v5, 15, v0")
    A("v_lshlrev_b32 v5, 7, v5")
    srd(A, 12, 44, 2048 * 1024)
    wait_cnt(A, C_G, 4, 160, 162, 33, sleep=2)
    lg = Cnt(A, "lgkmcnt", 15)
    for j in range(16):
        for p in range(2):
            A(f"ds_read_b64_tr_b16 {v(WR+4*j+2*p,2)}, v4 offset:{j*2048 + p*1024}"); lg.issue("w")
    A("ds_read_b128 v[156:159], v7"); lg.issue("w")
    A("s_lshl_b32 s33, s28, 2")
    A("v_mov_b32 v165, s33")
    A("s_and_b32 s33, s3, 3")
    A("s_cmp_eq_u32 s33, 0")
    A(f"s_cbranch_scc0 {name}_gw2")
    poll_lanes(A, 20, 5, "s32", 162, sleep=2)
    arrive(A, C_GO2, 165, 161)
    A(f"s_branch {name}_go2")
    A.label(f"{name}_gw2")
    wait_cnt(A, C_GO2, 1, 165, 162, 33, sleep=1)
    A("s_waitcnt vmcnt(0)")
    A.label(f"{name}_go2")
    tl_mark(A, 5)
    vm = Cnt(A, "vmcnt", 63)
    for j in range(16):
        if j % 4 == 0 and j: A("s_add_u32 s31, s31, 4096")
        A(f"buffer_load_dwordx4 {v(OR+4*j,4)}, v2, s[20:23], s31 offen offset:{(j%4)*1024} sc1"); vm.issue(("o", j))
    lg.wait_all()
    A("s_lshl_b32 s33, s3, 11")
    A(f"s_add_u32 s33, s33, {XCH}")
    A("v_add_u32 v3, s33, v2")
    A("v_xor_b32 v5, 8192, v3") if (XCH % 16384 == 0) else None
    if XCH % 16384:
        A("s_xor_b32 s33, s3, 4")
        A("s_lshl_b32 s33, s33, 11")
        A(f"s_add_u32 s33, s33, {XCH}")
        A("v_add_u32 v5, s33, v2")
    A("s_lshl_b32 s33, s3, 2")
    A("v_mov_b32 v163, s33")
    A("v_xor_b32 v164, 16, v163")
    for j in range(16):
        vm.wait(("o", j))
        A(f"v_mfma_f32_32x32x16_bf16 {v(AC,16)}, {v(WR+4*j,4)}, {v(OR+4*j,4)}, {v(AC,16) if j else 0}")
    A("s_cmp_eq_u32 s28, 0")
    A(f"s_cbranch_scc0 {name}_fk1")
    A("s_nop 7")
    A("s_nop 1")
    A(f"ds_write_b128 v3, {v(AC+8,4)}")
    A(f"ds_write_b128 v3, {v(AC+12,4)} offset:1024")
    A(f"s_branch {name}_fk")
    A.label(f"{name}_fk1")
    A("s_nop 7")
    A("s_nop 1")
    A(f"ds_write_b128 v3, {v(AC,4)}")
    A(f"ds_write_b128 v3, {v(AC+4,4)} offset:1024")
    A("s_waitcnt lgkmcnt(0)")
    for r in range(8): A(f"v_mov_b32 v{AC+r}, v{AC+8+r}")
    A.label(f"{name}_fk")
    A("s_waitcnt lgkmcnt(0)")
    A("s_mov_b64 exec, 1")
    A("ds_write_b32 v163, v161 offset:160")
    A("s_mov_b64 exec, -1")
    for i in range(4):
        A(f"v_lshlrev_b32 v{8+2*i}, 16, v{156+i}")
        A(f"v_and_b32 v{9+2*i}, 0xffff0000, v{156+i}")
        A(f"v_lshlrev_b32 v{16+2*i}, 16, v{152+i}")
        A(f"v_and_b32 v{17+2*i}, 0xffff0000, v{152+i}")
    wait_cnt(A, 160, 1, 164, 162, 33, sleep=0)
    A("ds_read_b128 v[24:27], v5")
    A("ds_read_b128 v[28:31], v5 offset:1024")
    A("s_waitcnt lgkmcnt(0)")
    for r in range(8): A(f"v_add_f32 v{AC+r}, v{AC+r}, v{24+r}")
    for i in range(4): A(f"v_cvt_pk_bf16_f32 v{24+i}, v{AC+2*i}, v{AC+2*i+1}")
    A("s_nop 1")
    A("v_permlane32_swap_b32 v24, v26")
    A("v_permlane32_swap_b32 v25, v27")
    A("s_nop 1")
    for i in range(4):
        A(f"v_lshlrev_b32 v{32+2*i}, 16, v{24+i}")
        A(f"v_and_b32 v{33+2*i}, 0xffff0000, v{24+i}")
    for i in range(8): A(f"v_mul_f32 v{32+i}, v{32+i}, v{8+i}")
    for i in range(4): A(f"v_cvt_pk_bf16_f32 v{24+i}, v{32+2*i}, v{33+2*i}")
    for i in range(4):
        A(f"v_lshlrev_b32 v{32+2*i}, 16, v{24+i}")
        A(f"v_and_b32 v{33+2*i}, 0xffff0000, v{24+i}")
    for i in range(8): A(f"v_add_f32 v{32+i}, v{32+i}, v{16+i}")
    for i in range(4): A(f"v_cvt_pk_bf16_f32 v{24+i}, v{32+2*i}, v{33+2*i}")
    A("buffer_store_dwordx4 v[24:27], v6, s[12:15], s30 offen")
    if os.environ.get("DBGSPAN"):
        A("s_waitcnt vmcnt(0)")
        A("s_memrealtime s[98:99]")
        A("s_waitcnt lgkmcnt(0)")
        A("s_sub_u32 s98, s98, s68")
        A("v_mov_b32 v1, s98")
        A("s_mov_b64 exec, 1")
        A("buffer_atomic_umax v1, v160, s[52:55], 0 offen offset:16")
        A("s_mov_b64 exec, -1")
    tl_end(A, 0, 20)
    tl_marks_out(A, 1, 6, 20)
    if asmlib.TIMELINE:
        A("s_lshl_b32 s58, s2, 3")
        A("s_add_u32 s58, s58, s3")
        A("s_lshl_b32 s58, s58, 9")
        A(f"s_add_u32 s58, s58, {100<<20}")
        A("v_lshlrev_b32 v1, 3, v0")
        A("buffer_store_dwordx2 v[166:167], v1, s[20:23], s58 offen")

class BBar:
    def __init__(self, name): self.n = 0; self.name = name; self.lg = None; self.boost = False
    def __call__(self, A):
        self.n += 1
        if self.boost: A("s_setprio 2")
        A("s_mov_b64 exec, 2")
        A("ds_add_u32 v7, v7 offset:64")
        A("s_mov_b64 exec, 1")
        A.label(f"{self.name}_bb{self.n}")
        A("ds_read_b32 v1, v7 offset:80")
        A("s_waitcnt lgkmcnt(0)")
        A("v_readfirstlane_b32 s56, v1")
        A(f"s_cmp_ge_u32 s56, {64*self.n}")
        A(f"s_cbranch_scc0 {self.name}_bb{self.n}")
        A("s_mov_b64 exec, -1")
        if self.boost: A("s_setprio 0")
        if self.lg is not None: self.lg.seq = []

def lb_role(A, name):
    A("s_sub_u32 s3, s3, 8")
    A("v_lshlrev_b32 v7, 2, v0")
    A("v_mov_b32 v1, 0")
    A("ds_write_b32 v7, v1")
    A("v_lshlrev_b32 v7, 4, v0")
    rc_qkv(A)
    A("v_lshrrev_b32 v4, 3, v0")
    A("v_and_b32 v5, 7, v0")
    A("v_lshrrev_b32 v6, 4, v0")
    A("v_xor_b32 v5, v5, v6")
    A("v_xor_b32 v8, 4, v5")
    A("s_lshl_b32 s28, s3, 15")
    A("v_lshlrev_b32 v4, 10, v4")
    A("v_add_u32 v4, s28, v4")
    A("v_lshl_add_u32 v60, v5, 4, v4")
    A("v_lshl_add_u32 v61, v8, 4, v4")
    A("v_add_u32 v61, 8192, v61")
    A("v_add_u32 v62, 16384, v60")
    A("v_add_u32 v63, 16384, v61")
    A("v_lshrrev_b32 v4, 2, v0")
    A("s_lshl_b32 s28, s3, 4")
    A("v_add_u32 v4, s28, v4")
    A("v_mul_u32_u24 v4, 3072, v4")
    A("v_and_b32 v5, 3, v0")
    A("v_lshl_add_u32 v64, v5, 4, v4")
    A("s_lshl_b32 s28, s25, 6")
    A("v_add_u32 v64, s28, v64")
    A("v_add_u32 v65, 1024, v64")
    A("v_add_u32 v66, 2048, v64")
    A("s_lshl_b32 s70, s24, 1")
    A("s_add_u32 s70, s70, s25")
    A("s_and_b32 s70, s70, 7")
    A("s_lshl_b32 s71, s24, 17")
    A("s_lshl_b32 s72, s3, 12")
    A(f"s_add_u32 s72, s72, {K1B}")
    A("s_lshl_b32 s73, s3, 10")
    A(f"s_add_u32 s73, s73, {K1B + 16384}")
    A(f"s_mov_b32 s74, {2*K1_SLOT}")
    A("s_waitcnt lgkmcnt(0)")
    A("s_barrier")
    srd(A, 60, 4, 2048 * 1024)
    srd(A, 64, 6, 512 * 3072)
    srd(A, 20, 16, WS_END)
    srd(A, 52, 18, 256)
    def ldma():
        A("s_lshl_b32 s75, s70, 7")
        A("s_add_u32 s75, s75, s71")
        A(f"s_mul_i32 s76, s70, {64*3072}")
        A("s_add_u32 s70, s70, 1")
        A("s_and_b32 s70, s70, 7")
        A("s_add_u32 s77, s72, s74")
        A("s_add_u32 s78, s73, s74")
        for e in range(4):
            A(f"s_add_u32 m0, s77, {e*1024}")
            A("s_nop 0")
            A(f"buffer_load_dwordx4 v{60+e}, s[60:63], s75 offen lds")
        for T_ in range(3):
            A(f"s_add_u32 m0, s78, {T_*4096}")
            A("s_nop 0")
            A(f"buffer_load_dwordx4 v{64+T_}, s[64:67], s76 offen lds")
        A(f"s_add_u32 s74, s74, {K1_SLOT}")
        A(f"s_cmp_eq_u32 s74, {K1_SLOT*K1_NS}")
        A("s_cselect_b32 s74, 0, s74")
    A("s_mov_b32 s79, 0")
    A.label(f"{name}_lpro")
    ldma()
    A("s_add_u32 s79, s79, 1")
    A(f"s_cmp_lt_u32 s79, {K1_PRO}")
    A(f"s_cbranch_scc1 {name}_lpro")
    A("s_mov_b32 s4, s48")
    A("s_mov_b32 s5, s49")
    A("s_mov_b32 s6, s50")
    A("s_mov_b32 s7, s51")
    bar = BBar(name)
    def prologue(A, dma, vm):
        issued = K1_PRO; seq = [("k", st) for st in range(K1_PRO) for _ in range(7)]
        A("s_lshl_b32 s36, s24, 11")
        A(f"s_add_u32 s36, s36, {FL_X}")
        A("v_and_b32 v1, 15, v0")
        A("v_lshlrev_b32 v1, 7, v1")
        A("v_mov_b32 v67, 0")
        A("s_and_b32 s37, s24, 7")
        A("s_lshl_b32 s37, s37, 1")
        A("s_and_b32 s38, s3, 1")
        A("s_add_u32 s37, s37, s38")
        A("s_lshl_b32 s37, s37, 5")
        A("v_and_b32 v68, 31, v0")
        A("v_add_u32 v68, s37, v68")
        A("v_mul_u32_u24 v68, 3584, v68")
        A("v_add_u32 v68, s28, v68")
        A("v_lshrrev_b32 v69, 5, v0")
        A("v_lshl_add_u32 v69, v69, 7, v68")
        TJ = int(os.environ.get("TJ", "-1"))
        for j in range(8):
            idx = max(i for i, t in enumerate(seq) if t == ("k", j))
            A(f"s_waitcnt vmcnt({len(seq) - 1 - idx})")
            A("s_barrier")
            if issued < 8 and issued - 4 <= j:
                ldma(); seq += [("k", issued)] * 7; issued += 1
                if j == TJ:
                    A("buffer_load_dword v70, v69, s[8:11], 0 offen")
                    A("buffer_load_dword v71, v68, s[8:11], 0 offen offset:220")
                    seq += [("t", 0)] * 2
            elif j == 6:
                A("buffer_load_dwordx2 v[12:13], v67, s[52:55], 0 offen sc1")
                A("buffer_load_dwordx2 v[14:15], v1, s[20:23], s36 offen sc1")
                dma(0); seq += [("g", 0)] * 9
        assert issued == 8
        A("s_waitcnt vmcnt(7)")
        A("v_readfirstlane_b32 s68, v12")
        A("v_readfirstlane_b32 s69, v13")
        A("v_cmp_ne_u64 vcc, v[12:13], v[14:15]")
        A("s_cmp_eq_u32 s68, 0")
        A(f"s_cbranch_scc1 {name}_xslow")
        A("s_cmp_eq_u64 vcc, 0")
        A(f"s_cbranch_scc1 {name}_xok")
        A.label(f"{name}_xslow")
        wait_ready(A, 67, 12, 37)
        poll_lanes(A, 20, 1, "s36", 12, sleep=1)
        A.label(f"{name}_xok")
        if os.environ.get("BWAIT"):
            wait_cnt(A, C_QKV, 8, 67, 71, 37, sleep=2)
        tl_mark(A, 4)
    def wait_slot2(A, lg):
        A("v_mov_b32 v0, 0")
        wait_cnt(A, C_WFREE, 8, 0, 1, 37)
        lg.seq = []
    ffn.gu_body(A, name + "_gu", bar, st_flags="sc1", lds0=BOFF, x_flags=os.environ.get("XFL", "sc1"), prologue=prologue, wait_slot2=wait_slot2)
    A("s_waitcnt vmcnt(0)")
    bar(A)
    A("s_cmp_eq_u32 s3, 0")
    A(f"s_cbranch_scc0 {name}_noflag")
    A("s_lshl_b32 s34, s24, 4")
    A("s_add_u32 s34, s34, s25")
    A("s_lshl_b32 s34, s34, 7")
    A(f"s_add_u32 s34, s34, {FL_H}")
    A("v_mov_b32 v1, 0")
    A("s_mov_b64 exec, 1")
    flag_store(A, 1, 2, "s34")
    A("s_mov_b64 exec, -1")
    A.label(f"{name}_noflag")
    tl_mark(A, 1)
    A("s_mov_b32 s4, s46")
    A("s_mov_b32 s5, s47")
    A("v_lshrrev_b32 v0, 4, v7")
    ctx = ffn.sk_body(A, name + "_dn", bar, 28, WS_H, 112 * 1024, 1792 * 1024, "g", ld_flags="sc1", lds0=BOFF)
    def wait_act(A):
        A("s_lshr_b32 s34, s24, 1")
        A("s_lshl_b32 s34, s34, 11")
        A("s_lshl_b32 s35, s3, 9")
        A("s_add_u32 s34, s34, s35")
        A(f"s_add_u32 s34, s34, {FL_H}")
        A("v_and_b32 v1, 3, v0")
        A("v_lshlrev_b32 v1, 7, v1")
        poll_lanes(A, 20, 1, "s34", 16, sleep=4)
        tl_mark(A, 2)
        ctx["vm"].seq = []
    bar.lg = ctx["lg"]
    def after_red_reads(A):
        bar(A)
        srd(A, 8, 42, 512 * 1024)
        A("s_lshl_b32 s27, s3, 17")
        A("s_lshl_b32 s28, s3, 14")
        A(f"s_add_u32 s28, s28, {BOFF}")
        for j in range(8):
            A(f"s_add_u32 s31, s27, {j*16384}")
            A(f"s_add_u32 m0, s28, {j*2048}")
            A("s_nop 0")
            A("buffer_load_dwordx4 v8, s[8:11], s31 offen lds")
            A(f"s_add_u32 m0, s28, {j*2048 + 1024}")
            A("s_nop 0")
            A("buffer_load_dwordx4 v9, s[8:11], s31 offen lds")
    ffn.sk_main(A, name + "_dn", bar, 28, ctx, "glds", wait_act=wait_act, lds0=BOFF, after_red_reads=after_red_reads, gbuf=(GBUF, GSTR))
    A("s_waitcnt vmcnt(0) lgkmcnt(0)")
    A("v_mov_b32 v1, 0")
    A("v_mov_b32 v2, 1")
    arrive(A, C_G, 1, 2)
    A("s_add_u32 s3, s3, 8")
    tl_end(A, 8, 20)
    tl_marks_out(A, 9, 7 if os.environ.get('GUT') else 5, 20)

def gen(A, name=NAME):
    kernel_begin(A, name)
    A("s_cmp_ge_u32 s2, 256")
    A(f"s_cbranch_scc1 F_end")
    if os.environ.get("PERM"):
        A("s_lshr_b32 s3, s2, 5")
        A("s_and_b32 s2, s2, 31")
        A("s_lshl_b32 s2, s2, 3")
        A("s_or_b32 s2, s2, s3")
    tl_begin(A)
    A("s_load_dwordx4 s[4:7], s[0:1], 0")
    A("s_load_dwordx2 s[42:43], s[0:1], 16")
    A("s_load_dwordx4 s[48:51], s[0:1], 32")
    A("s_load_dwordx2 s[46:47], s[0:1], 48")
    A("s_load_dwordx2 s[44:45], s[0:1], 56")
    A("s_load_dwordx2 s[18:19], s[0:1], 64")
    A("s_load_dwordx2 s[16:17], s[0:1], 72")
    A("v_lshrrev_b32 v1, 6, v0")
    A("v_and_b32 v0, 63, v0")
    A("s_nop 0")
    A("v_readfirstlane_b32 s3, v1")
    A("s_cmp_lt_u32 s3, 8")
    A("s_cbranch_scc0 F_lb")
    ca_role(A, "F")
    A.label("F_lb")
    ffn.PRIO = True
    A("s_setprio 2")
    asmlib.MARK_OFF = bool(os.environ.get("GUT"))
    lb_role(A, "F")
    ffn.PRIO = False
    A.label("F_end")
    A("s_endpgm")
```

```python
from asmlib import *
import asmlib, ffn, os, struct
def f2u(x): return struct.unpack("<I", struct.pack("<f", x))[0]
LOG2E = 1.4426950408889634
QSCALE = 0.25 * LOG2E

NAME = "recurrent_scan__mha_block__glu_gated_glu__prompt_kernel"
BOFF = 256
WQ = BOFF + 2 * ffn.GU_SLOT
LNB = BOFF
ABASE = BOFF + 3 * ffn.GU_SLOT
NCH = 6
XCH = ABASE + NCH * 8192
GBUF = XCH + 16384
GSTR = 144
K1_SLOT = 28672; K1_NS = 5; K1_D = 4
K1B = WQ - 2 * K1_SLOT
K1T = K1B + K1_SLOT * K1_NS
LNB = K1T + 5120
K1_PRO = int(os.environ.get('K1_PRO', '2'))
F_LDS = 163840
assert WQ + 98304 <= F_LDS and GBUF + 64 * GSTR <= F_LDS
C_LN, C_XF, C_W, C_WFREE, C_G = 0, 4, 8, 12, 16
F_VGPR = 168
F_THREADS = 768
WS_FLAG = 30 << 20
WS_ST = 29 << 20
FL_X = WS_FLAG
FL_A = WS_FLAG + 32768
FL_H = WS_FLAG + 65536
FL_O = WS_FLAG + 98304
C_QKV, C_O, C_GO, C_GO2 = 20, 24, 28, 32

def flag_store(A, vz, vt, soff):
    A(f"v_mov_b32 v{vt}, s68")
    A(f"v_mov_b32 v{vt+1}, s69")
    A(f"buffer_store_dwordx2 {v(vt,2)}, v{vz}, s[20:23], {soff} offen sc1")

def publish(A, cnt_off, n, vz, vone, vt, st, soff, lbl):
    A("s_mov_b64 exec, 1")
    A(f"ds_add_rtn_u32 v{vt}, v{vz}, v{vone} offset:{cnt_off}")
    A("s_waitcnt lgkmcnt(0)")
    A(f"v_readfirstlane_b32 s{st}, v{vt}")
    A(f"s_cmp_eq_u32 s{st}, {n-1}")
    A(f"s_cbranch_scc0 {lbl}")
    flag_store(A, vz, vt, soff)
    A.label(lbl)
    A("s_mov_b64 exec, -1")

def wait_ready(A, vz, vt, st):
    _lbl[0] += 1
    L = f"Lr{_lbl[0]}"
    A.label(L)
    A(f"buffer_load_dwordx2 {v(vt,2)}, v{vz}, s[52:55], 0 offen sc1")
    A("s_waitcnt vmcnt(0)")
    A(f"v_readfirstlane_b32 s68, v{vt}")
    A(f"v_readfirstlane_b32 s69, v{vt+1}")
    A("s_cmp_eq_u32 s68, 0")
    A(f"s_cbranch_scc1 {L}")

_lbl = [0]
def arrive(A, off, vz, vone):
    A("s_mov_b64 exec, 1")
    A(f"ds_add_u32 v{vz}, v{vone} offset:{off}")
    A("s_mov_b64 exec, -1")
def wait_cnt(A, off, n, vz, vt, st, sleep=1):
    _lbl[0] += 1
    L = f"Lw{_lbl[0]}"
    A.label(L)
    A(f"ds_read_b32 v{vt}, v{vz} offset:{off}")
    A("s_waitcnt lgkmcnt(0)")
    A(f"v_readfirstlane_b32 s{st}, v{vt}")
    A(f"s_cmp_ge_u32 s{st}, {n}")
    A(f"s_cbranch_scc1 {L}x")
    if sleep: A(f"s_sleep {sleep}")
    A(f"s_branch {L}")
    A.label(L + "x")

def poll_lanes(A, srd_, voff, soff, vt, sleep=2):
    _lbl[0] += 1
    L = f"Lq{_lbl[0]}"
    A.label(L)
    A(f"buffer_load_dwordx2 {v(vt,2)}, v{voff}, s[{srd_}:{srd_+3}], {soff} offen sc1")
    A("s_waitcnt vmcnt(0)")
    A(f"v_cmp_ne_u64 vcc, s[68:69], {v(vt,2)}")
    A("s_nop 1")
    A("s_cmp_eq_u64 vcc, 0")
    A(f"s_cbranch_scc1 {L}x")
    A(f"s_sleep {sleep}")
    A(f"s_branch {L}")
    A.label(L + "x")

def rc_qkv(A):
    A("s_bfe_u32 s24, s2, 0x20001")
    A("s_lshl_b32 s24, s24, 2")
    A("s_lshr_b32 s25, s2, 6")
    A("s_add_u32 s24, s24, s25")
    A("s_and_b32 s25, s2, 1")
    A("s_lshl_b32 s25, s25, 3")
    A("s_bfe_u32 s26, s2, 0x30003")
    A("s_add_u32 s25, s25, s26")

VQ = 8; VNEG = 16; VS = [32, 48]; VP = [64, 72]; VO = 80; VK = 96; VV0 = 100; VV1 = 104

def ca_role(A, name):
    rc_qkv(A)
    A("v_lshlrev_b32 v2, 4, v0")
    A("v_mov_b32 v118, 0")
    A("v_mov_b32 v119, 1")
    A("s_lshl_b32 s30, s24, 7")
    A("s_lshl_b32 s28, s25, 3")
    A("s_add_u32 s30, s30, s28")
    A("s_add_u32 s31, s30, s3")
    A("s_lshl_b32 s31, s31, 10")
    A("s_waitcnt lgkmcnt(0)")
    srd(A, 8, 4, 2048 * 1024)
    srd(A, 20, 16, WS_END)
    srd(A, 52, 18, 256)
    A("buffer_load_dwordx4 v[164:167], v2, s[8:11], s31 offen")
    A("s_or_b32 s28, s2, s3")
    A("s_cmp_eq_u32 s28, 0")
    A(f"s_cbranch_scc0 {name}_nz")
    A("s_memrealtime s[68:69]")
    A("s_waitcnt lgkmcnt(0)")
    A("s_or_b32 s68, s68, 1")
    A("v_mov_b32 v24, s68")
    A("v_mov_b32 v25, s69")
    A("s_mov_b64 exec, 1")
    A("buffer_store_dwordx2 v[24:25], v118, s[52:55], 0 offen sc1")
    A("s_mov_b64 exec, -1")
    A.label(f"{name}_nz")
    A("s_barrier")
    A("s_mul_i32 s28, s3, 1040")
    A(f"s_add_u32 s28, s28, {LNB}")
    A("v_add_u32 v140, s28, v2")
    A("v_and_b32 v141, 7, v0")
    A("v_mul_u32_u24 v142, 1040, v141")
    A("v_lshrrev_b32 v143, 3, v0")
    A("s_lshl_b32 s28, s3, 3")
    A("v_add_u32 v143, s28, v143")
    A("v_lshl_add_u32 v142, v143, 4, v142")
    A(f"v_add_u32 v142, {LNB}, v142")
    A("v_lshlrev_b32 v143, 9, v143")
    A("v_lshl_add_u32 v143, v141, 4, v143")
    A("s_lshr_b32 s28, s30, 5")
    A("s_lshl_b32 s28, s28, 15")
    A("s_and_b32 s29, s30, 31")
    A("s_lshl_b32 s29, s29, 4")
    A("s_add_u32 s28, s28, s29")
    A(f"s_add_u32 s28, s28, {WS_XF}")
    k1_setup(A)
    A("s_or_b32 s29, s2, s3")
    A("s_cmp_eq_u32 s29, 0")
    A(f"s_cbranch_scc1 {name}_w0")
    A("s_waitcnt vmcnt(0)")
    A.label(f"{name}_w0")
    A("s_waitcnt vmcnt(1)")
    T = 144
    for i in range(4):
        A(f"v_lshlrev_b32 v{T+2*i}, 16, v{164+i}")
        A(f"v_and_b32 v{T+2*i+1}, 0xffff0000, v{164+i}")
    A(f"v_add_f32 v160, v{T}, v{T+1}")
    A(f"v_mul_f32 v161, v{T}, v{T}")
    A(f"v_fmac_f32 v161, v{T+1}, v{T+1}")
    for i in range(2, 8):
        A(f"v_add_f32 v160, v160, v{T+i}")
        A(f"v_fmac_f32 v161, v{T+i}, v{T+i}")
    A("s_nop 0")
    for m in ("quad_perm:[1,0,3,2]", "quad_perm:[2,3,0,1]", "row_half_mirror", "row_mirror"):
        A(f"v_add_f32_dpp v160, v160, v160 {m} row_mask:0xf bank_mask:0xf")
        A(f"v_add_f32_dpp v161, v161, v161 {m} row_mask:0xf bank_mask:0xf")
        A("s_nop 0")
    for op in ("v_permlane16_swap_b32", "v_permlane32_swap_b32"):
        A("v_mov_b32 v162, v160")
        A("v_mov_b32 v163, v161")
        A("s_nop 0")
        A(f"{op} v162, v160")
        A(f"{op} v163, v161")
        A("s_nop 0")
        A("v_add_f32 v160, v160, v162")
        A("v_add_f32 v161, v161, v163")
    A(f"v_mul_f32 v160, {hex(f2u(1/512))}, v160")
    A(f"v_mul_f32 v161, {hex(f2u(1/512))}, v161")
    A("v_fma_f32 v161, -v160, v160, v161")
    ln_scalars(A, 160, 161, 162)
    A("s_lshr_b32 s29, s31, 7")
    A(f"s_add_u32 s29, s29, {WS_ST}")
    A("s_mov_b64 exec, 1")
    A("buffer_store_dwordx2 v[160:161], v118, s[20:23], s29 offen sc1")
    A("s_mov_b64 exec, -1")
    for i in range(8): A(f"v_sub_f32 v{T+i}, v{T+i}, v160")
    for i in range(4): A(f"v_cvt_pk_bf16_f32 v{164+i}, v{T+2*i}, v{T+2*i+1}")
    for i in range(4):
        A(f"v_lshlrev_b32 v{T+2*i}, 16, v{164+i}")
        A(f"v_and_b32 v{T+2*i+1}, 0xffff0000, v{164+i}")
    for i in range(8): A(f"v_mul_f32 v{T+i}, v{T+i}, v161")
    for i in range(4): A(f"v_cvt_pk_bf16_f32 v{164+i}, v{T+2*i}, v{T+2*i+1}")
    A("ds_write_b128 v140, v[164:167]")
    A("s_waitcnt lgkmcnt(0)")
    arrive(A, C_LN, 118, 119)
    wait_cnt(A, C_LN, 8, 118, 139, 29, sleep=0)
    A("ds_read_b128 v[164:167], v142")
    A("s_waitcnt lgkmcnt(0)")
    A("buffer_store_dwordx4 v[164:167], v143, s[20:23], s28 offen sc1")
    tl_mark(A, 0)
    A("buffer_load_dwordx2 v[116:117], v118, s[52:55], 0 offen sc1")
    A("s_cmp_lt_u32 s3, 4")
    A(f"s_cbranch_scc0 {name}_kv")
    k1_compute(A, name, 0)
    A(f"s_branch {name}_attn1")
    A.label(f"{name}_kv")
    k1_compute(A, name, 1)
    A.label(f"{name}_attn1")
    A("s_lshl_b32 s28, s25, 4")
    A("s_add_u32 s28, s28, s24")
    A("s_lshl_b32 s28, s28, 7")
    A(f"s_add_u32 s28, s28, {FL_A}")
    A("v_mov_b32 v118, 0")
    A("v_mov_b32 v119, 1")
    wait_ready(A, 118, 6, 29)
    A("s_cmp_eq_u32 s57, 0")
    A(f"s_cbranch_scc1 {name}_xdone")
    A("s_mov_b64 exec, 1")
    flag_store(A, 118, 6, "s59")
    A("s_mov_b64 exec, -1")
    A.label(f"{name}_xdone")
    publish(A, C_QKV, 8, 118, 119, 6, 29, "s28", f"{name}_pa")
    A("s_setprio 0")
    tl_mark(A, 2)
    A("v_and_b32 v116, 15, v0")
    A("v_lshlrev_b32 v116, 7, v116")
    A.label(f"{name}_attn2")
    attn(A, name)


AC0, AC1 = 32, 48
XF = 64; WFK = 80; VSEL = 112; VCS = 120; VS1, VS2 = 124, 126

def xpub(A, L):
    A("s_mov_b64 exec, 1")
    A("s_waitcnt vmcnt(0)")
    A("v_readfirstlane_b32 s29, v116")
    A("s_cmp_eq_u32 s29, 0")
    A(f"s_cbranch_scc1 {L}_c")
    A("buffer_store_dwordx2 v[116:117], v118, s[20:23], s59 offen sc1")
    A("s_mov_b32 s57, 0")
    A(f"s_branch {L}_d")
    A.label(f"{L}_c")
    A("buffer_load_dwordx2 v[116:117], v118, s[52:55], 0 offen sc1")
    A.label(f"{L}_d")
    A("s_mov_b64 exec, -1")

def k1_setup(A):
    A("s_cmp_eq_u32 s3, 7")
    A("s_cselect_b32 s57, 5, 0")
    A("s_lshl_b32 s59, s24, 4")
    A("s_add_u32 s59, s59, s25")
    A("s_lshl_b32 s59, s59, 7")
    A(f"s_add_u32 s59, s59, {FL_X}")
    A("s_lshl_b32 s60, s24, 11")
    A(f"s_add_u32 s60, s60, {FL_X}")
    A("v_and_b32 v138, 15, v0")
    A("v_lshlrev_b32 v138, 7, v138")
    A("s_lshl_b32 s61, s24, 10")
    A("s_and_b32 s62, s3, 3")
    A("s_lshl_b32 s62, s62, 8")
    A("s_add_u32 s61, s61, s62")
    A(f"s_add_u32 s61, s61, {WS_ST}")
    A("v_and_b32 v23, 31, v0")
    A("v_lshlrev_b32 v23, 3, v23")
    A("s_mov_b32 s62, 0")
    A("s_and_b32 s26, s3, 3")
    A("v_and_b32 v4, 31, v0")
    A("v_lshrrev_b32 v5, 5, v0")
    A("v_bfe_u32 v6, v0, 1, 3")
    A("v_xor_b32 v6, v5, v6")
    A("s_lshl_b32 s34, s26, 12")
    A(f"s_add_u32 s34, s34, {K1B}")
    A("v_lshlrev_b32 v4, 7, v4")
    A("v_add_u32 v4, s34, v4")
    for s_ in range(4):
        A(f"v_xor_b32 v7, {2*s_}, v6")
        A(f"v_lshl_add_u32 v{11+s_}, v7, 4, v4")
    A("v_bfe_u32 v6, v0, 2, 2")
    A("v_lshl_add_u32 v6, v5, 3, v6")
    A("v_lshlrev_b32 v6, 6, v6")
    A("v_bfe_u32 v7, v0, 4, 1")
    A("v_lshl_add_u32 v6, v7, 5, v6")
    A("v_and_b32 v7, 3, v0")
    A("v_lshl_add_u32 v6, v7, 3, v6")
    A(f"v_add_u32 v15, {K1B + 16384}, v6")
    for r in range(32): A(f"v_mov_b32 v{AC0+r}, 0")
    for r in range(VCS, 128): A(f"v_mov_b32 v{r}, 0")
    A("v_and_b32 v6, 15, v0")
    A("v_bfe_u32 v7, v0, 4, 1")
    A("v_cmp_eq_u32 vcc, v6, v7")
    A("v_mov_b32 v6, 0x3f803f80")
    A("s_nop 0")
    A(f"v_cndmask_b32 v{VSEL}, 0, v6, vcc")
    for r in range(1, 4): A(f"v_mov_b32 v{VSEL+r}, v{VSEL}")
    A(f"s_mov_b32 s36, {2*K1_SLOT}")
    A("s_mov_b32 s39, 8")

def k1_compute(A, name, role):
    L = f"{name}_c{role}"
    lg = Cnt(A, "lgkmcnt", 15)
    WF = WFK
    nt = 2 if role == 0 else 1
    t0 = 0 if role == 0 else 2
    TM = 128
    A("s_setprio 3" if role == 1 else "s_setprio 2")
    def addrs():
        for i in range(5): A(f"v_add_u32 v{16+i}, s36, v{11+i}")
        A(f"s_add_u32 s36, s36, {K1_SLOT}")
        A(f"s_cmp_eq_u32 s36, {K1_SLOT*K1_NS}")
        A("s_cselect_b32 s36, 0, s36")
    def reads(s_):
        A(f"ds_read_b128 {v(XF+4*s_,4)}, v{16+s_}"); lg.issue(("x", s_))
        for T_ in range(nt):
            for p in range(2):
                A(f"ds_read_b64_tr_b16 {v(WF+8*s_+4*T_+2*p,2)}, v20 offset:{(t0+T_)*4096 + (16*s_+4*p)*64}")
                lg.issue(("w", s_, T_))
    def stats(s_, lo, hi):
        return
        for i in range(lo, hi):
            A(f"v_lshlrev_b32 v{TM+2*i}, 16, v{XF+4*s_+i}")
            A(f"v_and_b32 v{TM+2*i+1}, 0xffff0000, v{XF+4*s_+i}")
        for i in range(2 * lo, 2 * hi):
            A(f"v_add_f32 v{VS1+i%2}, v{VS1+i%2}, v{TM+i}")
            A(f"v_fmac_f32 v{VS2+i%2}, v{TM+i}, v{TM+i}")
    def step(s_):
        X = v(XF + 4 * s_, 4)
        if role == 0:
            lg.wait(("w", s_, 0))
            A(f"v_mfma_f32_32x32x16_bf16 {v(AC0,16)}, {v(WF+8*s_,4)}, {X}, {v(AC0,16)}")
            stats(s_, 0, 1)
            lg.wait(("w", s_, 1))
            A(f"v_mfma_f32_32x32x16_bf16 {v(AC1,16)}, {v(WF+8*s_+4,4)}, {X}, {v(AC1,16)}")
            stats(s_, 1, 2)
        else:
            lg.wait(("w", s_, 0))
            A(f"v_mfma_f32_32x32x16_bf16 {v(AC0,16)}, {X}, {v(WF+8*s_,4)}, {v(AC0,16)}")
            stats(s_, 2, 4)
    def colsum(half):
        cands = [(0, 0), (1, 4)] if role == 0 else [(2, 0)]
        for tbv, off in cands:
            A(f"s_cmp_eq_u32 s26, {tbv}")
            A(f"s_cbranch_scc0 {L}_nocs{half}_{tbv}")
            for s_ in (2 * half, 2 * half + 1):
                A(f"v_mfma_f32_16x16x32_bf16 {v(VCS,4)}, {v(VSEL,4)}, {v(WF+8*s_+off,4)}, {v(VCS,4)}")
            A.label(f"{L}_nocs{half}_{tbv}")
    addrs()
    A("s_barrier")
    reads(0); reads(1); reads(2); reads(3)
    top_state = list(lg.seq)
    A.label(f"{L}_loop")
    step(0); step(1)
    colsum(0)
    A("s_sub_u32 s39, s39, 1")
    A("s_cmp_eq_u32 s39, 0")
    A(f"s_cbranch_scc1 {L}_last")
    addrs()
    A("s_cmp_eq_u32 s39, 6")
    A(f"s_cbranch_scc0 {L}_noxf")
    A("s_waitcnt vmcnt(0)")
    A.label(f"{L}_noxf")
    A("s_cmp_eq_u32 s39, 2")
    A(f"s_cbranch_scc0 {L}_ns1")
    A("buffer_load_dwordx2 v[128:129], v118, s[52:55], 0 offen sc1")
    A("buffer_load_dwordx2 v[130:131], v138, s[20:23], s60 offen sc1")
    A.label(f"{L}_ns1")
    A("s_cmp_eq_u32 s39, 1")
    A(f"s_cbranch_scc0 {L}_ns2")
    A("s_waitcnt vmcnt(0)")
    A("v_readfirstlane_b32 s29, v128")
    A("v_cmp_ne_u64 vcc, v[128:129], v[130:131]")
    A("s_cmp_eq_u32 s29, 0")
    A(f"s_cbranch_scc1 {L}_ns2")
    A("s_cmp_eq_u64 vcc, 0")
    A(f"s_cbranch_scc0 {L}_ns2")
    A(f"buffer_load_dwordx2 {v(VS1,2)}, v23, s[20:23], s61 offen sc1")
    A("s_mov_b32 s62, 1")
    A.label(f"{L}_ns2")
    if role == 1:
        A("s_cmp_gt_u32 s39, s57")
        A(f"s_cbranch_scc1 {L}_nopub")
        xpub(A, f"{L}_xp")
        A.label(f"{L}_nopub")
    lg.wait_all()
    A("s_barrier")
    reads(0); reads(1)
    step(2); step(3)
    colsum(1)
    reads(2); reads(3)
    assert lg.seq == top_state, (lg.seq, top_state)
    A(f"s_branch {L}_loop")
    A.label(f"{L}_last")
    lg.wait_all()
    L = L + "x"
    step(2); step(3)
    colsum(1)
    tl_mark(A, 1)
    TB = K1T
    A("v_lshlrev_b32 v4, 2, v0")
    A("v_cmp_gt_u32 vcc, 16, v0")
    if role == 0:
        A("s_lshl_b32 s34, s26, 7")
        A("s_cmp_lt_u32 s26, 2")
    else:
        A("s_mov_b32 s34, 256")
        A("s_cmp_eq_u32 s26, 2")
    A("s_cselect_b32 s34, s34, 512")
    A("v_mov_b32 v5, 512")
    A("v_mov_b32 v6, s34")
    A("v_cndmask_b32 v5, v5, v6, vcc")
    A("v_add_u32 v5, v5, v4")
    A(f"v_add_u32 v5, {TB}, v5")
    A("s_nop 1")
    A(f"ds_write_b32 v5, v{VCS}")
    A(f"ds_write_b32 v5, v{VCS+1} offset:64")
    A("v_and_b32 v6, 31, v0")
    A("s_lshl_b32 s34, s26, 8")
    A(f"s_add_u32 s34, s34, {TB + 1024}")
    A("v_lshl_add_u32 v7, v6, 3, s34")
    A("v_lshlrev_b32 v6, 2, v6")
    A("v_lshrrev_b32 v8, 5, v0")
    A("v_lshlrev_b32 v8, 4, v8")
    A("s_lshl_b32 s37, s25, 7")
    A("s_lshl_b32 s35, s24, 2")
    A("s_add_u32 s37, s37, s35")
    A("s_add_u32 s37, s37, s26")
    A("s_waitcnt lgkmcnt(0)")
    arrive(A, C_WFREE, 118, 119)
    wait_cnt(A, C_WFREE, 8, 118, 9, 29, sleep=0)
    lg.seq = []
    if role == 0:
        A(f"v_add_u32 v8, {TB}, v8")
        for T_ in range(2):
            for g in range(4):
                A(f"ds_read_b128 {v(WF+16*T_+4*g,4)}, v8 offset:{T_*128 + g*32}"); lg.issue(("c", T_))
    else:
        A(f"v_add_u32 v9, {TB}, v6")
        A("ds_read_b32 v4, v9 offset:256"); lg.issue("c")
    A("s_cmp_eq_u32 s62, 1")
    A(f"s_cbranch_scc1 {L}_sok")
    if role == 1:
        A("s_cmp_eq_u32 s57, 0")
        A(f"s_cbranch_scc1 {L}_np")
        wait_ready(A, 118, 128, 29)
        A("s_mov_b64 exec, 1")
        flag_store(A, 118, 128, "s59")
        A("s_mov_b64 exec, -1")
        A("s_mov_b32 s57, 0")
        A.label(f"{L}_np")
    wait_ready(A, 118, 128, 29)
    poll_lanes(A, 20, 138, "s60", 128, sleep=1)
    A(f"buffer_load_dwordx2 {v(VS1,2)}, v23, s[20:23], s61 offen sc1")
    A.label(f"{L}_sok")
    A("s_waitcnt vmcnt(0)")
    M, RS = VS1, VS1 + 1
    if role == 0:
        A("s_lshl_b32 s35, s37, 11")
        A(f"s_add_u32 s36, s35, {WS_KV + 131072}")
        A(f"s_add_u32 s35, s35, {WS_KV}")
        A(f"v_mul_f32 v6, {hex(f2u(QSCALE))}, v{RS}")
        lg.wait(("c", 1))
        for r in range(16):
            A(f"v_fma_f32 v{AC1+r}, -v{M}, v{WF+16+r}, v{AC1+r}")
            A(f"v_mul_f32 v{AC1+r}, v{AC1+r}, v{RS}")
        for i in range(8): A(f"v_cvt_pk_bf16_f32 v{XF+8+i}, v{AC1+2*i}, v{AC1+2*i+1}")
        A(f"buffer_store_dwordx4 {v(XF+8,4)}, v2, s[20:23], s35 offen sc1")
        A(f"buffer_store_dwordx4 {v(XF+12,4)}, v2, s[20:23], s36 offen sc1")
        A("s_lshl_b32 s35, s37, 10")
        A(f"s_add_u32 s36, s35, {WS_Q + 65536}")
        for r in range(16):
            A(f"v_fma_f32 v{AC0+r}, -v{M}, v{WF+r}, v{AC0+r}")
            A(f"v_mul_f32 v{AC0+r}, v{AC0+r}, v6")
        for i in range(8): A(f"v_cvt_pk_bf16_f32 v{XF+i}, v{AC0+2*i}, v{AC0+2*i+1}")
        A(f"buffer_store_dwordx4 {v(XF,4)}, v2, s[20:23], s35 offen sc1")
        A(f"buffer_store_dwordx4 {v(XF+4,4)}, v2, s[20:23], s36 offen sc1")
    else:
        A("s_lshl_b32 s34, s3, 8")
        A(f"s_add_u32 s34, s34, {TB + 3072}")
        A("v_add_u32 v6, s34, v6")
        A("v_add_u32 v8, s34, v8")
        A(f"ds_write_b32 v6, v{M}"); lg.issue("w")
        A(f"ds_write_b32 v6, v{RS} offset:128"); lg.issue("w")
        for g in range(4):
            A(f"ds_read_b128 {v(WF+4*g,4)}, v8 offset:{g*32}"); lg.issue("m2")
        for g in range(4):
            A(f"ds_read_b128 {v(WF+16+4*g,4)}, v8 offset:{128 + g*32}"); lg.issue("rs")
        A("v_bfe_u32 v7, v0, 4, 1")
        A("v_lshlrev_b32 v7, 17, v7")
        A("v_lshrrev_b32 v5, 5, v0")
        A("v_lshl_add_u32 v7, v5, 8, v7")
        A("v_and_b32 v5, 15, v0")
        A("v_lshl_add_u32 v7, v5, 4, v7")
        A("s_lshl_b32 s35, s37, 11")
        A(f"s_add_u32 s35, s35, {WS_KV}")
        lg.wait("rs")
        for r in range(16):
            A(f"v_fma_f32 v{AC0+r}, -v{WF+r}, v4, v{AC0+r}")
            A(f"v_mul_f32 v{AC0+r}, v{AC0+r}, v{WF+16+r}")
        for i in range(8): A(f"v_cvt_pk_bf16_f32 v{XF+i}, v{AC0+2*i}, v{AC0+2*i+1}")
        A(f"buffer_store_dwordx4 {v(XF,4)}, v7, s[20:23], s35 offen offset:1024 sc1")
        A(f"buffer_store_dwordx4 {v(XF+4,4)}, v7, s[20:23], s35 offen offset:1536 sc1")

def attn(A, name):
    A("s_and_b32 s16, s2, 7")
    A("s_lshr_b32 s17, s2, 3")
    A("s_and_b32 s18, s17, 3")
    A("s_lshl_b32 s16, s16, 2")
    A("s_add_u32 s16, s16, s18")
    A("s_lshr_b32 s17, s17, 2")
    A("s_lshl_b32 s17, s17, 3")
    A("s_add_u32 s17, s17, s3")
    A("s_lshl_b32 s19, s16, 6")
    A("s_add_u32 s19, s19, s17")
    A("s_lshl_b32 s19, s19, 10")
    A("s_lshl_b32 s26, s16, 17")
    A(f"s_add_u32 s26, s26, {WS_KV}")
    A("s_lshl_b32 s27, s3, 10")
    A("s_add_u32 s28, s26, s27")
    A(f"s_add_u32 s27, s27, {ABASE}")
    A("v_lshrrev_b32 v3, 5, v0")
    A("v_lshlrev_b32 v3, 8, v3")
    A("v_and_b32 v4, 15, v0")
    A("v_lshlrev_b32 v4, 4, v4")
    A("v_add_u32 v3, v3, v4")
    A(f"v_add_u32 v108, {ABASE}, v2")
    A(f"v_add_u32 v109, {ABASE + 1024}, v3")
    A("s_lshl_b32 s29, s3, 2")
    A("s_add_u32 s29, s29, 128")
    A("v_mov_b32 v114, s29")
    A("v_mov_b32 v115, 1")
    A("v_and_b32 v117, 7, v0")
    A("v_lshlrev_b32 v117, 2, v117")
    A("s_mov_b32 s24, 0x0000ffff")
    A("s_mov_b32 s25, 0x0000ffff")
    A("v_and_b32 v4, 27, v0")
    A("v_cmp_eq_u32 vcc, 16, v4")
    A("v_mov_b32 v5, 0x3f803f80")
    A("s_nop 0")
    A("v_cndmask_b32 v5, 0, v5, vcc")
    for r in range(8): A(f"v_mov_b32 {v(VV0+r)}, v5")
    for r in range(16): A(f"v_mov_b32 {v(VO+r)}, 0")
    for r in range(4, 8): A(f"v_mov_b32 {v(VP[1]+r)}, 0")
    A("s_lshr_b32 s29, s16, 1")
    A("s_lshl_b32 s29, s29, 11")
    A(f"s_add_u32 s29, s29, {FL_A}")
    A("s_cmp_eq_u32 s3, 0")
    A(f"s_cbranch_scc0 {name}_gw")
    poll_lanes(A, 20, 116, "s29", 6, sleep=int(os.environ.get("PSL", "3")))
    arrive(A, C_GO, 118, 119)
    A(f"s_branch {name}_go")
    A.label(f"{name}_gw")
    wait_cnt(A, C_GO, 1, 118, 6, 30, sleep=2)
    A.label(f"{name}_go")
    tl_mark(A, 3)
    A(f"buffer_load_dwordx4 {v(VQ,4)}, v2, s[20:23], s19 offen sc1")
    A(f"buffer_load_dwordx4 {v(VK,4)}, v2, s[20:23], s26 offen sc1")
    def dma(off):
        A(f"s_add_u32 m0, s27, {off}")
        A("s_nop 0")
        A("buffer_load_dwordx4 v2, s[20:23], s28 offen sc1 lds")
        A("s_add_u32 s28, s28, 8192")
    for c in range(4): dma(c * 8192)
    A("s_waitcnt vmcnt(4)")
    A(f"v_mfma_f32_32x32x16_bf16 {v(VS[0],16)}, {v(VK,4)}, {v(VQ,4)}, 0")
    A("s_waitcnt vmcnt(2)")
    A("s_mov_b64 exec, 1")
    A("ds_write_b32 v114, v115")
    A("s_mov_b64 exec, -1")
    A("s_nop 7")
    A(f"v_max3_f32 v6, {v(VS[0])}, {v(VS[0]+1)}, {v(VS[0]+2)}")
    for r in range(3, 15, 2):
        A(f"v_max3_f32 v6, v6, {v(VS[0]+r)}, {v(VS[0]+r+1)}")
    A(f"v_max_f32 v6, v6, {v(VS[0]+15)}")
    def negm_fill():
        A("v_mov_b32 v4, v6")
        A("s_nop 1")
        A("v_permlane32_swap_b32 v4, v6")
        A("s_nop 1")
        A("v_max_f32 v6, v4, v6")
        A("v_sub_f32 v6, 0, v6")
        for r in range(16): A(f"v_mov_b32 {v(VNEG+r)}, v6")
    negm_fill()
    A(f"v_mov_b32 {v(VS[1]+14)}, 0")
    A(f"v_mov_b32 {v(VS[1]+15)}, 0")
    A(f"v_mfma_f32_32x32x16_bf16 {v(VS[0],16)}, {v(VK,4)}, {v(VQ,4)}, {v(VNEG,16)}")
    A.label(f"{name}_aw0")
    A("ds_read_b32 v116, v117 offset:128")
    A("s_waitcnt lgkmcnt(0)")
    A("v_cmp_eq_u32 vcc, 0, v116")
    A("s_nop 1")
    A("s_cmp_eq_u64 vcc, 0")
    A(f"s_cbranch_scc0 {name}_aw0")
    A("v_mov_b32 v115, 2")
    A(f"ds_read_b128 {v(VK,4)}, v108 offset:2048")
    A("s_mov_b64 exec, s[24:25]")
    A(f"ds_read_b128 {v(VV0,4)}, v109")
    A("s_mov_b64 exec, -1")
    A("s_mov_b32 s30, 0")
    A("s_mov_b32 s31, 1")
    A(f"s_mov_b32 s33, {4*8192}")
    A("s_mov_b32 s34, 16")
    A("s_xor_b32 s35, s3, 4")
    A("v_mov_b32 v110, v108")
    A("v_mov_b32 v111, v109")
    A("s_waitcnt lgkmcnt(0)")
    A.raw(".p2align 6")
    A.label(f"{name}_aloop")
    for tt in range(4):
        X = tt % 2; Y = 1 - X
        S = VS[X]; P = VP[X]; PP = VP[Y]; SY = VS[Y]
        e = lambda i: A(f"v_exp_f32 {v(S+i)}, {v(S+i)}")
        c = lambda i: A(f"v_cvt_pk_bf16_f32 {v(P+i)}, {v(S+2*i)}, {v(S+2*i+1)}")
        e(0)
        A(f"v_cvt_pk_bf16_f32 {v(PP+7)}, {v(SY+14)}, {v(SY+15)}")
        e(1)
        A(f"s_waitcnt lgkmcnt({0 if tt == 2 else 2})")
        A(f"v_mfma_f32_32x32x16_bf16 {v(SY,16)}, {v(VK,4)}, {v(VQ,4)}, {v(VNEG,16)}")
        if tt < 2:
            A(f"ds_read_b128 {v(VK,4)}, v110 offset:{(tt+2)*2048}")
        elif tt == 2:
            if asmlib.TIMELINE:
                A("s_mov_b32 m0, s34")
                A("s_nop 0")
                A("v_writelane_b32 v166, s94, m0")
                A("v_writelane_b32 v167, s96, m0")
            A("v_cmp_gt_u32 vcc, s31, v116")
            A("s_add_u32 s30, s30, 8192")
            A(f"s_cmp_eq_u32 s30, {NCH*8192}")
            A("s_cselect_b32 s30, 0, s30")
            A("v_add_u32 v112, s30, v108")
            A("v_add_u32 v113, s30, v109")
            A("s_cmp_eq_u64 vcc, 0")
            A(f"s_cbranch_scc0 {name}_aspin")
            A.label(f"{name}_aspin_ret")
            A(f"ds_read_b128 {v(VK,4)}, v112")
            A("s_add_u32 s31, s31, 1")
            A("v_readlane_b32 s29, v116, s35")
            A("s_cmp_lt_u32 s29, s31")
            A(f"s_cbranch_scc1 {name}_alow")
            A("s_setprio 1")
            A(f"s_branch {name}_aprio")
            A.label(f"{name}_alow")
            A("s_setprio 0")
            A.label(f"{name}_aprio")
            A("s_cmp_gt_u32 s34, 4")
            A(f"s_cbranch_scc0 {name}_anodma")
            dma("s33")
            A("s_add_u32 s33, s33, 8192")
            A(f"s_cmp_eq_u32 s33, {NCH*8192}")
            A("s_cselect_b32 s33, 0, s33")
            A.label(f"{name}_anodma")
        else:
            A(f"ds_read_b128 {v(VK,4)}, v112 offset:2048")
        e(2); c(0); e(3); e(4); c(1)
        A("s_waitcnt lgkmcnt(2)")
        if not os.environ.get("E2"): A(f"v_mfma_f32_32x32x16_bf16 {v(VO,16)}, {v(VV1,4)}, {v(PP+4,4)}, {v(VO,16)}")
        A("s_mov_b64 exec, s[24:25]" if not os.environ.get("E1") else "s_mov_b64 exec, 1")
        A(f"ds_read_b128 {v(VV1,4)}, v111 offset:{tt*2048+512}")
        if tt == 0:
            A("s_cmp_gt_u32 s34, 3")
            A("s_cbranch_scc1 " + f"{name}_aw1")
            A("s_waitcnt vmcnt(0)")
            A.label(f"{name}_aw1")
            A("s_waitcnt vmcnt(1)")
            A("s_mov_b64 exec, 1")
            A("ds_write_b32 v114, v115")
        A("s_mov_b64 exec, -1")
        e(5); e(6); c(2); e(7); e(8); c(3); e(9); e(10)
        A(f"s_waitcnt lgkmcnt({3 if tt == 0 else 2})")
        A(f"v_mfma_f32_32x32x16_bf16 {v(VO,16)}, {v(VV0,4)}, {v(P,4)}, {v(VO,16)}")
        A("s_mov_b64 exec, s[24:25]" if not os.environ.get("E1") else "s_mov_b64 exec, 1")
        if tt < 3: A(f"ds_read_b128 {v(VV0,4)}, v111 offset:{(tt+1)*2048}")
        else: A(f"ds_read_b128 {v(VV0,4)}, v113")
        A("s_mov_b64 exec, -1")
        if tt == 1 and asmlib.TIMELINE:
            A("s_memtime s[94:95]")
            A("s_memrealtime s[96:97]")
        if tt == 1:
            A("ds_read_b32 v116, v117 offset:128")
            A("v_add_u32 v115, 1, v115")
        c(4); e(11); e(12); c(5); e(13); e(14); c(6)
        if tt == 3:
            A("v_mov_b32 v110, v112")
            A("v_mov_b32 v111, v113")
            A("s_sub_u32 s34, s34, 1")
            A("s_cmp_lg_u32 s34, 0")
        e(15)
    A(f"s_cbranch_scc1 {name}_aloop")
    A("s_waitcnt lgkmcnt(0)")
    A(f"v_cvt_pk_bf16_f32 {v(VP[1]+7)}, {v(VS[1]+14)}, {v(VS[1]+15)}")
    A("s_setprio 2")
    A("s_nop 0")
    A(f"v_mfma_f32_32x32x16_bf16 {v(VO,16)}, {v(VV1,4)}, {v(VP[1]+4,4)}, {v(VO,16)}")
    A("s_lshl_b32 s19, s17, 5")
    A("s_add_u32 s19, s19, s16")
    A("s_lshr_b32 s18, s17, 3")
    A("s_lshl_b32 s18, s18, 5")
    A("s_add_u32 s18, s18, s16")
    A("s_lshl_b32 s18, s18, 7")
    A(f"s_add_u32 s18, s18, {FL_O}")
    A("s_lshl_b32 s19, s19, 10")
    A(f"s_add_u32 s19, s19, {WS_O}")
    A("s_mov_b32 s29, 0x7b800000")
    A("s_nop 1")
    A(f"v_add_f32_e64 v4, abs({v(VO)}), {v(VO+8)}")
    for r in range(1, 8):
        A(f"v_add_f32_e64 v4, abs({v(VO+r)}), v4")
    A("v_cmp_gt_f32 vcc, s29, v4")
    A("s_nop 1")
    A("s_cmp_eq_u64 vcc, -1")
    A(f"s_cbranch_scc0 {name}_aslow")
    A.label(f"{name}_astore")
    A(f"v_rcp_f32 v4, {v(VO+8)}")
    A("s_nop 0")
    for r in range(8): A(f"v_mul_f32 {v(VO+r)}, {v(VO+r)}, v4")
    for r in range(4): A(f"v_cvt_pk_bf16_f32 {v(VP[0]+r)}, {v(VO+2*r)}, {v(VO+2*r+1)}")
    A(f"buffer_store_dwordx4 {v(VP[0],4)}, v2, s[20:23], s19 offen sc1")
    tl_mark(A, 4)
    final(A, name)
    A(f"s_branch {name}_end")
    A.label(f"{name}_aspin")
    A("s_sleep 2")
    A("ds_read_b32 v116, v117 offset:128")
    A("s_waitcnt lgkmcnt(0)")
    A("v_cmp_gt_u32 vcc, s31, v116")
    A("s_nop 1")
    A("s_cmp_eq_u64 vcc, 0")
    A(f"s_cbranch_scc0 {name}_aspin")
    A(f"s_branch {name}_aspin_ret")
    A.label(f"{name}_aslow")
    A("s_waitcnt vmcnt(0) lgkmcnt(0)")
    A("v_mov_b32 v6, 0xff800000")
    A("s_mov_b32 s28, s26")
    A("s_mov_b32 s34, 64")
    A.label(f"{name}_smax")
    A(f"buffer_load_dwordx4 {v(VK,4)}, v2, s[20:23], s28 offen sc1")
    A("s_waitcnt vmcnt(0)")
    A(f"v_mfma_f32_32x32x16_bf16 {v(VS[0],16)}, {v(VK,4)}, {v(VQ,4)}, 0")
    A("s_add_u32 s28, s28, 2048")
    A("s_sub_u32 s34, s34, 1")
    A("s_nop 7")
    A("s_nop 1")
    for r in range(0, 16, 2):
        A(f"v_max3_f32 v6, v6, {v(VS[0]+r)}, {v(VS[0]+r+1)}")
    A("s_cmp_lg_u32 s34, 0")
    A(f"s_cbranch_scc1 {name}_smax")
    negm_fill()
    for r in range(16): A(f"v_mov_b32 {v(VO+r)}, 0")
    A("s_mov_b32 s28, s26")
    A("s_mov_b32 s34, 64")
    A.label(f"{name}_sloop")
    A(f"buffer_load_dwordx4 {v(VK,4)}, v2, s[20:23], s28 offen sc1")
    A("s_mov_b64 exec, s[24:25]")
    A(f"buffer_load_dwordx4 {v(VV0,4)}, v3, s[20:23], s28 offen offset:1024 sc1")
    A(f"buffer_load_dwordx4 {v(VV1,4)}, v3, s[20:23], s28 offen offset:1536 sc1")
    A("s_mov_b64 exec, -1")
    A("s_waitcnt vmcnt(0)")
    A(f"v_mfma_f32_32x32x16_bf16 {v(VS[0],16)}, {v(VK,4)}, {v(VQ,4)}, {v(VNEG,16)}")
    A("s_add_u32 s28, s28, 2048")
    A("s_sub_u32 s34, s34, 1")
    A("s_nop 7")
    A("s_nop 1")
    for r in range(16): A(f"v_exp_f32 {v(VS[0]+r)}, {v(VS[0]+r)}")
    A("s_nop 0")
    for r in range(8): A(f"v_cvt_pk_bf16_f32 {v(VP[0]+r)}, {v(VS[0]+2*r)}, {v(VS[0]+2*r+1)}")
    A("s_nop 1")
    A(f"v_mfma_f32_32x32x16_bf16 {v(VO,16)}, {v(VV0,4)}, {v(VP[0],4)}, {v(VO,16)}")
    A(f"v_mfma_f32_32x32x16_bf16 {v(VO,16)}, {v(VV1,4)}, {v(VP[0]+4,4)}, {v(VO,16)}")
    A("s_cmp_lg_u32 s34, 0")
    A(f"s_cbranch_scc1 {name}_sloop")
    A("s_nop 7")
    A("s_nop 3")
    A(f"s_branch {name}_astore")

def final(A, name):
    WR = 8; OR = 72; AC = 136
    A("s_and_b32 s24, s2, 3")
    A("s_lshl_b32 s24, s24, 3")
    A("s_bfe_u32 s25, s2, 0x30003")
    A("s_add_u32 s24, s24, s25")
    A("s_bfe_u32 s25, s2, 0x10002")
    A("s_lshl_b32 s25, s25, 2")
    A("s_lshr_b32 s26, s2, 6")
    A("s_add_u32 s25, s25, s26")
    A("s_and_b32 s26, s3, 1")
    A("s_bfe_u32 s27, s3, 0x10001")
    A("s_lshr_b32 s28, s3, 2")
    A("v_mov_b32 v160, 0")
    A("v_mov_b32 v161, 1")
    A("v_lshrrev_b32 v3, 5, v0")
    A("v_bfe_u32 v4, v0, 2, 2")
    A("v_lshl_add_u32 v4, v3, 2, v4")
    A("v_lshlrev_b32 v4, 7, v4")
    A("v_bfe_u32 v5, v0, 4, 1")
    A("v_lshlrev_b32 v5, 1, v5")
    A("v_bfe_u32 v6, v0, 1, 1")
    A("v_add_u32 v5, v5, v6")
    A("v_bfe_u32 v6, v0, 3, 1")
    A("v_xor_b32 v6, s27, v6")
    A("v_lshl_add_u32 v5, v6, 2, v5")
    A("v_lshl_add_u32 v4, v5, 4, v4")
    A("v_and_b32 v6, 1, v0")
    A("v_lshl_add_u32 v4, v6, 3, v4")
    A("s_lshl_b32 s29, s28, 15")
    A(f"s_add_u32 s29, s29, {BOFF}")
    A("v_add_u32 v4, s29, v4")
    A("v_and_b32 v5, 31, v0")
    A("s_lshl_b32 s29, s26, 5")
    A("v_add_u32 v5, s29, v5")
    A("s_lshl_b32 s29, s27, 6")
    A("s_lshl_b32 s30, s28, 5")
    A("s_add_u32 s29, s29, s30")
    A("v_lshl_add_u32 v6, v3, 4, s29")
    A(f"v_mul_u32_u24 v7, {GSTR}, v5")
    A("v_add_u32 v7, v7, v6")
    A(f"v_add_u32 v7, {GBUF}, v7")
    A("v_lshl_add_u32 v6, v5, 10, v6")
    A("s_lshl_b32 s30, s24, 16")
    A("s_lshl_b32 s31, s25, 7")
    A("s_add_u32 s30, s30, s31")
    A("buffer_load_dwordx4 v[152:155], v6, s[8:11], s30 offen")
    A("s_waitcnt vmcnt(1)")
    publish(A, C_O, 8, 160, 161, 162, 33, "s18", f"{name}_po")
    A("s_lshl_b32 s31, s24, 1")
    A("s_add_u32 s31, s31, s26")
    A("s_lshl_b32 s31, s31, 5")
    A("s_lshl_b32 s32, s28, 4")
    A("s_add_u32 s31, s31, s32")
    A("s_lshr_b32 s32, s24, 2")
    A("s_lshl_b32 s32, s32, 1")
    A("s_add_u32 s32, s32, s28")
    A("s_lshl_b32 s32, s32, 11")
    A(f"s_add_u32 s32, s32, {FL_O}")
    A("s_lshl_b32 s31, s31, 10")
    A(f"s_add_u32 s31, s31, {WS_O}")
    A("v_and_b32 v5, 15, v0")
    A("v_lshlrev_b32 v5, 7, v5")
    srd(A, 12, 44, 2048 * 1024)
    wait_cnt(A, C_G, 4, 160, 162, 33, sleep=2)
    lg = Cnt(A, "lgkmcnt", 15)
    for j in range(16):
        for p in range(2):
            A(f"ds_read_b64_tr_b16 {v(WR+4*j+2*p,2)}, v4 offset:{j*2048 + p*1024}"); lg.issue("w")
    A("ds_read_b128 v[156:159], v7"); lg.issue("w")
    A("s_lshl_b32 s33, s28, 2")
    A("v_mov_b32 v165, s33")
    A("s_and_b32 s33, s3, 3")
    A("s_cmp_eq_u32 s33, 0")
    A(f"s_cbranch_scc0 {name}_gw2")
    poll_lanes(A, 20, 5, "s32", 162, sleep=2)
    arrive(A, C_GO2, 165, 161)
    A(f"s_branch {name}_go2")
    A.label(f"{name}_gw2")
    wait_cnt(A, C_GO2, 1, 165, 162, 33, sleep=1)
    A("s_waitcnt vmcnt(0)")
    A.label(f"{name}_go2")
    tl_mark(A, 5)
    vm = Cnt(A, "vmcnt", 63)
    for j in range(16):
        if j % 4 == 0 and j: A("s_add_u32 s31, s31, 4096")
        A(f"buffer_load_dwordx4 {v(OR+4*j,4)}, v2, s[20:23], s31 offen offset:{(j%4)*1024} sc1"); vm.issue(("o", j))
    lg.wait_all()
    A("s_lshl_b32 s33, s3, 11")
    A(f"s_add_u32 s33, s33, {XCH}")
    A("v_add_u32 v3, s33, v2")
    A("v_xor_b32 v5, 8192, v3") if (XCH % 16384 == 0) else None
    if XCH % 16384:
        A("s_xor_b32 s33, s3, 4")
        A("s_lshl_b32 s33, s33, 11")
        A(f"s_add_u32 s33, s33, {XCH}")
        A("v_add_u32 v5, s33, v2")
    A("s_lshl_b32 s33, s3, 2")
    A("v_mov_b32 v163, s33")
    A("v_xor_b32 v164, 16, v163")
    for j in range(16):
        vm.wait(("o", j))
        A(f"v_mfma_f32_32x32x16_bf16 {v(AC,16)}, {v(WR+4*j,4)}, {v(OR+4*j,4)}, {v(AC,16) if j else 0}")
    A("s_cmp_eq_u32 s28, 0")
    A(f"s_cbranch_scc0 {name}_fk1")
    A("s_nop 7")
    A("s_nop 1")
    A(f"ds_write_b128 v3, {v(AC+8,4)}")
    A(f"ds_write_b128 v3, {v(AC+12,4)} offset:1024")
    A(f"s_branch {name}_fk")
    A.label(f"{name}_fk1")
    A("s_nop 7")
    A("s_nop 1")
    A(f"ds_write_b128 v3, {v(AC,4)}")
    A(f"ds_write_b128 v3, {v(AC+4,4)} offset:1024")
    A("s_waitcnt lgkmcnt(0)")
    for r in range(8): A(f"v_mov_b32 v{AC+r}, v{AC+8+r}")
    A.label(f"{name}_fk")
    A("s_waitcnt lgkmcnt(0)")
    A("s_mov_b64 exec, 1")
    A("ds_write_b32 v163, v161 offset:160")
    A("s_mov_b64 exec, -1")
    for i in range(4):
        A(f"v_lshlrev_b32 v{8+2*i}, 16, v{156+i}")
        A(f"v_and_b32 v{9+2*i}, 0xffff0000, v{156+i}")
        A(f"v_lshlrev_b32 v{16+2*i}, 16, v{152+i}")
        A(f"v_and_b32 v{17+2*i}, 0xffff0000, v{152+i}")
    wait_cnt(A, 160, 1, 164, 162, 33, sleep=0)
    A("ds_read_b128 v[24:27], v5")
    A("ds_read_b128 v[28:31], v5 offset:1024")
    A("s_waitcnt lgkmcnt(0)")
    for r in range(8): A(f"v_add_f32 v{AC+r}, v{AC+r}, v{24+r}")
    for i in range(4): A(f"v_cvt_pk_bf16_f32 v{24+i}, v{AC+2*i}, v{AC+2*i+1}")
    A("s_nop 1")
    A("v_permlane32_swap_b32 v24, v26")
    A("v_permlane32_swap_b32 v25, v27")
    A("s_nop 1")
    for i in range(4):
        A(f"v_lshlrev_b32 v{32+2*i}, 16, v{24+i}")
        A(f"v_and_b32 v{33+2*i}, 0xffff0000, v{24+i}")
    for i in range(8): A(f"v_mul_f32 v{32+i}, v{32+i}, v{8+i}")
    for i in range(4): A(f"v_cvt_pk_bf16_f32 v{24+i}, v{32+2*i}, v{33+2*i}")
    for i in range(4):
        A(f"v_lshlrev_b32 v{32+2*i}, 16, v{24+i}")
        A(f"v_and_b32 v{33+2*i}, 0xffff0000, v{24+i}")
    for i in range(8): A(f"v_add_f32 v{32+i}, v{32+i}, v{16+i}")
    for i in range(4): A(f"v_cvt_pk_bf16_f32 v{24+i}, v{32+2*i}, v{33+2*i}")
    A("buffer_store_dwordx4 v[24:27], v6, s[12:15], s30 offen")
    if os.environ.get("DBGSPAN"):
        A("s_waitcnt vmcnt(0)")
        A("s_memrealtime s[98:99]")
        A("s_waitcnt lgkmcnt(0)")
        A("s_sub_u32 s98, s98, s68")
        A("v_mov_b32 v1, s98")
        A("s_lshl_b32 s97, s3, 8")
        A("s_add_u32 s97, s97, s2")
        A("s_lshl_b32 s97, s97, 2")
        A("s_mov_b64 exec, 1")
        A("buffer_store_dword v1, v160, s[52:55], s97 offen offset:16")
        A("s_mov_b64 exec, -1")
    tl_end(A, 0, 20)
    tl_marks_out(A, 1, 6, 20)
    if asmlib.TIMELINE:
        A("s_lshl_b32 s58, s2, 3")
        A("s_add_u32 s58, s58, s3")
        A("s_lshl_b32 s58, s58, 9")
        A(f"s_add_u32 s58, s58, {100<<20}")
        A("v_lshlrev_b32 v1, 3, v0")
        A("buffer_store_dwordx2 v[166:167], v1, s[20:23], s58 offen")

class BBar:
    def __init__(self, name): self.n = 0; self.name = name; self.lg = None; self.boost = False
    def __call__(self, A):
        self.n += 1
        if self.boost: A("s_setprio 2")
        A("s_mov_b64 exec, 2")
        A("ds_add_u32 v7, v7 offset:64")
        A("s_mov_b64 exec, 1")
        A.label(f"{self.name}_bb{self.n}")
        A("ds_read_b32 v1, v7 offset:80")
        A("s_waitcnt lgkmcnt(0)")
        A("v_readfirstlane_b32 s56, v1")
        A(f"s_cmp_ge_u32 s56, {64*self.n}")
        A(f"s_cbranch_scc0 {self.name}_bb{self.n}")
        A("s_mov_b64 exec, -1")
        if self.boost: A("s_setprio 0")
        if self.lg is not None: self.lg.seq = []

def lb_role(A, name):
    A("s_sub_u32 s3, s3, 8")
    A("v_lshlrev_b32 v7, 2, v0")
    A("v_mov_b32 v1, 0")
    A("ds_write_b32 v7, v1")
    A("v_lshlrev_b32 v7, 4, v0")
    rc_qkv(A)
    A("v_lshrrev_b32 v4, 3, v0")
    A("v_and_b32 v5, 7, v0")
    A("v_lshrrev_b32 v6, 4, v0")
    A("v_xor_b32 v5, v5, v6")
    A("v_xor_b32 v8, 4, v5")
    A("s_lshl_b32 s28, s3, 15")
    A("v_lshlrev_b32 v4, 10, v4")
    A("v_add_u32 v4, s28, v4")
    A("v_lshl_add_u32 v60, v5, 4, v4")
    A("v_lshl_add_u32 v61, v8, 4, v4")
    A("v_add_u32 v61, 8192, v61")
    A("v_add_u32 v62, 16384, v60")
    A("v_add_u32 v63, 16384, v61")
    A("v_lshrrev_b32 v4, 2, v0")
    A("s_lshl_b32 s28, s3, 4")
    A("v_add_u32 v4, s28, v4")
    A("v_mul_u32_u24 v4, 3072, v4")
    A("v_and_b32 v5, 3, v0")
    A("v_lshl_add_u32 v64, v5, 4, v4")
    A("s_lshl_b32 s28, s25, 6")
    A("v_add_u32 v64, s28, v64")
    A("v_add_u32 v65, 1024, v64")
    A("v_add_u32 v66, 2048, v64")
    A("s_lshl_b32 s70, s24, 1")
    A("s_add_u32 s70, s70, s25")
    A("s_and_b32 s70, s70, 7")
    A("s_lshl_b32 s71, s24, 17")
    A("s_lshl_b32 s72, s3, 12")
    A(f"s_add_u32 s72, s72, {K1B}")
    A("s_lshl_b32 s73, s3, 10")
    A(f"s_add_u32 s73, s73, {K1B + 16384}")
    A(f"s_mov_b32 s74, {2*K1_SLOT}")
    A("s_waitcnt lgkmcnt(0)")
    A("s_barrier")
    srd(A, 60, 4, 2048 * 1024)
    srd(A, 64, 6, 512 * 3072)
    srd(A, 20, 16, WS_END)
    srd(A, 52, 18, 256)
    def ldma():
        A("s_lshl_b32 s75, s70, 7")
        A("s_add_u32 s75, s75, s71")
        A(f"s_mul_i32 s76, s70, {64*3072}")
        A("s_add_u32 s70, s70, 1")
        A("s_and_b32 s70, s70, 7")
        A("s_add_u32 s77, s72, s74")
        A("s_add_u32 s78, s73, s74")
        for e in range(4):
            A(f"s_add_u32 m0, s77, {e*1024}")
            A("s_nop 0")
            A(f"buffer_load_dwordx4 v{60+e}, s[60:63], s75 offen lds")
        for T_ in range(3):
            A(f"s_add_u32 m0, s78, {T_*4096}")
            A("s_nop 0")
            A(f"buffer_load_dwordx4 v{64+T_}, s[64:67], s76 offen lds")
        A(f"s_add_u32 s74, s74, {K1_SLOT}")
        A(f"s_cmp_eq_u32 s74, {K1_SLOT*K1_NS}")
        A("s_cselect_b32 s74, 0, s74")
    A("s_mov_b32 s79, 0")
    A.label(f"{name}_lpro")
    ldma()
    A("s_add_u32 s79, s79, 1")
    A(f"s_cmp_lt_u32 s79, {K1_PRO}")
    A(f"s_cbranch_scc1 {name}_lpro")
    A("s_mov_b32 s4, s48")
    A("s_mov_b32 s5, s49")
    A("s_mov_b32 s6, s50")
    A("s_mov_b32 s7, s51")
    bar = BBar(name)
    def prologue(A, dma, vm):
        issued = K1_PRO; seq = [("k", st) for st in range(K1_PRO) for _ in range(7)]
        A("s_lshl_b32 s36, s24, 11")
        A(f"s_add_u32 s36, s36, {FL_X}")
        A("v_and_b32 v1, 15, v0")
        A("v_lshlrev_b32 v1, 7, v1")
        A("v_mov_b32 v67, 0")
        A("s_and_b32 s37, s24, 7")
        A("s_lshl_b32 s37, s37, 1")
        A("s_and_b32 s38, s3, 1")
        A("s_add_u32 s37, s37, s38")
        A("s_lshl_b32 s37, s37, 5")
        A("v_and_b32 v68, 31, v0")
        A("v_add_u32 v68, s37, v68")
        A("v_mul_u32_u24 v68, 3584, v68")
        A("v_add_u32 v68, s28, v68")
        A("v_lshrrev_b32 v69, 5, v0")
        A("v_lshl_add_u32 v69, v69, 7, v68")
        TJ = int(os.environ.get("TJ", "-1"))
        for j in range(8):
            idx = max(i for i, t in enumerate(seq) if t == ("k", j))
            A(f"s_waitcnt vmcnt({len(seq) - 1 - idx})")
            A("s_barrier")
            if issued < 8 and issued - 4 <= j:
                ldma(); seq += [("k", issued)] * 7; issued += 1
                if j == TJ:
                    A("buffer_load_dword v70, v69, s[8:11], 0 offen")
                    A("buffer_load_dword v71, v68, s[8:11], 0 offen offset:220")
                    seq += [("t", 0)] * 2
            elif j == 6:
                A("buffer_load_dwordx2 v[12:13], v67, s[52:55], 0 offen sc1")
                A("buffer_load_dwordx2 v[14:15], v1, s[20:23], s36 offen sc1")
                dma(0); seq += [("g", 0)] * 9
        assert issued == 8
        A("s_waitcnt vmcnt(7)")
        A("v_readfirstlane_b32 s68, v12")
        A("v_readfirstlane_b32 s69, v13")
        A("v_cmp_ne_u64 vcc, v[12:13], v[14:15]")
        A("s_cmp_eq_u32 s68, 0")
        A(f"s_cbranch_scc1 {name}_xslow")
        A("s_cmp_eq_u64 vcc, 0")
        A(f"s_cbranch_scc1 {name}_xok")
        A.label(f"{name}_xslow")
        wait_ready(A, 67, 12, 37)
        poll_lanes(A, 20, 1, "s36", 12, sleep=1)
        A.label(f"{name}_xok")
        if os.environ.get("BWAIT"):
            wait_cnt(A, C_QKV, 8, 67, 71, 37, sleep=2)
        tl_mark(A, 4)
    def wait_slot2(A, lg):
        A("v_mov_b32 v0, 0")
        wait_cnt(A, C_WFREE, 8, 0, 1, 37)
        lg.seq = []
    ffn.gu_body(A, name + "_gu", bar, st_flags="sc1", lds0=BOFF, x_flags=os.environ.get("XFL", "sc1"), prologue=prologue, wait_slot2=wait_slot2)
    A("s_waitcnt vmcnt(0)")
    bar(A)
    A("s_cmp_eq_u32 s3, 0")
    A(f"s_cbranch_scc0 {name}_noflag")
    A("s_lshl_b32 s34, s24, 4")
    A("s_add_u32 s34, s34, s25")
    A("s_lshl_b32 s34, s34, 7")
    A(f"s_add_u32 s34, s34, {FL_H}")
    A("v_mov_b32 v1, 0")
    A("s_mov_b64 exec, 1")
    flag_store(A, 1, 2, "s34")
    A("s_mov_b64 exec, -1")
    A.label(f"{name}_noflag")
    tl_mark(A, 1)
    A("s_mov_b32 s4, s46")
    A("s_mov_b32 s5, s47")
    A("v_lshrrev_b32 v0, 4, v7")
    ctx = ffn.sk_body(A, name + "_dn", bar, 28, WS_H, 112 * 1024, 1792 * 1024, "g", ld_flags="sc1", lds0=BOFF)
    def wait_act(A):
        A("s_lshr_b32 s34, s24, 1")
        A("s_lshl_b32 s34, s34, 11")
        A("s_lshl_b32 s35, s3, 9")
        A("s_add_u32 s34, s34, s35")
        A(f"s_add_u32 s34, s34, {FL_H}")
        A("v_and_b32 v1, 3, v0")
        A("v_lshlrev_b32 v1, 7, v1")
        poll_lanes(A, 20, 1, "s34", 16, sleep=4)
        tl_mark(A, 2)
        ctx["vm"].seq = []
    bar.lg = ctx["lg"]
    def after_red_reads(A):
        bar(A)
        srd(A, 8, 42, 512 * 1024)
        A("s_lshl_b32 s27, s3, 17")
        A("s_lshl_b32 s28, s3, 14")
        A(f"s_add_u32 s28, s28, {BOFF}")
        for j in range(8):
            A(f"s_add_u32 s31, s27, {j*16384}")
            A(f"s_add_u32 m0, s28, {j*2048}")
            A("s_nop 0")
            A("buffer_load_dwordx4 v8, s[8:11], s31 offen lds")
            A(f"s_add_u32 m0, s28, {j*2048 + 1024}")
            A("s_nop 0")
            A("buffer_load_dwordx4 v9, s[8:11], s31 offen lds")
    ffn.sk_main(A, name + "_dn", bar, 28, ctx, "glds", wait_act=wait_act, lds0=BOFF, after_red_reads=after_red_reads, gbuf=(GBUF, GSTR))
    A("s_waitcnt vmcnt(0) lgkmcnt(0)")
    A("v_mov_b32 v1, 0")
    A("v_mov_b32 v2, 1")
    arrive(A, C_G, 1, 2)
    A("s_add_u32 s3, s3, 8")
    tl_end(A, 8, 20)
    tl_marks_out(A, 9, 7 if os.environ.get('GUT') else 5, 20)

def gen(A, name=NAME):
    kernel_begin(A, name)
    A("s_cmp_ge_u32 s2, 256")
    A(f"s_cbranch_scc1 F_end")
    if os.environ.get("PERM"):
        A("s_lshr_b32 s3, s2, 5")
        A("s_and_b32 s2, s2, 31")
        A("s_lshl_b32 s2, s2, 3")
        A("s_or_b32 s2, s2, s3")
    tl_begin(A)
    A("s_load_dwordx4 s[4:7], s[0:1], 0")
    A("s_load_dwordx2 s[42:43], s[0:1], 16")
    A("s_load_dwordx4 s[48:51], s[0:1], 32")
    A("s_load_dwordx2 s[46:47], s[0:1], 48")
    A("s_load_dwordx2 s[44:45], s[0:1], 56")
    A("s_load_dwordx2 s[18:19], s[0:1], 64")
    A("s_load_dwordx2 s[16:17], s[0:1], 72")
    A("v_lshrrev_b32 v1, 6, v0")
    A("v_and_b32 v0, 63, v0")
    A("s_nop 0")
    A("v_readfirstlane_b32 s3, v1")
    A("s_cmp_lt_u32 s3, 8")
    A("s_cbranch_scc0 F_lb")
    ca_role(A, "F")
    A.label("F_lb")
    ffn.PRIO = True
    A("s_setprio 2")
    asmlib.MARK_OFF = bool(os.environ.get("GUT"))
    lb_role(A, "F")
    ffn.PRIO = False
    A.label("F_end")
    A("s_endpgm")
```

```python
from asmlib import *
import struct, os
def f2u(x):
    return struct.unpack("<I", struct.pack("<f", x))[0]
LOG2E = 1.4426950408889634
PRIO = False
def prio(A, p):
    if p == 0: p = int(os.environ.get("BLOW", "0"))
    if PRIO: A(f"s_setprio {p}")

GU_SLOT = 28928
GU_NS = 3
GU_LDS = GU_SLOT * GU_NS
GU_UPOFF = 14336 + 128

def gu_body(A, L, barrier, st_flags="", lds0=0, x_flags="", wait_x=None, wait_slot2=None, prologue=None):
    vm = Cnt(A, "vmcnt", 63); lg = Cnt(A, "lgkmcnt", 15)
    if hasattr(barrier, "lg"): barrier.lg = lg
    ACC = 56; WF = 28; XR = 12
    DO = [2, 3, 4, 5, 6, 8, 9]
    A("s_and_b32 s24, s2, 1")
    A("s_lshl_b32 s24, s24, 3")
    A("s_bfe_u32 s25, s2, 0x30003")
    A("s_add_u32 s24, s24, s25")
    A("s_bfe_u32 s25, s2, 0x20001")
    A("s_lshl_b32 s25, s25, 2")
    A("s_lshr_b32 s26, s2, 6")
    A("s_add_u32 s25, s25, s26")
    A("s_cmp_lt_u32 s3, 2")
    A("s_cselect_b32 s8, s4, s6")
    A("s_cselect_b32 s9, s5, s7")
    A(f"s_mov_b32 s10, {512*3584}")
    A("s_mov_b32 s11, 0x00020000")
    A("s_and_b32 s26, s3, 1")
    A("s_mul_i32 s27, s26, 448")
    A("s_mul_i32 s28, s25, 224")
    A("s_mov_b32 s29, 18725")
    for i in range(7):
        A(f"v_add_u32 v12, {i*64}, v0")
        A("v_add_u32 v12, s27, v12")
        A("v_mul_u32_u24 v13, s29, v12")
        A("v_lshrrev_b32 v13, 18, v13")
        A("v_mul_u32_u24 v14, 14, v13")
        A("v_sub_u32 v14, v12, v14")
        A("v_mul_u32_u24 v13, 3584, v13")
        A("v_lshl_add_u32 v13, v14, 4, v13")
        A(f"v_add_u32 v{DO[i]}, s28, v13")
    A("s_mul_i32 s27, s26, 7168")
    A("s_lshr_b32 s26, s3, 1")
    A(f"s_mul_i32 s26, s26, {GU_UPOFF}")
    A("s_add_u32 s27, s27, s26")
    if lds0: A(f"s_add_u32 s27, s27, {lds0}")
    A("s_lshl_b32 s30, s25, 1")
    A("s_add_u32 s30, s30, s24")
    A("s_and_b32 s30, s30, 7")
    A("s_mov_b32 s31, s30")
    A("s_lshl_b32 s32, s24, 2")
    A("s_add_u32 s32, s32, s3")
    A("s_lshl_b32 s33, s32, 15")
    A(f"s_add_u32 s33, s33, {WS_XF}")
    A("v_lshlrev_b32 v7, 4, v0")
    A("v_lshrrev_b32 v12, 5, v0")
    A("v_bfe_u32 v13, v0, 2, 2")
    A("v_lshl_add_u32 v12, v12, 3, v13")
    A("v_mul_u32_u24 v12, 224, v12")
    A("v_bfe_u32 v13, v0, 4, 1")
    A(f"v_mul_u32_u24 v13, {GU_UPOFF}, v13")
    A("v_add_u32 v12, v12, v13")
    A("v_and_b32 v13, 3, v0")
    A("v_lshl_add_u32 v10, v13, 3, v12")
    if lds0: A(f"v_add_u32 v10, {lds0}, v10")
    A(f"v_add_u32 v11, {2*GU_SLOT}, v10")
    def dma1(st, i):
        if i == 0:
            A(f"s_mul_i32 s34, s30, {64*3584}")
            A("s_add_u32 s30, s30, 1")
            A("s_and_b32 s30, s30, 7")
        A(f"s_add_u32 m0, s27, {(st%GU_NS)*GU_SLOT + i*1024}")
        A("s_nop 0")
        A(f"buffer_load_dwordx4 v{DO[i]}, s[8:11], s34 offen lds"); vm.issue(("d", st))
    def dma(st):
        for i in range(7): dma1(st, i)
    def xload(j):
        if j >= 32 or (os.environ.get("NOX") and j >= 4): return
        if j % 4 == 0:
            A("s_lshl_b32 s35, s31, 12")
            A("s_add_u32 s35, s35, s33")
            A("s_add_u32 s31, s31, 1")
            A("s_and_b32 s31, s31, 7")
        A(f"buffer_load_dwordx4 {v(XR+4*(j%4),4)}, v7, s[20:23], s35 offen offset:{(j%4)*1024} {x_flags}"); vm.issue(("x", j))
    def wread(j, ft):
        st, s_ = j // 4, j % 4
        for p in range(2):
            sl = st % GU_NS
            A(f"ds_read_b64_tr_b16 {v(WF+4*ft+2*p,2)}, v{11 if sl == 2 else 10} offset:{(GU_SLOT if sl == 1 else 0) + (16*s_+4*p)*224 + ft*32}"); lg.issue(("w", j, ft))
    if prologue:
        prologue(A, dma, vm)
        for j in range(4): xload(j)
        if os.environ.get("TOUCH"):
            A("v_lshlrev_b32 v1, 3, v7")
            for i in range(4):
                A(f"s_add_u32 s36, s33, {i*8192}")
                A(f"buffer_load_dword v{WF+i}, v1, s[20:23], s36 offen {x_flags}"); vm.issue("touch")
        dma(1)
        vm.wait("touch")
    elif wait_x:
        dma(0); dma(1)
        wait_x(A, vm)
        for j in range(4): xload(j)
    else:
        dma(0)
        for j in range(4): xload(j)
        dma(1)
    vm.wait(("d", 0))
    if os.environ.get("GUT") == "2": tl_mark(A, 0, force=True)
    barrier(A)
    if os.environ.get("GUT") == "2": tl_mark(A, 1, force=True)
    for ft in range(7): wread(0, ft)
    pend = []
    deep = prologue is not None and not os.environ.get("NODEEP")
    prio(A, 0)
    if hasattr(barrier, "boost"): barrier.boost = True
    for j in range(32):
        st, s_ = j // 4, j % 4
        if s_ == 3 and st < 7:
            vm.wait(("d", st + 1))
            barrier(A)
            if deep:
                pend = pend + ([(st + 3, i) for i in range(7)] if st + 3 < 8 else [])
            else:
                pend = [(st + 2, i) for i in range(7)] if st + 2 < 8 else []
                if st == 0 and wait_slot2: wait_slot2(A, lg)
        if deep and j == 1:
            wait_slot2(A, lg)
            pend = [(2, i) for i in range(7)]
        vm.wait(("x", j))
        for ft in range(7):
            lg.wait(("w", j, ft))
            A(f"v_mfma_f32_32x32x16_bf16 {v(ACC+16*ft,16)}, {v(WF+4*ft,4)}, {v(XR+4*(j%4),4)}, {v(ACC+16*ft,16) if j else 0}")
            if j + 1 < 32 and not (os.environ.get("E3") and ft % 2): wread(j + 1, ft)
            SP = int(os.environ.get("SP", "4"))
            if pend and ((not deep and ft % 2 == 0) or (deep and ((7 * j + ft) % SP == 0 or (j < 4 and ft % 2 == 0)))): dma1(*pend.pop(0))
        xload(j + 4)
        if os.environ.get("GUT") == "1" and j % 4 == 3 and j // 4 < 7: tl_mark(A, j // 4, force=True)
        if os.environ.get("GUT") == "2" and j < 5: tl_mark(A, j + 2, force=True)
        if os.environ.get("GUT") == "3" and 4 <= j < 11: tl_mark(A, j - 4, force=True)
    tl_mark(A, 0)
    prio(A, 2)
    if hasattr(barrier, "boost"): barrier.boost = False
    A("s_mul_i32 s34, s32, 112")
    A("s_mul_i32 s35, s25, 7")
    A("s_add_u32 s34, s34, s35")
    A("s_lshl_b32 s34, s34, 10")
    A(f"s_add_u32 s34, s34, {WS_H}")
    A("s_add_u32 s35, s34, 4096")
    A(f"v_mov_b32 v1, {hex(f2u(-LOG2E))}")
    for ft in range(7):
        G = ACC + 16 * ft; U = G + 8
        if ft == 6: A("s_nop 3")
        for r in range(8): A(f"v_mul_f32 v{G+r}, v1, v{G+r}")
        for r in range(8): A(f"v_exp_f32 v{G+r}, v{G+r}")
        for r in range(8): A(f"v_add_f32 v{G+r}, 1.0, v{G+r}")
        for r in range(8): A(f"v_rcp_f32 v{G+r}, v{G+r}")
        for r in range(8): A(f"v_mul_f32 v{G+r}, v{G+r}, v{U+r}")
        for r in range(4): A(f"v_cvt_pk_bf16_f32 v{U+r}, v{G+2*r}, v{G+2*r+1}")
        so = "s34" if ft < 4 else "s35"
        A(f"buffer_store_dwordx4 {v(U,4)}, v7, s[20:23], {so} offen offset:{(ft%4)*1024} {st_flags}")

def gen_gu(A, name="gu_kernel"):
    kernel_begin(A, name)
    A("s_cmp_ge_u32 s2, 256")
    A(f"s_cbranch_scc1 {name}_end")
    tl_begin(A)
    A("s_load_dwordx4 s[4:7], s[0:1], 32")
    A("s_load_dwordx2 s[16:17], s[0:1], 72")
    A("v_lshrrev_b32 v1, 6, v0")
    A("v_and_b32 v0, 63, v0")
    A("s_nop 0")
    A("v_readfirstlane_b32 s3, v1")
    A("s_waitcnt lgkmcnt(0)")
    srd(A, 20, 16, WS_END)
    gu_body(A, name, lambda A: A("s_barrier"))
    tl_end(A, 2, 20)
    A.label(f"{name}_end")
    A("s_endpgm")

RED_STRIDE = 272
RED_WAVE = 64 * RED_STRIDE
SK_LDS = 4 * RED_WAVE

def sk_body(A, L, barrier, nks, act_base, act_tile_stride, wbytes, mode, ld_flags="", lds0=0):
    vm = Cnt(A, "vmcnt", 63); lg = Cnt(A, "lgkmcnt", 15)
    ACC = 104; HR = 40; WF = 24
    PD = min(7, nks)
    A("s_and_b32 s24, s2, 3")
    A("s_lshl_b32 s24, s24, 3")
    A("s_bfe_u32 s25, s2, 0x30003")
    A("s_add_u32 s24, s24, s25")
    A("s_bfe_u32 s25, s2, 0x10002")
    A("s_lshl_b32 s25, s25, 2")
    A("s_lshr_b32 s26, s2, 6")
    A("s_add_u32 s25, s25, s26")
    srd(A, 8, 4, wbytes)
    A("v_lshrrev_b32 v1, 3, v0")
    A("v_and_b32 v2, 7, v0")
    A("v_bfe_u32 v3, v0, 4, 1")
    A("v_lshlrev_b32 v3, 2, v3")
    A("v_xor_b32 v2, v2, v3")
    A("v_lshlrev_b32 v1, 10, v1")
    A("v_lshl_add_u32 v8, v2, 4, v1")
    A("s_lshl_b32 s26, s25, 7")
    A("v_add_u32 v8, s26, v8")
    A("v_add_u32 v9, 8192, v8")
    A(f"s_mul_i32 s27, s3, {nks*16*1024}")
    A(f"s_mul_i32 s28, s3, 14336")
    if lds0: A(f"s_add_u32 s28, s28, {lds0}")
    A(f"s_mul_i32 s29, s24, {2*act_tile_stride}")
    A(f"s_mul_i32 s30, s3, {nks*1024}")
    A("s_add_u32 s29, s29, s30")
    A(f"s_add_u32 s29, s29, {act_base}")
    A(f"s_add_u32 s30, s29, {act_tile_stride}")
    A("v_lshlrev_b32 v7, 4, v0")
    A("v_lshrrev_b32 v1, 5, v0")
    A("v_bfe_u32 v2, v0, 2, 2")
    A("v_lshl_add_u32 v1, v1, 2, v2")
    A("v_lshlrev_b32 v1, 7, v1")
    A("v_bfe_u32 v3, v0, 4, 1")
    A("v_lshlrev_b32 v3, 1, v3")
    A("v_bfe_u32 v14, v0, 1, 1")
    A("v_add_u32 v3, v3, v14")
    A("v_bfe_u32 v14, v0, 3, 1")
    A("v_lshl_add_u32 v3, v14, 2, v3")
    A("v_lshl_add_u32 v1, v3, 4, v1")
    A("v_and_b32 v14, 1, v0")
    A("v_lshl_add_u32 v1, v14, 3, v1")
    A("v_add_u32 v10, s28, v1")
    A("v_xor_b32 v11, 64, v10")
    def dma(j):
        if j >= nks: return
        A(f"s_add_u32 s31, s27, {j*16384}")
        A(f"s_add_u32 m0, s28, {(j%7)*2048}")
        A("s_nop 0")
        A("buffer_load_dwordx4 v8, s[8:11], s31 offen lds"); vm.issue(("d", j))
        A(f"s_add_u32 m0, s28, {(j%7)*2048 + 1024}")
        A("s_nop 0")
        A("buffer_load_dwordx4 v9, s[8:11], s31 offen lds"); vm.issue(("d", j))
    def hload(j):
        if j >= nks: return
        if j % 4 == 0 and j:
            A("s_add_u32 s29, s29, 4096")
            A("s_add_u32 s30, s30, 4096")
        A(f"buffer_load_dwordx4 {v(HR+8*(j%7),4)}, v7, s[20:23], s29 offen offset:{(j%4)*1024} {ld_flags}"); vm.issue(("h", j))
        A(f"buffer_load_dwordx4 {v(HR+8*(j%7)+4,4)}, v7, s[20:23], s30 offen offset:{(j%4)*1024} {ld_flags}"); vm.issue(("h", j))
    def wread(j):
        for jn in range(2):
            for p in range(2):
                A(f"ds_read_b64_tr_b16 {v(WF+8*(j%2)+4*jn+2*p,2)}, v{10+jn} offset:{(j%7)*2048 + p*1024}"); lg.issue(("w", j, jn))
    return dict(vm=vm, lg=lg, dma=dma, hload=hload, wread=wread, ACC=ACC, HR=HR, WF=WF, PD=PD)

def sk_main(A, L, barrier, nks, ctx, mode, pre_w=True, wait_act=None, lds0=0, after_red_reads=None, gbuf=None):
    vm, lg, dma, hload, wread = ctx["vm"], ctx["lg"], ctx["dma"], ctx["hload"], ctx["wread"]
    ACC, HR, WF = ctx["ACC"], ctx["HR"], ctx["WF"]
    for j in range(6): dma(j)
    if wait_act: wait_act(A)
    for j in range(7): hload(j)
    if mode == "out":
        A("v_lshrrev_b32 v1, 3, v0")
        A("s_lshl_b32 s33, s24, 6")
        A("s_lshl_b32 s34, s3, 4")
        A("s_add_u32 s33, s33, s34")
        A("v_add_u32 v1, s33, v1")
        A("v_lshlrev_b32 v1, 10, v1")
        A("v_and_b32 v2, 7, v0")
        A("v_lshl_add_u32 v1, v2, 4, v1")
        A("s_lshl_b32 s33, s25, 7")
        A("v_add_u32 v12, s33, v1")
        A("v_add_u32 v13, 8192, v12")
        srd(A, 12, 6, 2048 * 1024)
        A(f"s_mov_b32 s33, {WS_G}")
        A("buffer_load_dwordx4 v[168:171], v12, s[12:15], 0 offen"); vm.issue("xg")
        A("buffer_load_dwordx4 v[172:175], v13, s[12:15], 0 offen"); vm.issue("xg")
        A("buffer_load_dwordx4 v[176:179], v12, s[20:23], s33 offen"); vm.issue("xg")
        A("buffer_load_dwordx4 v[180:183], v13, s[20:23], s33 offen"); vm.issue("xg")
    vm.wait(("d", 0))
    wread(0)
    if PRIO: A(f"s_setprio {os.environ.get('DPRIO', '0')}")
    for j in range(nks):
        if j + 1 < nks:
            vm.wait(("d", j + 1))
            wread(j + 1)
        vm.wait(("h", j))
        for jn in range(2):
            lg.wait(("w", j, jn))
            for t in range(2):
                a_ = ACC + 32 * t + 16 * jn
                A(f"v_mfma_f32_32x32x16_bf16 {v(a_,16)}, {v(WF+8*(j%2)+4*jn,4)}, {v(HR+8*(j%7)+4*t,4)}, {v(a_,16) if j else 0}")
        dma(j + 6)
        hload(j + 7)
    if mode[0] == "g": tl_mark(A, 3)
    prio(A, 2)
    barrier(A)
    A("v_and_b32 v14, 31, v0")
    A(f"v_mul_u32_u24 v14, {RED_STRIDE}, v14")
    A("v_lshrrev_b32 v2, 5, v0")
    A("v_lshl_add_u32 v14, v2, 4, v14")
    A(f"s_mul_i32 s33, s3, {RED_WAVE}")
    if lds0: A(f"s_add_u32 s33, s33, {lds0}")
    A("v_add_u32 v14, s33, v14")
    A("s_nop 4")
    for t in range(2):
        for jn in range(2):
            for g in range(4):
                A(f"ds_write_b128 v14, {v(ACC+32*t+16*jn+4*g,4)} offset:{t*32*RED_STRIDE + jn*128 + g*32}"); lg.issue("rw")
    lg.wait_all()
    barrier(A)
    A("v_lshrrev_b32 v14, 3, v0")
    A("s_lshl_b32 s33, s3, 4")
    A("v_add_u32 v14, s33, v14")
    A(f"v_mul_u32_u24 v14, {RED_STRIDE}, v14")
    A("v_and_b32 v2, 7, v0")
    A("v_lshl_add_u32 v14, v2, 5, v14")
    R0 = 40
    for ps in range(2):
        for w in range(4):
            for q in range(2):
                A(f"ds_read_b128 {v(R0+32*ps+8*w+4*q,4)}, v14 offset:{lds0 + w*RED_WAVE + ps*8*RED_STRIDE + q*16}"); lg.issue(("rr", ps))
    if mode == "glds":
        lg.wait_all()
        after_red_reads(A)
        A("v_lshrrev_b32 v1, 3, v0")
        A("s_lshl_b32 s33, s3, 4")
        A("v_add_u32 v1, s33, v1")
        A(f"v_mul_u32_u24 v1, {gbuf[1]}, v1")
        A("v_lshl_add_u32 v1, v2, 4, v1")
        A(f"v_add_u32 v12, {gbuf[0]}, v1")
        A(f"v_mov_b32 v3, {hex(f2u(-LOG2E))}")
    elif mode == "g":
        A("v_lshrrev_b32 v1, 3, v0")
        A("s_lshl_b32 s33, s24, 6")
        A("s_lshl_b32 s34, s3, 4")
        A("s_add_u32 s33, s33, s34")
        A("v_add_u32 v1, s33, v1")
        A("v_lshlrev_b32 v1, 10, v1")
        A("v_lshl_add_u32 v1, v2, 4, v1")
        A("s_lshl_b32 s33, s25, 7")
        A("v_add_u32 v12, s33, v1")
        A("v_add_u32 v13, 8192, v12")
        A(f"s_mov_b32 s33, {WS_G}")
        A(f"v_mov_b32 v3, {hex(f2u(-LOG2E))}")
    else:
        srd(A, 12, 18, 2048 * 1024)
        vm.wait("xg")
    for ps in range(2):
        B = R0 + 32 * ps
        lg.wait(("rr", ps))
        for i in range(8):
            A(f"v_add_f32 v{B+i}, v{B+i}, v{B+8+i}")
            A(f"v_add_f32 v{B+16+i}, v{B+16+i}, v{B+24+i}")
        for i in range(8):
            A(f"v_add_f32 v{B+i}, v{B+i}, v{B+16+i}")
        for i in range(4):
            A(f"v_cvt_pk_bf16_f32 v{B+8+i}, v{B+2*i}, v{B+2*i+1}")
        for i in range(4):
            A(f"v_lshlrev_b32 v{B+2*i}, 16, v{B+8+i}")
            A(f"v_and_b32 v{B+2*i+1}, 0xffff0000, v{B+8+i}")
        if mode[0] == "g":
            for i in range(8): A(f"v_mul_f32 v{B+8+i}, v3, v{B+i}")
            for i in range(8): A(f"v_exp_f32 v{B+8+i}, v{B+8+i}")
            for i in range(8): A(f"v_add_f32 v{B+8+i}, 1.0, v{B+8+i}")
            for i in range(8): A(f"v_rcp_f32 v{B+8+i}, v{B+8+i}")
            for i in range(8): A(f"v_mul_f32 v{B+i}, v{B+i}, v{B+8+i}")
            for i in range(4): A(f"v_cvt_pk_bf16_f32 v{B+16+i}, v{B+2*i}, v{B+2*i+1}")
            if mode == "glds": A(f"ds_write_b128 v12, {v(B+16,4)} offset:{ps*8*gbuf[1]}")
            else: A(f"buffer_store_dwordx4 {v(B+16,4)}, v{12+ps}, s[20:23], s33 offen")
        else:
            X = 168 + 4 * ps; G = 176 + 4 * ps
            for i in range(4):
                A(f"v_lshlrev_b32 v{B+8+2*i}, 16, v{G+i}")
                A(f"v_and_b32 v{B+8+2*i+1}, 0xffff0000, v{G+i}")
            for i in range(8): A(f"v_mul_f32 v{B+i}, v{B+i}, v{B+8+i}")
            for i in range(4): A(f"v_cvt_pk_bf16_f32 v{B+16+i}, v{B+2*i}, v{B+2*i+1}")
            for i in range(4):
                A(f"v_lshlrev_b32 v{B+2*i}, 16, v{B+16+i}")
                A(f"v_and_b32 v{B+2*i+1}, 0xffff0000, v{B+16+i}")
                A(f"v_lshlrev_b32 v{B+8+2*i}, 16, v{X+i}")
                A(f"v_and_b32 v{B+8+2*i+1}, 0xffff0000, v{X+i}")
            for i in range(8): A(f"v_add_f32 v{B+i}, v{B+i}, v{B+8+i}")
            for i in range(4): A(f"v_cvt_pk_bf16_f32 v{B+16+i}, v{B+2*i}, v{B+2*i+1}")
            A(f"buffer_store_dwordx4 {v(B+16,4)}, v{12+ps}, s[12:15], 0 offen")

def gen_down(A, name="down_kernel"):
    kernel_begin(A, name)
    A("s_cmp_ge_u32 s2, 256")
    A(f"s_cbranch_scc1 {name}_end")
    tl_begin(A)
    A("s_load_dwordx2 s[4:5], s[0:1], 48")
    A("s_load_dwordx2 s[16:17], s[0:1], 72")
    A("v_lshrrev_b32 v1, 6, v0")
    A("v_and_b32 v0, 63, v0")
    A("s_nop 0")
    A("v_readfirstlane_b32 s3, v1")
    A("s_waitcnt lgkmcnt(0)")
    srd(A, 20, 16, WS_END)
    bar = lambda A: A("s_barrier")
    ctx = sk_body(A, name, bar, 28, WS_H, 112 * 1024, 1792 * 1024, "g")
    sk_main(A, name, bar, 28, ctx, "g")
    tl_end(A, 3, 20)
    A.label(f"{name}_end")
    A("s_endpgm")

def gen_k3(A, name="k3_kernel"):
    kernel_begin(A, name)
    A("s_cmp_ge_u32 s2, 256")
    A(f"s_cbranch_scc1 {name}_end")
    tl_begin(A)
    A("s_load_dwordx2 s[4:5], s[0:1], 16")
    A("s_load_dwordx2 s[6:7], s[0:1], 0")
    A("s_load_dwordx2 s[18:19], s[0:1], 56")
    A("s_load_dwordx2 s[16:17], s[0:1], 72")
    A("v_lshrrev_b32 v1, 6, v0")
    A("v_and_b32 v0, 63, v0")
    A("s_nop 0")
    A("v_readfirstlane_b32 s3, v1")
    A("s_waitcnt lgkmcnt(0)")
    srd(A, 20, 16, WS_END)
    bar = lambda A: A("s_barrier")
    ctx = sk_body(A, name, bar, 8, WS_O, 32 * 1024, 512 * 1024, "out")
    sk_main(A, name, bar, 8, ctx, "out")
    tl_end(A, 7, 20)
    A.label(f"{name}_end")
    A("s_endpgm")
```

```python
from asmlib import *
import asmlib, ffn, os, struct
def f2u(x): return struct.unpack("<I", struct.pack("<f", x))[0]
LOG2E = 1.4426950408889634
QSCALE = 0.25 * LOG2E

NAME = "recurrent_scan__mha_block__glu_gated_glu__prompt_kernel"
BOFF = 256
WQ = BOFF + 2 * ffn.GU_SLOT
LNB = BOFF
ABASE = BOFF + 3 * ffn.GU_SLOT
NCH = 6
XCH = ABASE + NCH * 8192
GBUF = XCH + 16384
GSTR = 144
XCH2 = BOFF + 69632
K1_SLOT = 28672; K1_NS = 5; K1_D = 4
K1B = WQ - 2 * K1_SLOT
K1T = K1B + K1_SLOT * K1_NS
LNB = K1T + 5120
K1_PRO = int(os.environ.get('K1_PRO', '2'))
F_LDS = 163840
assert WQ + 98304 <= F_LDS and GBUF + 64 * GSTR <= F_LDS
C_LN, C_XF, C_W, C_WFREE, C_G = 0, 4, 8, 12, 16
F_VGPR = 168
F_THREADS = 768
WS_FLAG = 30 << 20
WS_ST = 29 << 20
FL_X = WS_FLAG
FL_A = WS_FLAG + 32768
FL_H = WS_FLAG + 65536
FL_O = WS_FLAG + 98304
C_WO = 40
C_QKV, C_O, C_GO, C_GO2 = 20, 24, 28, 32

def flag_store(A, vz, vt, soff):
    A(f"v_mov_b32 v{vt}, s68")
    A(f"v_mov_b32 v{vt+1}, s69")
    A(f"buffer_store_dwordx2 {v(vt,2)}, v{vz}, s[20:23], {soff} offen sc1")

def publish(A, cnt_off, n, vz, vone, vt, st, soff, lbl):
    A("s_mov_b64 exec, 1")
    A(f"ds_add_rtn_u32 v{vt}, v{vz}, v{vone} offset:{cnt_off}")
    A("s_waitcnt lgkmcnt(0)")
    A(f"v_readfirstlane_b32 s{st}, v{vt}")
    A(f"s_cmp_eq_u32 s{st}, {n-1}")
    A(f"s_cbranch_scc0 {lbl}")
    flag_store(A, vz, vt, soff)
    A.label(lbl)
    A("s_mov_b64 exec, -1")

def wait_ready(A, vz, vt, st):
    _lbl[0] += 1
    L = f"Lr{_lbl[0]}"
    A.label(L)
    A(f"buffer_load_dwordx2 {v(vt,2)}, v{vz}, s[52:55], 0 offen sc1")
    A("s_waitcnt vmcnt(0)")
    A(f"v_readfirstlane_b32 s68, v{vt}")
    A(f"v_readfirstlane_b32 s69, v{vt+1}")
    A("s_cmp_eq_u32 s68, 0")
    A(f"s_cbranch_scc1 {L}")

_lbl = [0]
def arrive(A, off, vz, vone):
    A("s_mov_b64 exec, 1")
    A(f"ds_add_u32 v{vz}, v{vone} offset:{off}")
    A("s_mov_b64 exec, -1")
def wait_cnt(A, off, n, vz, vt, st, sleep=1):
    _lbl[0] += 1
    L = f"Lw{_lbl[0]}"
    A.label(L)
    A(f"ds_read_b32 v{vt}, v{vz} offset:{off}")
    A("s_waitcnt lgkmcnt(0)")
    A(f"v_readfirstlane_b32 s{st}, v{vt}")
    A(f"s_cmp_ge_u32 s{st}, {n}")
    A(f"s_cbranch_scc1 {L}x")
    if sleep: A(f"s_sleep {sleep}")
    A(f"s_branch {L}")
    A.label(L + "x")

def poll_lanes(A, srd_, voff, soff, vt, sleep=2):
    _lbl[0] += 1
    L = f"Lq{_lbl[0]}"
    A.label(L)
    A(f"buffer_load_dwordx2 {v(vt,2)}, v{voff}, s[{srd_}:{srd_+3}], {soff} offen sc1")
    A("s_waitcnt vmcnt(0)")
    A(f"v_cmp_ne_u64 vcc, s[68:69], {v(vt,2)}")
    A("s_nop 1")
    A("s_cmp_eq_u64 vcc, 0")
    A(f"s_cbranch_scc1 {L}x")
    A(f"s_sleep {sleep}")
    A(f"s_branch {L}")
    A.label(L + "x")

def rc_qkv(A):
    A("s_bfe_u32 s24, s2, 0x20001")
    A("s_lshl_b32 s24, s24, 2")
    A("s_lshr_b32 s25, s2, 6")
    A("s_add_u32 s24, s24, s25")
    A("s_and_b32 s25, s2, 1")
    A("s_lshl_b32 s25, s25, 3")
    A("s_bfe_u32 s26, s2, 0x30003")
    A("s_add_u32 s25, s25, s26")

VQ = 8; VNEG = 16; VS = [32, 48]; VP = [64, 72]; VO = 80; VK = 96; VV0 = 100; VV1 = 104

def ca_role(A, name):
    rc_qkv(A)
    A("v_lshlrev_b32 v2, 4, v0")
    A("v_mov_b32 v118, 0")
    A("v_mov_b32 v119, 1")
    A("s_lshl_b32 s30, s24, 7")
    A("s_lshl_b32 s28, s25, 3")
    A("s_add_u32 s30, s30, s28")
    A("s_add_u32 s31, s30, s3")
    A("s_lshl_b32 s31, s31, 10")
    A("s_waitcnt lgkmcnt(0)")
    srd(A, 8, 4, 2048 * 1024)
    srd(A, 20, 16, WS_END)
    srd(A, 52, 18, 256)
    A("buffer_load_dwordx4 v[164:167], v2, s[8:11], s31 offen")
    A("s_or_b32 s28, s2, s3")
    A("s_cmp_eq_u32 s28, 0")
    A(f"s_cbranch_scc0 {name}_nz")
    A("s_memrealtime s[68:69]")
    A("s_waitcnt lgkmcnt(0)")
    A("s_or_b32 s68, s68, 1")
    A("v_mov_b32 v24, s68")
    A("v_mov_b32 v25, s69")
    A("s_mov_b64 exec, 1")
    A("buffer_store_dwordx2 v[24:25], v118, s[52:55], 0 offen sc1")
    A("s_mov_b64 exec, -1")
    A.label(f"{name}_nz")
    A("s_barrier")
    A("s_mul_i32 s28, s3, 1040")
    A(f"s_add_u32 s28, s28, {LNB}")
    A("v_add_u32 v140, s28, v2")
    A("v_and_b32 v141, 7, v0")
    A("v_mul_u32_u24 v142, 1040, v141")
    A("v_lshrrev_b32 v143, 3, v0")
    A("s_lshl_b32 s28, s3, 3")
    A("v_add_u32 v143, s28, v143")
    A("v_lshl_add_u32 v142, v143, 4, v142")
    A(f"v_add_u32 v142, {LNB}, v142")
    A("v_lshlrev_b32 v143, 9, v143")
    A("v_lshl_add_u32 v143, v141, 4, v143")
    A("s_lshr_b32 s28, s30, 5")
    A("s_lshl_b32 s28, s28, 15")
    A("s_and_b32 s29, s30, 31")
    A("s_lshl_b32 s29, s29, 4")
    A("s_add_u32 s28, s28, s29")
    A(f"s_add_u32 s28, s28, {WS_XF}")
    k1_setup(A)
    A("s_or_b32 s29, s2, s3")
    A("s_cmp_eq_u32 s29, 0")
    A(f"s_cbranch_scc1 {name}_w0")
    A("s_waitcnt vmcnt(0)")
    A.label(f"{name}_w0")
    A("s_waitcnt vmcnt(1)")
    T = 144
    for i in range(4):
        A(f"v_lshlrev_b32 v{T+2*i}, 16, v{164+i}")
        A(f"v_and_b32 v{T+2*i+1}, 0xffff0000, v{164+i}")
    A(f"v_add_f32 v160, v{T}, v{T+1}")
    A(f"v_mul_f32 v161, v{T}, v{T}")
    A(f"v_fmac_f32 v161, v{T+1}, v{T+1}")
    for i in range(2, 8):
        A(f"v_add_f32 v160, v160, v{T+i}")
        A(f"v_fmac_f32 v161, v{T+i}, v{T+i}")
    A("s_nop 0")
    for m in ("quad_perm:[1,0,3,2]", "quad_perm:[2,3,0,1]", "row_half_mirror", "row_mirror"):
        A(f"v_add_f32_dpp v160, v160, v160 {m} row_mask:0xf bank_mask:0xf")
        A(f"v_add_f32_dpp v161, v161, v161 {m} row_mask:0xf bank_mask:0xf")
        A("s_nop 0")
    for op in ("v_permlane16_swap_b32", "v_permlane32_swap_b32"):
        A("v_mov_b32 v162, v160")
        A("v_mov_b32 v163, v161")
        A("s_nop 0")
        A(f"{op} v162, v160")
        A(f"{op} v163, v161")
        A("s_nop 0")
        A("v_add_f32 v160, v160, v162")
        A("v_add_f32 v161, v161, v163")
    A(f"v_mul_f32 v160, {hex(f2u(1/512))}, v160")
    A(f"v_mul_f32 v161, {hex(f2u(1/512))}, v161")
    A("v_fma_f32 v161, -v160, v160, v161")
    ln_scalars(A, 160, 161, 162)
    A("s_lshr_b32 s29, s31, 7")
    A(f"s_add_u32 s29, s29, {WS_ST}")
    A("s_mov_b64 exec, 1")
    A("buffer_store_dwordx2 v[160:161], v118, s[20:23], s29 offen sc1")
    A("s_mov_b64 exec, -1")
    for i in range(8): A(f"v_sub_f32 v{T+i}, v{T+i}, v160")
    for i in range(4): A(f"v_cvt_pk_bf16_f32 v{164+i}, v{T+2*i}, v{T+2*i+1}")
    for i in range(4):
        A(f"v_lshlrev_b32 v{T+2*i}, 16, v{164+i}")
        A(f"v_and_b32 v{T+2*i+1}, 0xffff0000, v{164+i}")
    for i in range(8): A(f"v_mul_f32 v{T+i}, v{T+i}, v161")
    for i in range(4): A(f"v_cvt_pk_bf16_f32 v{164+i}, v{T+2*i}, v{T+2*i+1}")
    A("ds_write_b128 v140, v[164:167]")
    A("s_waitcnt lgkmcnt(0)")
    arrive(A, C_LN, 118, 119)
    wait_cnt(A, C_LN, 8, 118, 139, 29, sleep=0)
    A("ds_read_b128 v[164:167], v142")
    A("s_waitcnt lgkmcnt(0)")
    A("buffer_store_dwordx4 v[164:167], v143, s[20:23], s28 offen sc1")
    tl_mark(A, 0)
    A("buffer_load_dwordx2 v[116:117], v118, s[52:55], 0 offen sc1")
    A("s_cmp_lt_u32 s3, 4")
    A(f"s_cbranch_scc0 {name}_kv")
    k1_compute(A, name, 0)
    A(f"s_branch {name}_attn1")
    A.label(f"{name}_kv")
    k1_compute(A, name, 1)
    A.label(f"{name}_attn1")
    A("s_lshl_b32 s28, s25, 4")
    A("s_add_u32 s28, s28, s24")
    A("s_lshl_b32 s28, s28, 7")
    A(f"s_add_u32 s28, s28, {FL_A}")
    A("v_mov_b32 v118, 0")
    A("v_mov_b32 v119, 1")
    wait_ready(A, 118, 6, 29)
    A("s_cmp_eq_u32 s57, 0")
    A(f"s_cbranch_scc1 {name}_xdone")
    A("s_mov_b64 exec, 1")
    flag_store(A, 118, 6, "s59")
    A("s_mov_b64 exec, -1")
    A.label(f"{name}_xdone")
    publish(A, C_QKV, 8, 118, 119, 6, 29, "s28", f"{name}_pa")
    A("s_setprio 0")
    tl_mark(A, 2)
    A("v_and_b32 v116, 15, v0")
    A("v_lshlrev_b32 v116, 7, v116")
    A.label(f"{name}_attn2")
    attn(A, name)


AC0, AC1 = 32, 48
XF = 64; WFK = 80; VSEL = 112; VCS = 120; VS1, VS2 = 124, 126

def xpub(A, L):
    A("s_mov_b64 exec, 1")
    A("s_waitcnt vmcnt(0)")
    A("v_readfirstlane_b32 s29, v116")
    A("s_cmp_eq_u32 s29, 0")
    A(f"s_cbranch_scc1 {L}_c")
    A("buffer_store_dwordx2 v[116:117], v118, s[20:23], s59 offen sc1")
    A("s_mov_b32 s57, 0")
    A(f"s_branch {L}_d")
    A.label(f"{L}_c")
    A("buffer_load_dwordx2 v[116:117], v118, s[52:55], 0 offen sc1")
    A.label(f"{L}_d")
    A("s_mov_b64 exec, -1")

def k1_setup(A):
    A("s_cmp_eq_u32 s3, 7")
    A("s_cselect_b32 s57, 5, 0")
    A("s_lshl_b32 s59, s24, 4")
    A("s_add_u32 s59, s59, s25")
    A("s_lshl_b32 s59, s59, 7")
    A(f"s_add_u32 s59, s59, {FL_X}")
    A("s_lshl_b32 s60, s24, 11")
    A(f"s_add_u32 s60, s60, {FL_X}")
    A("v_and_b32 v138, 15, v0")
    A("v_lshlrev_b32 v138, 7, v138")
    A("s_lshl_b32 s61, s24, 10")
    A("s_and_b32 s62, s3, 3")
    A("s_lshl_b32 s62, s62, 8")
    A("s_add_u32 s61, s61, s62")
    A(f"s_add_u32 s61, s61, {WS_ST}")
    A("v_and_b32 v23, 31, v0")
    A("v_lshlrev_b32 v23, 3, v23")
    A("s_mov_b32 s62, 0")
    A("s_and_b32 s26, s3, 3")
    A("v_and_b32 v4, 31, v0")
    A("v_lshrrev_b32 v5, 5, v0")
    A("v_bfe_u32 v6, v0, 1, 3")
    A("v_xor_b32 v6, v5, v6")
    A("s_lshl_b32 s34, s26, 12")
    A(f"s_add_u32 s34, s34, {K1B}")
    A("v_lshlrev_b32 v4, 7, v4")
    A("v_add_u32 v4, s34, v4")
    for s_ in range(4):
        A(f"v_xor_b32 v7, {2*s_}, v6")
        A(f"v_lshl_add_u32 v{11+s_}, v7, 4, v4")
    A("v_bfe_u32 v6, v0, 2, 2")
    A("v_lshl_add_u32 v6, v5, 3, v6")
    A("v_lshlrev_b32 v6, 6, v6")
    A("v_bfe_u32 v7, v0, 4, 1")
    A("v_lshl_add_u32 v6, v7, 5, v6")
    A("v_and_b32 v7, 3, v0")
    A("v_lshl_add_u32 v6, v7, 3, v6")
    A(f"v_add_u32 v15, {K1B + 16384}, v6")
    for r in range(32): A(f"v_mov_b32 v{AC0+r}, 0")
    for r in range(VCS, 128): A(f"v_mov_b32 v{r}, 0")
    A("v_and_b32 v6, 15, v0")
    A("v_bfe_u32 v7, v0, 4, 1")
    A("v_cmp_eq_u32 vcc, v6, v7")
    A("v_mov_b32 v6, 0x3f803f80")
    A("s_nop 0")
    A(f"v_cndmask_b32 v{VSEL}, 0, v6, vcc")
    for r in range(1, 4): A(f"v_mov_b32 v{VSEL+r}, v{VSEL}")
    A(f"s_mov_b32 s36, {2*K1_SLOT}")
    A("s_mov_b32 s39, 8")

def k1_compute(A, name, role):
    L = f"{name}_c{role}"
    lg = Cnt(A, "lgkmcnt", 15)
    WF = WFK
    nt = 2 if role == 0 else 1
    t0 = 0 if role == 0 else 2
    TM = 128
    A("s_setprio 3" if role == 1 else "s_setprio 2")
    def addrs():
        for i in range(5): A(f"v_add_u32 v{16+i}, s36, v{11+i}")
        A(f"s_add_u32 s36, s36, {K1_SLOT}")
        A(f"s_cmp_eq_u32 s36, {K1_SLOT*K1_NS}")
        A("s_cselect_b32 s36, 0, s36")
    def reads(s_):
        A(f"ds_read_b128 {v(XF+4*s_,4)}, v{16+s_}"); lg.issue(("x", s_))
        for T_ in range(nt):
            for p in range(2):
                A(f"ds_read_b64_tr_b16 {v(WF+8*s_+4*T_+2*p,2)}, v20 offset:{(t0+T_)*4096 + (16*s_+4*p)*64}")
                lg.issue(("w", s_, T_))
    def stats(s_, lo, hi):
        return
        for i in range(lo, hi):
            A(f"v_lshlrev_b32 v{TM+2*i}, 16, v{XF+4*s_+i}")
            A(f"v_and_b32 v{TM+2*i+1}, 0xffff0000, v{XF+4*s_+i}")
        for i in range(2 * lo, 2 * hi):
            A(f"v_add_f32 v{VS1+i%2}, v{VS1+i%2}, v{TM+i}")
            A(f"v_fmac_f32 v{VS2+i%2}, v{TM+i}, v{TM+i}")
    def step(s_):
        X = v(XF + 4 * s_, 4)
        if role == 0:
            lg.wait(("w", s_, 0))
            A(f"v_mfma_f32_32x32x16_bf16 {v(AC0,16)}, {v(WF+8*s_,4)}, {X}, {v(AC0,16)}")
            stats(s_, 0, 1)
            lg.wait(("w", s_, 1))
            A(f"v_mfma_f32_32x32x16_bf16 {v(AC1,16)}, {v(WF+8*s_+4,4)}, {X}, {v(AC1,16)}")
            stats(s_, 1, 2)
        else:
            lg.wait(("w", s_, 0))
            A(f"v_mfma_f32_32x32x16_bf16 {v(AC0,16)}, {X}, {v(WF+8*s_,4)}, {v(AC0,16)}")
            stats(s_, 2, 4)
    def colsum(half):
        cands = [(0, 0), (1, 4)] if role == 0 else [(2, 0)]
        for tbv, off in cands:
            A(f"s_cmp_eq_u32 s26, {tbv}")
            A(f"s_cbranch_scc0 {L}_nocs{half}_{tbv}")
            for s_ in (2 * half, 2 * half + 1):
                A(f"v_mfma_f32_16x16x32_bf16 {v(VCS,4)}, {v(VSEL,4)}, {v(WF+8*s_+off,4)}, {v(VCS,4)}")
            A.label(f"{L}_nocs{half}_{tbv}")
    addrs()
    A("s_barrier")
    reads(0); reads(1); reads(2); reads(3)
    top_state = list(lg.seq)
    A.label(f"{L}_loop")
    step(0); step(1)
    colsum(0)
    A("s_sub_u32 s39, s39, 1")
    A("s_cmp_eq_u32 s39, 0")
    A(f"s_cbranch_scc1 {L}_last")
    addrs()
    A("s_cmp_eq_u32 s39, 6")
    A(f"s_cbranch_scc0 {L}_noxf")
    A("s_waitcnt vmcnt(0)")
    A.label(f"{L}_noxf")
    A("s_cmp_eq_u32 s39, 2")
    A(f"s_cbranch_scc0 {L}_ns1")
    A("buffer_load_dwordx2 v[128:129], v118, s[52:55], 0 offen sc1")
    A("buffer_load_dwordx2 v[130:131], v138, s[20:23], s60 offen sc1")
    A.label(f"{L}_ns1")
    A("s_cmp_eq_u32 s39, 1")
    A(f"s_cbranch_scc0 {L}_ns2")
    A("s_waitcnt vmcnt(0)")
    A("v_readfirstlane_b32 s29, v128")
    A("v_cmp_ne_u64 vcc, v[128:129], v[130:131]")
    A("s_cmp_eq_u32 s29, 0")
    A(f"s_cbranch_scc1 {L}_ns2")
    A("s_cmp_eq_u64 vcc, 0")
    A(f"s_cbranch_scc0 {L}_ns2")
    A(f"buffer_load_dwordx2 {v(VS1,2)}, v23, s[20:23], s61 offen sc1")
    A("s_mov_b32 s62, 1")
    A.label(f"{L}_ns2")
    if role == 1:
        A("s_cmp_gt_u32 s39, s57")
        A(f"s_cbranch_scc1 {L}_nopub")
        xpub(A, f"{L}_xp")
        A.label(f"{L}_nopub")
    lg.wait_all()
    A("s_barrier")
    reads(0); reads(1)
    step(2); step(3)
    colsum(1)
    reads(2); reads(3)
    assert lg.seq == top_state, (lg.seq, top_state)
    A(f"s_branch {L}_loop")
    A.label(f"{L}_last")
    lg.wait_all()
    L = L + "x"
    step(2); step(3)
    colsum(1)
    tl_mark(A, 1)
    TB = K1T
    A("v_lshlrev_b32 v4, 2, v0")
    A("v_cmp_gt_u32 vcc, 16, v0")
    if role == 0:
        A("s_lshl_b32 s34, s26, 7")
        A("s_cmp_lt_u32 s26, 2")
    else:
        A("s_mov_b32 s34, 256")
        A("s_cmp_eq_u32 s26, 2")
    A("s_cselect_b32 s34, s34, 512")
    A("v_mov_b32 v5, 512")
    A("v_mov_b32 v6, s34")
    A("v_cndmask_b32 v5, v5, v6, vcc")
    A("v_add_u32 v5, v5, v4")
    A(f"v_add_u32 v5, {TB}, v5")
    A("s_nop 1")
    A(f"ds_write_b32 v5, v{VCS}")
    A(f"ds_write_b32 v5, v{VCS+1} offset:64")
    A("v_and_b32 v6, 31, v0")
    A("s_lshl_b32 s34, s26, 8")
    A(f"s_add_u32 s34, s34, {TB + 1024}")
    A("v_lshl_add_u32 v7, v6, 3, s34")
    A("v_lshlrev_b32 v6, 2, v6")
    A("v_lshrrev_b32 v8, 5, v0")
    A("v_lshlrev_b32 v8, 4, v8")
    A("s_lshl_b32 s37, s25, 7")
    A("s_lshl_b32 s35, s24, 2")
    A("s_add_u32 s37, s37, s35")
    A("s_add_u32 s37, s37, s26")
    A("s_waitcnt lgkmcnt(0)")
    arrive(A, C_WFREE, 118, 119)
    wait_cnt(A, C_WFREE, 8, 118, 9, 29, sleep=0)
    lg.seq = []
    if role == 0:
        A(f"v_add_u32 v8, {TB}, v8")
        for T_ in range(2):
            for g in range(4):
                A(f"ds_read_b128 {v(WF+16*T_+4*g,4)}, v8 offset:{T_*128 + g*32}"); lg.issue(("c", T_))
    else:
        A(f"v_add_u32 v9, {TB}, v6")
        A("ds_read_b32 v4, v9 offset:256"); lg.issue("c")
    A("s_cmp_eq_u32 s62, 1")
    A(f"s_cbranch_scc1 {L}_sok")
    if role == 1:
        A("s_cmp_eq_u32 s57, 0")
        A(f"s_cbranch_scc1 {L}_np")
        wait_ready(A, 118, 128, 29)
        A("s_mov_b64 exec, 1")
        flag_store(A, 118, 128, "s59")
        A("s_mov_b64 exec, -1")
        A("s_mov_b32 s57, 0")
        A.label(f"{L}_np")
    wait_ready(A, 118, 128, 29)
    poll_lanes(A, 20, 138, "s60", 128, sleep=1)
    A(f"buffer_load_dwordx2 {v(VS1,2)}, v23, s[20:23], s61 offen sc1")
    A.label(f"{L}_sok")
    A("s_waitcnt vmcnt(0)")
    M, RS = VS1, VS1 + 1
    if role == 0:
        A("s_lshl_b32 s35, s37, 11")
        A(f"s_add_u32 s36, s35, {WS_KV + 131072}")
        A(f"s_add_u32 s35, s35, {WS_KV}")
        A(f"v_mul_f32 v6, {hex(f2u(QSCALE))}, v{RS}")
        lg.wait(("c", 1))
        for r in range(16):
            A(f"v_fma_f32 v{AC1+r}, -v{M}, v{WF+16+r}, v{AC1+r}")
            A(f"v_mul_f32 v{AC1+r}, v{AC1+r}, v{RS}")
        for i in range(8): A(f"v_cvt_pk_bf16_f32 v{XF+8+i}, v{AC1+2*i}, v{AC1+2*i+1}")
        A(f"buffer_store_dwordx4 {v(XF+8,4)}, v2, s[20:23], s35 offen sc1")
        A(f"buffer_store_dwordx4 {v(XF+12,4)}, v2, s[20:23], s36 offen sc1")
        A("s_lshl_b32 s35, s37, 10")
        A(f"s_add_u32 s36, s35, {WS_Q + 65536}")
        for r in range(16):
            A(f"v_fma_f32 v{AC0+r}, -v{M}, v{WF+r}, v{AC0+r}")
            A(f"v_mul_f32 v{AC0+r}, v{AC0+r}, v6")
        for i in range(8): A(f"v_cvt_pk_bf16_f32 v{XF+i}, v{AC0+2*i}, v{AC0+2*i+1}")
        A(f"buffer_store_dwordx4 {v(XF,4)}, v2, s[20:23], s35 offen sc1")
        A(f"buffer_store_dwordx4 {v(XF+4,4)}, v2, s[20:23], s36 offen sc1")
    else:
        A("s_lshl_b32 s34, s3, 8")
        A(f"s_add_u32 s34, s34, {TB + 3072}")
        A("v_add_u32 v6, s34, v6")
        A("v_add_u32 v8, s34, v8")
        A(f"ds_write_b32 v6, v{M}"); lg.issue("w")
        A(f"ds_write_b32 v6, v{RS} offset:128"); lg.issue("w")
        for g in range(4):
            A(f"ds_read_b128 {v(WF+4*g,4)}, v8 offset:{g*32}"); lg.issue("m2")
        for g in range(4):
            A(f"ds_read_b128 {v(WF+16+4*g,4)}, v8 offset:{128 + g*32}"); lg.issue("rs")
        A("v_bfe_u32 v7, v0, 4, 1")
        A("v_lshlrev_b32 v7, 17, v7")
        A("v_lshrrev_b32 v5, 5, v0")
        A("v_lshl_add_u32 v7, v5, 8, v7")
        A("v_and_b32 v5, 15, v0")
        A("v_lshl_add_u32 v7, v5, 4, v7")
        A("s_lshl_b32 s35, s37, 11")
        A(f"s_add_u32 s35, s35, {WS_KV}")
        lg.wait("rs")
        for r in range(16):
            A(f"v_fma_f32 v{AC0+r}, -v{WF+r}, v4, v{AC0+r}")
            A(f"v_mul_f32 v{AC0+r}, v{AC0+r}, v{WF+16+r}")
        for i in range(8): A(f"v_cvt_pk_bf16_f32 v{XF+i}, v{AC0+2*i}, v{AC0+2*i+1}")
        A(f"buffer_store_dwordx4 {v(XF,4)}, v7, s[20:23], s35 offen offset:1024 sc1")
        A(f"buffer_store_dwordx4 {v(XF+4,4)}, v7, s[20:23], s35 offen offset:1536 sc1")

def attn(A, name):
    A("s_and_b32 s16, s2, 7")
    A("s_lshr_b32 s17, s2, 3")
    A("s_and_b32 s18, s17, 3")
    A("s_lshl_b32 s16, s16, 2")
    A("s_add_u32 s16, s16, s18")
    A("s_lshr_b32 s17, s17, 2")
    A("s_lshl_b32 s17, s17, 3")
    A("s_add_u32 s17, s17, s3")
    A("s_lshl_b32 s19, s16, 6")
    A("s_add_u32 s19, s19, s17")
    A("s_lshl_b32 s19, s19, 10")
    A("s_lshl_b32 s26, s16, 17")
    A(f"s_add_u32 s26, s26, {WS_KV}")
    A("s_lshl_b32 s27, s3, 10")
    A("s_add_u32 s28, s26, s27")
    A(f"s_add_u32 s27, s27, {ABASE}")
    A("v_lshrrev_b32 v3, 5, v0")
    A("v_lshlrev_b32 v3, 8, v3")
    A("v_and_b32 v4, 15, v0")
    A("v_lshlrev_b32 v4, 4, v4")
    A("v_add_u32 v3, v3, v4")
    A(f"v_add_u32 v108, {ABASE}, v2")
    A(f"v_add_u32 v109, {ABASE + 1024}, v3")
    A("s_lshl_b32 s29, s3, 2")
    A("s_add_u32 s29, s29, 128")
    A("v_mov_b32 v114, s29")
    A("v_mov_b32 v115, 1")
    A("v_and_b32 v117, 7, v0")
    A("v_lshlrev_b32 v117, 2, v117")
    A("s_mov_b32 s24, 0x0000ffff")
    A("s_mov_b32 s25, 0x0000ffff")
    A("v_and_b32 v4, 27, v0")
    A("v_cmp_eq_u32 vcc, 16, v4")
    A("v_mov_b32 v5, 0x3f803f80")
    A("s_nop 0")
    A("v_cndmask_b32 v5, 0, v5, vcc")
    for r in range(8): A(f"v_mov_b32 {v(VV0+r)}, v5")
    for r in range(16): A(f"v_mov_b32 {v(VO+r)}, 0")
    for r in range(4, 8): A(f"v_mov_b32 {v(VP[1]+r)}, 0")
    TD = int(os.environ.get("TOUCHD", "1"))
    if TD:
        srd(A, 60, 46, 1792 * 1024)
        srd(A, 64, 42, 512 * 1024)
        A("s_bfe_u32 s70, s2, 0x30003")
        A("s_bfe_u32 s71, s2, 0x10002")
        A("s_lshl_b32 s71, s71, 2")
        A("s_lshr_b32 s72, s2, 6")
        A("s_add_u32 s71, s71, s72")
        A("s_lshl_b32 s71, s71, 7")
        A("s_mul_i32 s72, s70, 224")
        A("s_mul_i32 s73, s3, 28")
        A("s_add_u32 s72, s72, s73")
        A("s_lshl_b32 s72, s72, 10")
        A("s_add_u32 s72, s72, s71")
        A("s_lshl_b32 s73, s70, 3")
        A("s_add_u32 s73, s73, s3")
        A("s_lshl_b32 s73, s73, 13")
        A("s_add_u32 s73, s73, s71")
        A("v_min_u32 v121, 27, v0")
        A("v_lshlrev_b32 v121, 10, v121")
        A("v_and_b32 v122, 7, v0")
        A("v_lshlrev_b32 v122, 10, v122")
    A("s_lshr_b32 s29, s16, 1")
    A("s_lshl_b32 s29, s29, 11")
    A(f"s_add_u32 s29, s29, {FL_A}")
    A("s_cmp_eq_u32 s3, 0")
    A(f"s_cbranch_scc0 {name}_gw")
    poll_lanes(A, 20, 116, "s29", 6, sleep=int(os.environ.get("PSL", "3")))
    arrive(A, C_GO, 118, 119)
    A(f"s_branch {name}_go")
    A.label(f"{name}_gw")
    wait_cnt(A, C_GO, 1, 118, 6, 30, sleep=2)
    A.label(f"{name}_go")
    tl_mark(A, 3)
    A(f"buffer_load_dwordx4 {v(VQ,4)}, v2, s[20:23], s19 offen sc1")
    A(f"buffer_load_dwordx4 {v(VK,4)}, v2, s[20:23], s26 offen sc1")
    def dma(off):
        A(f"s_add_u32 m0, s27, {off}")
        A("s_nop 0")
        A("buffer_load_dwordx4 v2, s[20:23], s28 offen sc1 lds")
        A("s_add_u32 s28, s28, 8192")
    for c in range(4): dma(c * 8192)
    A("s_waitcnt vmcnt(4)")
    A(f"v_mfma_f32_32x32x16_bf16 {v(VS[0],16)}, {v(VK,4)}, {v(VQ,4)}, 0")
    A("s_waitcnt vmcnt(2)")
    A("s_mov_b64 exec, 1")
    A("ds_write_b32 v114, v115")
    A("s_mov_b64 exec, -1")
    A("s_nop 7")
    A(f"v_max3_f32 v6, {v(VS[0])}, {v(VS[0]+1)}, {v(VS[0]+2)}")
    for r in range(3, 15, 2):
        A(f"v_max3_f32 v6, v6, {v(VS[0]+r)}, {v(VS[0]+r+1)}")
    A(f"v_max_f32 v6, v6, {v(VS[0]+15)}")
    def negm_fill():
        A("v_mov_b32 v4, v6")
        A("s_nop 1")
        A("v_permlane32_swap_b32 v4, v6")
        A("s_nop 1")
        A("v_max_f32 v6, v4, v6")
        A("v_sub_f32 v6, 0, v6")
        for r in range(16): A(f"v_mov_b32 {v(VNEG+r)}, v6")
    negm_fill()
    A(f"v_mov_b32 {v(VS[1]+14)}, 0")
    A(f"v_mov_b32 {v(VS[1]+15)}, 0")
    A(f"v_mfma_f32_32x32x16_bf16 {v(VS[0],16)}, {v(VK,4)}, {v(VQ,4)}, {v(VNEG,16)}")
    A.label(f"{name}_aw0")
    A("ds_read_b32 v116, v117 offset:128")
    A("s_waitcnt lgkmcnt(0)")
    A("v_cmp_eq_u32 vcc, 0, v116")
    A("s_nop 1")
    A("s_cmp_eq_u64 vcc, 0")
    A(f"s_cbranch_scc0 {name}_aw0")
    A("v_mov_b32 v115, 2")
    A(f"ds_read_b128 {v(VK,4)}, v108 offset:2048")
    A("s_mov_b64 exec, s[24:25]")
    A(f"ds_read_b128 {v(VV0,4)}, v109")
    A("s_mov_b64 exec, -1")
    A("s_mov_b32 s30, 0")
    A("s_mov_b32 s31, 1")
    A(f"s_mov_b32 s33, {4*8192}")
    A("s_mov_b32 s34, 16")
    A("s_xor_b32 s35, s3, 4")
    A("v_mov_b32 v110, v108")
    A("v_mov_b32 v111, v109")
    A("s_waitcnt lgkmcnt(0)")
    A.raw(".p2align 6")
    A.label(f"{name}_aloop")
    for tt in range(4):
        X = tt % 2; Y = 1 - X
        S = VS[X]; P = VP[X]; PP = VP[Y]; SY = VS[Y]
        e = lambda i: A(f"v_exp_f32 {v(S+i)}, {v(S+i)}")
        c = lambda i: A(f"v_cvt_pk_bf16_f32 {v(P+i)}, {v(S+2*i)}, {v(S+2*i+1)}")
        e(0)
        A(f"v_cvt_pk_bf16_f32 {v(PP+7)}, {v(SY+14)}, {v(SY+15)}")
        e(1)
        A(f"s_waitcnt lgkmcnt({0 if tt == 2 else 2})")
        A(f"v_mfma_f32_32x32x16_bf16 {v(SY,16)}, {v(VK,4)}, {v(VQ,4)}, {v(VNEG,16)}")
        if tt < 2:
            A(f"ds_read_b128 {v(VK,4)}, v110 offset:{(tt+2)*2048}")
        elif tt == 2:
            if asmlib.TIMELINE:
                A("s_mov_b32 m0, s34")
                A("s_nop 0")
                A("v_writelane_b32 v166, s94, m0")
                A("v_writelane_b32 v167, s96, m0")
            A("v_cmp_gt_u32 vcc, s31, v116")
            A("s_add_u32 s30, s30, 8192")
            A(f"s_cmp_eq_u32 s30, {NCH*8192}")
            A("s_cselect_b32 s30, 0, s30")
            A("v_add_u32 v112, s30, v108")
            A("v_add_u32 v113, s30, v109")
            A("s_cmp_eq_u64 vcc, 0")
            A(f"s_cbranch_scc0 {name}_aspin")
            A.label(f"{name}_aspin_ret")
            A(f"ds_read_b128 {v(VK,4)}, v112")
            A("s_add_u32 s31, s31, 1")
            A("v_readlane_b32 s29, v116, s35")
            A("s_cmp_lt_u32 s29, s31")
            A(f"s_cbranch_scc1 {name}_alow")
            A("s_setprio 1")
            A(f"s_branch {name}_aprio")
            A.label(f"{name}_alow")
            A("s_setprio 0")
            A.label(f"{name}_aprio")
            A("s_cmp_gt_u32 s34, 4")
            A(f"s_cbranch_scc0 {name}_anodma")
            dma("s33")
            A("s_add_u32 s33, s33, 8192")
            A(f"s_cmp_eq_u32 s33, {NCH*8192}")
            A("s_cselect_b32 s33, 0, s33")
            if TD:
                A(f"s_cmp_eq_u32 s34, {16 - TD}")
                A(f"s_cbranch_scc0 {name}_anodma")
                A("buffer_load_dword v123, v121, s[60:63], s72 offen")
                A("buffer_load_dword v124, v122, s[64:67], s73 offen")
            A.label(f"{name}_anodma")
        else:
            A(f"ds_read_b128 {v(VK,4)}, v112 offset:2048")
        e(2); c(0); e(3); e(4); c(1)
        A("s_waitcnt lgkmcnt(2)")
        if not os.environ.get("E2"): A(f"v_mfma_f32_32x32x16_bf16 {v(VO,16)}, {v(VV1,4)}, {v(PP+4,4)}, {v(VO,16)}")
        A("s_mov_b64 exec, s[24:25]" if not os.environ.get("E1") else "s_mov_b64 exec, 1")
        A(f"ds_read_b128 {v(VV1,4)}, v111 offset:{tt*2048+512}")
        if tt == 0:
            A("s_cmp_gt_u32 s34, 3")
            A("s_cbranch_scc1 " + f"{name}_aw1")
            A("s_waitcnt vmcnt(0)")
            A.label(f"{name}_aw1")
            A("s_waitcnt vmcnt(1)")
            A("s_mov_b64 exec, 1")
            A("ds_write_b32 v114, v115")
        A("s_mov_b64 exec, -1")
        e(5); e(6); c(2); e(7); e(8); c(3); e(9); e(10)
        A(f"s_waitcnt lgkmcnt({3 if tt == 0 else 2})")
        A(f"v_mfma_f32_32x32x16_bf16 {v(VO,16)}, {v(VV0,4)}, {v(P,4)}, {v(VO,16)}")
        A("s_mov_b64 exec, s[24:25]" if not os.environ.get("E1") else "s_mov_b64 exec, 1")
        if tt < 3: A(f"ds_read_b128 {v(VV0,4)}, v111 offset:{(tt+1)*2048}")
        else: A(f"ds_read_b128 {v(VV0,4)}, v113")
        A("s_mov_b64 exec, -1")
        if tt == 1 and asmlib.TIMELINE:
            A("s_memtime s[94:95]")
            A("s_memrealtime s[96:97]")
        if tt == 1:
            A("ds_read_b32 v116, v117 offset:128")
            A("v_add_u32 v115, 1, v115")
        c(4); e(11); e(12); c(5); e(13); e(14); c(6)
        if tt == 3:
            A("v_mov_b32 v110, v112")
            A("v_mov_b32 v111, v113")
            A("s_sub_u32 s34, s34, 1")
            A("s_cmp_lg_u32 s34, 0")
        e(15)
    A(f"s_cbranch_scc1 {name}_aloop")
    A("s_waitcnt lgkmcnt(0)")
    A(f"v_cvt_pk_bf16_f32 {v(VP[1]+7)}, {v(VS[1]+14)}, {v(VS[1]+15)}")
    A("s_setprio 2")
    A("s_nop 0")
    A(f"v_mfma_f32_32x32x16_bf16 {v(VO,16)}, {v(VV1,4)}, {v(VP[1]+4,4)}, {v(VO,16)}")
    A("s_lshl_b32 s19, s17, 5")
    A("s_add_u32 s19, s19, s16")
    A("s_lshr_b32 s18, s17, 3")
    A("s_lshl_b32 s18, s18, 5")
    A("s_add_u32 s18, s18, s16")
    A("s_lshl_b32 s18, s18, 7")
    A(f"s_add_u32 s18, s18, {FL_O}")
    A("s_lshl_b32 s19, s19, 10")
    A(f"s_add_u32 s19, s19, {WS_O}")
    A("s_mov_b32 s29, 0x7b800000")
    A("s_nop 1")
    A(f"v_add_f32_e64 v4, abs({v(VO)}), {v(VO+8)}")
    for r in range(1, 8):
        A(f"v_add_f32_e64 v4, abs({v(VO+r)}), v4")
    A("v_cmp_gt_f32 vcc, s29, v4")
    A("s_nop 1")
    A("s_cmp_eq_u64 vcc, -1")
    A(f"s_cbranch_scc0 {name}_aslow")
    A.label(f"{name}_astore")
    A(f"v_rcp_f32 v4, {v(VO+8)}")
    A("s_nop 0")
    for r in range(8): A(f"v_mul_f32 {v(VO+r)}, {v(VO+r)}, v4")
    for r in range(4): A(f"v_cvt_pk_bf16_f32 {v(VP[0]+r)}, {v(VO+2*r)}, {v(VO+2*r+1)}")
    A(f"buffer_store_dwordx4 {v(VP[0],4)}, v2, s[20:23], s19 offen sc1")
    tl_mark(A, 4)
    final(A, name)
    A(f"s_branch {name}_end")
    A.label(f"{name}_aspin")
    A("s_sleep 2")
    A("ds_read_b32 v116, v117 offset:128")
    A("s_waitcnt lgkmcnt(0)")
    A("v_cmp_gt_u32 vcc, s31, v116")
    A("s_nop 1")
    A("s_cmp_eq_u64 vcc, 0")
    A(f"s_cbranch_scc0 {name}_aspin")
    A(f"s_branch {name}_aspin_ret")
    A.label(f"{name}_aslow")
    A("s_waitcnt vmcnt(0) lgkmcnt(0)")
    A("v_mov_b32 v6, 0xff800000")
    A("s_mov_b32 s28, s26")
    A("s_mov_b32 s34, 64")
    A.label(f"{name}_smax")
    A(f"buffer_load_dwordx4 {v(VK,4)}, v2, s[20:23], s28 offen sc1")
    A("s_waitcnt vmcnt(0)")
    A(f"v_mfma_f32_32x32x16_bf16 {v(VS[0],16)}, {v(VK,4)}, {v(VQ,4)}, 0")
    A("s_add_u32 s28, s28, 2048")
    A("s_sub_u32 s34, s34, 1")
    A("s_nop 7")
    A("s_nop 1")
    for r in range(0, 16, 2):
        A(f"v_max3_f32 v6, v6, {v(VS[0]+r)}, {v(VS[0]+r+1)}")
    A("s_cmp_lg_u32 s34, 0")
    A(f"s_cbranch_scc1 {name}_smax")
    negm_fill()
    for r in range(16): A(f"v_mov_b32 {v(VO+r)}, 0")
    A("s_mov_b32 s28, s26")
    A("s_mov_b32 s34, 64")
    A.label(f"{name}_sloop")
    A(f"buffer_load_dwordx4 {v(VK,4)}, v2, s[20:23], s28 offen sc1")
    A("s_mov_b64 exec, s[24:25]")
    A(f"buffer_load_dwordx4 {v(VV0,4)}, v3, s[20:23], s28 offen offset:1024 sc1")
    A(f"buffer_load_dwordx4 {v(VV1,4)}, v3, s[20:23], s28 offen offset:1536 sc1")
    A("s_mov_b64 exec, -1")
    A("s_waitcnt vmcnt(0)")
    A(f"v_mfma_f32_32x32x16_bf16 {v(VS[0],16)}, {v(VK,4)}, {v(VQ,4)}, {v(VNEG,16)}")
    A("s_add_u32 s28, s28, 2048")
    A("s_sub_u32 s34, s34, 1")
    A("s_nop 7")
    A("s_nop 1")
    for r in range(16): A(f"v_exp_f32 {v(VS[0]+r)}, {v(VS[0]+r)}")
    A("s_nop 0")
    for r in range(8): A(f"v_cvt_pk_bf16_f32 {v(VP[0]+r)}, {v(VS[0]+2*r)}, {v(VS[0]+2*r+1)}")
    A("s_nop 1")
    A(f"v_mfma_f32_32x32x16_bf16 {v(VO,16)}, {v(VV0,4)}, {v(VP[0],4)}, {v(VO,16)}")
    A(f"v_mfma_f32_32x32x16_bf16 {v(VO,16)}, {v(VV1,4)}, {v(VP[0]+4,4)}, {v(VO,16)}")
    A("s_cmp_lg_u32 s34, 0")
    A(f"s_cbranch_scc1 {name}_sloop")
    A("s_nop 7")
    A("s_nop 3")
    A(f"s_branch {name}_astore")

def final(A, name):
    WR = 8; OR = 72; AC = 136
    A("s_and_b32 s24, s2, 3")
    A("s_lshl_b32 s24, s24, 3")
    A("s_bfe_u32 s25, s2, 0x30003")
    A("s_add_u32 s24, s24, s25")
    A("s_bfe_u32 s25, s2, 0x10002")
    A("s_lshl_b32 s25, s25, 2")
    A("s_lshr_b32 s26, s2, 6")
    A("s_add_u32 s25, s25, s26")
    A("s_and_b32 s26, s3, 1")
    A("s_bfe_u32 s27, s3, 0x10001")
    A("s_lshr_b32 s28, s3, 2")
    A("v_mov_b32 v160, 0")
    A("v_mov_b32 v161, 1")
    A("v_lshrrev_b32 v3, 5, v0")
    A("v_bfe_u32 v4, v0, 2, 2")
    A("v_lshl_add_u32 v4, v3, 2, v4")
    A("v_lshlrev_b32 v4, 7, v4")
    A("v_bfe_u32 v5, v0, 4, 1")
    A("v_lshlrev_b32 v5, 1, v5")
    A("v_bfe_u32 v6, v0, 1, 1")
    A("v_add_u32 v5, v5, v6")
    A("v_bfe_u32 v6, v0, 3, 1")
    A("v_xor_b32 v6, s27, v6")
    A("v_lshl_add_u32 v5, v6, 2, v5")
    A("v_lshl_add_u32 v4, v5, 4, v4")
    A("v_and_b32 v6, 1, v0")
    A("v_lshl_add_u32 v4, v6, 3, v4")
    A("s_lshl_b32 s29, s28, 15")
    A(f"s_add_u32 s29, s29, {ABASE}")
    A("v_add_u32 v4, s29, v4")
    A("v_and_b32 v5, 31, v0")
    A("s_lshl_b32 s29, s26, 5")
    A("v_add_u32 v5, s29, v5")
    A("s_lshl_b32 s29, s27, 6")
    A("s_lshl_b32 s30, s28, 5")
    A("s_add_u32 s29, s29, s30")
    A("v_lshl_add_u32 v6, v3, 4, s29")
    A(f"v_mul_u32_u24 v7, {ffn.RED_STRIDE}, v5")
    A("v_lshl_add_u32 v7, v6, 1, v7")
    A(f"v_add_u32 v7, {BOFF}, v7")
    def gcalc(T):
        for w in range(4):
            for q in range(2):
                A(f"ds_read_b128 {v(T+8*w+4*q,4)}, v7 offset:{w*ffn.RED_WAVE + q*16}")
        A("s_waitcnt lgkmcnt(4)")
        for i in range(8): A(f"v_add_f32 v{T+i}, v{T+i}, v{T+8+i}")
        A("s_waitcnt lgkmcnt(0)")
        for i in range(8): A(f"v_add_f32 v{T+16+i}, v{T+16+i}, v{T+24+i}")
        for i in range(8): A(f"v_add_f32 v{T+i}, v{T+i}, v{T+16+i}")
        for i in range(4): A(f"v_cvt_pk_bf16_f32 v{T+8+i}, v{T+2*i}, v{T+2*i+1}")
        for i in range(4):
            A(f"v_lshlrev_b32 v{T+2*i}, 16, v{T+8+i}")
            A(f"v_and_b32 v{T+2*i+1}, 0xffff0000, v{T+8+i}")
        for i in range(8): A(f"v_mul_f32 v{T+8+i}, {hex(f2u(-LOG2E))}, v{T+i}")
        for i in range(8): A(f"v_exp_f32 v{T+8+i}, v{T+8+i}")
        for i in range(8): A(f"v_add_f32 v{T+8+i}, 1.0, v{T+8+i}")
        for i in range(8): A(f"v_rcp_f32 v{T+8+i}, v{T+8+i}")
        for i in range(8): A(f"v_mul_f32 v{T+i}, v{T+i}, v{T+8+i}")
        for i in range(4): A(f"v_cvt_pk_bf16_f32 v{156+i}, v{T+2*i}, v{T+2*i+1}")
    A("v_lshl_add_u32 v6, v5, 10, v6")
    A("s_lshl_b32 s30, s24, 16")
    A("s_lshl_b32 s31, s25, 7")
    A("s_add_u32 s30, s30, s31")
    A("buffer_load_dwordx4 v[152:155], v6, s[8:11], s30 offen")
    A("s_waitcnt vmcnt(1)")
    publish(A, C_O, 8, 160, 161, 162, 33, "s18", f"{name}_po")
    A("s_lshl_b32 s31, s24, 1")
    A("s_add_u32 s31, s31, s26")
    A("s_lshl_b32 s31, s31, 5")
    A("s_lshl_b32 s32, s28, 4")
    A("s_add_u32 s31, s31, s32")
    A("s_lshr_b32 s32, s24, 2")
    A("s_lshl_b32 s32, s32, 1")
    A("s_add_u32 s32, s32, s28")
    A("s_lshl_b32 s32, s32, 11")
    A(f"s_add_u32 s32, s32, {FL_O}")
    A("s_lshl_b32 s31, s31, 10")
    A(f"s_add_u32 s31, s31, {WS_O}")
    A("v_and_b32 v5, 15, v0")
    A("v_lshlrev_b32 v5, 7, v5")
    srd(A, 12, 44, 2048 * 1024)
    A("v_lshrrev_b32 v8, 3, v0")
    A("v_and_b32 v9, 7, v0")
    A("v_bfe_u32 v10, v0, 4, 1")
    A("v_lshlrev_b32 v10, 2, v10")
    A("v_xor_b32 v9, v9, v10")
    A("v_lshlrev_b32 v8, 10, v8")
    A("v_lshl_add_u32 v8, v9, 4, v8")
    A("s_lshl_b32 s33, s25, 7")
    A("v_add_u32 v8, s33, v8")
    srd(A, 64, 42, 512 * 1024)
    A("s_lshl_b32 s34, s3, 16")
    A("s_lshl_b32 s35, s3, 13")
    A(f"s_add_u32 s35, s35, {ABASE}")
    wait_cnt(A, C_O, 8, 160, 162, 33, sleep=1)
    for j in range(8):
        A(f"s_add_u32 m0, s35, {j*1024}")
        A(f"s_add_u32 s36, s34, {j*8192}")
        A("buffer_load_dwordx4 v8, s[64:67], s36 offen lds")
    A("s_waitcnt vmcnt(0)")
    arrive(A, C_WO, 160, 161)
    wait_cnt(A, C_WO, 8, 160, 162, 33, sleep=0)
    lg = Cnt(A, "lgkmcnt", 15)
    for j in range(16):
        for p in range(2):
            A(f"ds_read_b64_tr_b16 {v(WR+4*j+2*p,2)}, v4 offset:{j*2048 + p*1024}"); lg.issue("w")
    A(f"ds_read_b32 v162, v160 offset:{C_G}")
    A("s_waitcnt lgkmcnt(0)")
    lg.seq = []
    A("v_readfirstlane_b32 s37, v162")
    A("s_cmp_ge_u32 s37, 4")
    A(f"s_cbranch_scc0 {name}_glate")
    gcalc(OR)
    A.label(f"{name}_glate")
    A("s_lshl_b32 s33, s28, 2")
    A("v_mov_b32 v165, s33")
    A("s_and_b32 s33, s3, 3")
    A("s_cmp_eq_u32 s33, 0")
    A(f"s_cbranch_scc0 {name}_gw2")
    poll_lanes(A, 20, 5, "s32", 162, sleep=2)
    arrive(A, C_GO2, 165, 161)
    A(f"s_branch {name}_go2")
    A.label(f"{name}_gw2")
    wait_cnt(A, C_GO2, 1, 165, 162, 33, sleep=1)
    A("s_waitcnt vmcnt(0)")
    A.label(f"{name}_go2")
    tl_mark(A, 5)
    vm = Cnt(A, "vmcnt", 63)
    for j in range(16):
        if j % 4 == 0 and j: A("s_add_u32 s31, s31, 4096")
        A(f"buffer_load_dwordx4 {v(OR+4*j,4)}, v2, s[20:23], s31 offen offset:{(j%4)*1024} sc1"); vm.issue(("o", j))
    lg.wait_all()
    A("s_lshl_b32 s33, s3, 11")
    A(f"s_add_u32 s33, s33, {XCH2}")
    A("v_add_u32 v3, s33, v2")
    A("v_xor_b32 v5, 8192, v3") if (XCH2 % 16384 == 0) else None
    if XCH2 % 16384:
        A("s_xor_b32 s33, s3, 4")
        A("s_lshl_b32 s33, s33, 11")
        A(f"s_add_u32 s33, s33, {XCH2}")
        A("v_add_u32 v5, s33, v2")
    A("s_lshl_b32 s33, s3, 2")
    A("v_mov_b32 v163, s33")
    A("v_xor_b32 v164, 16, v163")
    for j in range(16):
        vm.wait(("o", j))
        A(f"v_mfma_f32_32x32x16_bf16 {v(AC,16)}, {v(WR+4*j,4)}, {v(OR+4*j,4)}, {v(AC,16) if j else 0}")
    A("s_cmp_eq_u32 s28, 0")
    A(f"s_cbranch_scc0 {name}_fk1")
    A("s_nop 7")
    A("s_nop 1")
    A(f"ds_write_b128 v3, {v(AC+8,4)}")
    A(f"ds_write_b128 v3, {v(AC+12,4)} offset:1024")
    A(f"s_branch {name}_fk")
    A.label(f"{name}_fk1")
    A("s_nop 7")
    A("s_nop 1")
    A(f"ds_write_b128 v3, {v(AC,4)}")
    A(f"ds_write_b128 v3, {v(AC+4,4)} offset:1024")
    A("s_waitcnt lgkmcnt(0)")
    for r in range(8): A(f"v_mov_b32 v{AC+r}, v{AC+8+r}")
    A.label(f"{name}_fk")
    A("s_waitcnt lgkmcnt(0)")
    A("s_mov_b64 exec, 1")
    A("ds_write_b32 v163, v161 offset:160")
    A("s_mov_b64 exec, -1")
    A("s_cmp_ge_u32 s37, 4")
    A(f"s_cbranch_scc1 {name}_ghave")
    wait_cnt(A, C_G, 4, 160, 162, 33, sleep=0)
    gcalc(OR)
    A.label(f"{name}_ghave")
    for i in range(4):
        A(f"v_lshlrev_b32 v{8+2*i}, 16, v{156+i}")
        A(f"v_and_b32 v{9+2*i}, 0xffff0000, v{156+i}")
        A(f"v_lshlrev_b32 v{16+2*i}, 16, v{152+i}")
        A(f"v_and_b32 v{17+2*i}, 0xffff0000, v{152+i}")
    wait_cnt(A, 160, 1, 164, 162, 33, sleep=0)
    A("ds_read_b128 v[24:27], v5")
    A("ds_read_b128 v[28:31], v5 offset:1024")
    A("s_waitcnt lgkmcnt(0)")
    for r in range(8): A(f"v_add_f32 v{AC+r}, v{AC+r}, v{24+r}")
    for i in range(4): A(f"v_cvt_pk_bf16_f32 v{24+i}, v{AC+2*i}, v{AC+2*i+1}")
    A("s_nop 1")
    A("v_permlane32_swap_b32 v24, v26")
    A("v_permlane32_swap_b32 v25, v27")
    A("s_nop 1")
    for i in range(4):
        A(f"v_lshlrev_b32 v{32+2*i}, 16, v{24+i}")
        A(f"v_and_b32 v{33+2*i}, 0xffff0000, v{24+i}")
    for i in range(8): A(f"v_mul_f32 v{32+i}, v{32+i}, v{8+i}")
    for i in range(4): A(f"v_cvt_pk_bf16_f32 v{24+i}, v{32+2*i}, v{33+2*i}")
    for i in range(4):
        A(f"v_lshlrev_b32 v{32+2*i}, 16, v{24+i}")
        A(f"v_and_b32 v{33+2*i}, 0xffff0000, v{24+i}")
    for i in range(8): A(f"v_add_f32 v{32+i}, v{32+i}, v{16+i}")
    for i in range(4): A(f"v_cvt_pk_bf16_f32 v{24+i}, v{32+2*i}, v{33+2*i}")
    A("buffer_store_dwordx4 v[24:27], v6, s[12:15], s30 offen")
    if os.environ.get("DBGSPAN"):
        A("s_waitcnt vmcnt(0)")
        A("s_memrealtime s[98:99]")
        A("s_waitcnt lgkmcnt(0)")
        A("s_sub_u32 s98, s98, s68")
        A("v_mov_b32 v1, s98")
        A("s_lshl_b32 s97, s3, 8")
        A("s_add_u32 s97, s97, s2")
        A("s_lshl_b32 s97, s97, 2")
        A("s_mov_b64 exec, 1")
        A("buffer_store_dword v1, v160, s[52:55], s97 offen offset:16")
        A("s_mov_b64 exec, -1")
    tl_end(A, 0, 20)
    tl_marks_out(A, 1, 6, 20)
    if asmlib.TIMELINE:
        A("s_lshl_b32 s58, s2, 3")
        A("s_add_u32 s58, s58, s3")
        A("s_lshl_b32 s58, s58, 9")
        A(f"s_add_u32 s58, s58, {100<<20}")
        A("v_lshlrev_b32 v1, 3, v0")
        A("buffer_store_dwordx2 v[166:167], v1, s[20:23], s58 offen")

class BBar:
    def __init__(self, name): self.n = 0; self.name = name; self.lg = None; self.boost = False
    def __call__(self, A):
        self.n += 1
        if self.boost: A("s_setprio 2")
        A("s_mov_b64 exec, 2")
        A("ds_add_u32 v7, v7 offset:64")
        A("s_mov_b64 exec, 1")
        A.label(f"{self.name}_bb{self.n}")
        A("ds_read_b32 v1, v7 offset:80")
        A("s_waitcnt lgkmcnt(0)")
        A("v_readfirstlane_b32 s56, v1")
        A(f"s_cmp_ge_u32 s56, {64*self.n}")
        A(f"s_cbranch_scc0 {self.name}_bb{self.n}")
        A("s_mov_b64 exec, -1")
        if self.boost: A("s_setprio 0")
        if self.lg is not None: self.lg.seq = []

def lb_role(A, name):
    A("s_sub_u32 s3, s3, 8")
    A("v_lshlrev_b32 v7, 2, v0")
    A("v_mov_b32 v1, 0")
    A("ds_write_b32 v7, v1")
    A("v_lshlrev_b32 v7, 4, v0")
    rc_qkv(A)
    A("v_lshrrev_b32 v4, 3, v0")
    A("v_and_b32 v5, 7, v0")
    A("v_lshrrev_b32 v6, 4, v0")
    A("v_xor_b32 v5, v5, v6")
    A("v_xor_b32 v8, 4, v5")
    A("s_lshl_b32 s28, s3, 15")
    A("v_lshlrev_b32 v4, 10, v4")
    A("v_add_u32 v4, s28, v4")
    A("v_lshl_add_u32 v60, v5, 4, v4")
    A("v_lshl_add_u32 v61, v8, 4, v4")
    A("v_add_u32 v61, 8192, v61")
    A("v_add_u32 v62, 16384, v60")
    A("v_add_u32 v63, 16384, v61")
    A("v_lshrrev_b32 v4, 2, v0")
    A("s_lshl_b32 s28, s3, 4")
    A("v_add_u32 v4, s28, v4")
    A("v_mul_u32_u24 v4, 3072, v4")
    A("v_and_b32 v5, 3, v0")
    A("v_lshl_add_u32 v64, v5, 4, v4")
    A("s_lshl_b32 s28, s25, 6")
    A("v_add_u32 v64, s28, v64")
    A("v_add_u32 v65, 1024, v64")
    A("v_add_u32 v66, 2048, v64")
    A("s_lshl_b32 s70, s24, 1")
    A("s_add_u32 s70, s70, s25")
    A("s_and_b32 s70, s70, 7")
    A("s_lshl_b32 s71, s24, 17")
    A("s_lshl_b32 s72, s3, 12")
    A(f"s_add_u32 s72, s72, {K1B}")
    A("s_lshl_b32 s73, s3, 10")
    A(f"s_add_u32 s73, s73, {K1B + 16384}")
    A(f"s_mov_b32 s74, {2*K1_SLOT}")
    A("s_waitcnt lgkmcnt(0)")
    A("s_barrier")
    srd(A, 60, 4, 2048 * 1024)
    srd(A, 64, 6, 512 * 3072)
    srd(A, 20, 16, WS_END)
    srd(A, 52, 18, 256)
    def ldma():
        A("s_lshl_b32 s75, s70, 7")
        A("s_add_u32 s75, s75, s71")
        A(f"s_mul_i32 s76, s70, {64*3072}")
        A("s_add_u32 s70, s70, 1")
        A("s_and_b32 s70, s70, 7")
        A("s_add_u32 s77, s72, s74")
        A("s_add_u32 s78, s73, s74")
        for e in range(4):
            A(f"s_add_u32 m0, s77, {e*1024}")
            A("s_nop 0")
            A(f"buffer_load_dwordx4 v{60+e}, s[60:63], s75 offen lds")
        for T_ in range(3):
            A(f"s_add_u32 m0, s78, {T_*4096}")
            A("s_nop 0")
            A(f"buffer_load_dwordx4 v{64+T_}, s[64:67], s76 offen lds")
        A(f"s_add_u32 s74, s74, {K1_SLOT}")
        A(f"s_cmp_eq_u32 s74, {K1_SLOT*K1_NS}")
        A("s_cselect_b32 s74, 0, s74")
    A("s_mov_b32 s79, 0")
    A.label(f"{name}_lpro")
    ldma()
    A("s_add_u32 s79, s79, 1")
    A(f"s_cmp_lt_u32 s79, {K1_PRO}")
    A(f"s_cbranch_scc1 {name}_lpro")
    A("s_mov_b32 s4, s48")
    A("s_mov_b32 s5, s49")
    A("s_mov_b32 s6, s50")
    A("s_mov_b32 s7, s51")
    bar = BBar(name)
    def prologue(A, dma, vm):
        issued = K1_PRO; seq = [("k", st) for st in range(K1_PRO) for _ in range(7)]
        A("s_lshl_b32 s36, s24, 11")
        A(f"s_add_u32 s36, s36, {FL_X}")
        A("v_and_b32 v1, 15, v0")
        A("v_lshlrev_b32 v1, 7, v1")
        A("v_mov_b32 v67, 0")
        A("s_and_b32 s37, s24, 7")
        A("s_lshl_b32 s37, s37, 1")
        A("s_and_b32 s38, s3, 1")
        A("s_add_u32 s37, s37, s38")
        A("s_lshl_b32 s37, s37, 5")
        A("v_and_b32 v68, 31, v0")
        A("v_add_u32 v68, s37, v68")
        A("v_mul_u32_u24 v68, 3584, v68")
        A("v_add_u32 v68, s28, v68")
        A("v_lshrrev_b32 v69, 5, v0")
        A("v_lshl_add_u32 v69, v69, 7, v68")
        TJ = int(os.environ.get("TJ", "-1"))
        for j in range(8):
            idx = max(i for i, t in enumerate(seq) if t == ("k", j))
            A(f"s_waitcnt vmcnt({len(seq) - 1 - idx})")
            A("s_barrier")
            if issued < 8 and issued - 4 <= j:
                ldma(); seq += [("k", issued)] * 7; issued += 1
                if j == TJ:
                    A("buffer_load_dword v70, v69, s[8:11], 0 offen")
                    A("buffer_load_dword v71, v68, s[8:11], 0 offen offset:220")
                    seq += [("t", 0)] * 2
            elif j == 6:
                A("buffer_load_dwordx2 v[12:13], v67, s[52:55], 0 offen sc1")
                A("buffer_load_dwordx2 v[14:15], v1, s[20:23], s36 offen sc1")
                dma(0); seq += [("g", 0)] * 9
        assert issued == 8
        A("s_waitcnt vmcnt(7)")
        A("v_readfirstlane_b32 s68, v12")
        A("v_readfirstlane_b32 s69, v13")
        A("v_cmp_ne_u64 vcc, v[12:13], v[14:15]")
        A("s_cmp_eq_u32 s68, 0")
        A(f"s_cbranch_scc1 {name}_xslow")
        A("s_cmp_eq_u64 vcc, 0")
        A(f"s_cbranch_scc1 {name}_xok")
        A.label(f"{name}_xslow")
        wait_ready(A, 67, 12, 37)
        poll_lanes(A, 20, 1, "s36", 12, sleep=1)
        A.label(f"{name}_xok")
        if os.environ.get("BWAIT"):
            wait_cnt(A, C_QKV, 8, 67, 71, 37, sleep=2)
        tl_mark(A, 4)
    def wait_slot2(A, lg):
        A("v_mov_b32 v0, 0")
        wait_cnt(A, C_WFREE, 8, 0, 1, 37)
        lg.seq = []
    ffn.gu_body(A, name + "_gu", bar, st_flags="sc1", lds0=BOFF, x_flags=os.environ.get("XFL", "sc1"), prologue=prologue, wait_slot2=wait_slot2)
    A("s_waitcnt vmcnt(0)")
    bar(A)
    A("s_cmp_eq_u32 s3, 0")
    A(f"s_cbranch_scc0 {name}_noflag")
    A("s_lshl_b32 s34, s24, 4")
    A("s_add_u32 s34, s34, s25")
    A("s_lshl_b32 s34, s34, 7")
    A(f"s_add_u32 s34, s34, {FL_H}")
    A("v_mov_b32 v1, 0")
    A("s_mov_b64 exec, 1")
    flag_store(A, 1, 2, "s34")
    A("s_mov_b64 exec, -1")
    A.label(f"{name}_noflag")
    tl_mark(A, 1)
    A("s_mov_b32 s4, s46")
    A("s_mov_b32 s5, s47")
    A("v_lshrrev_b32 v0, 4, v7")
    ctx = ffn.sk_body(A, name + "_dn", bar, 28, WS_H, 112 * 1024, 1792 * 1024, "g", ld_flags="sc1", lds0=BOFF)
    def wait_act(A):
        A("s_lshr_b32 s34, s24, 1")
        A("s_lshl_b32 s34, s34, 11")
        A("s_lshl_b32 s35, s3, 9")
        A("s_add_u32 s34, s34, s35")
        A(f"s_add_u32 s34, s34, {FL_H}")
        A("v_and_b32 v1, 3, v0")
        A("v_lshlrev_b32 v1, 7, v1")
        poll_lanes(A, 20, 1, "s34", 16, sleep=4)
        DEF = int(os.environ.get("DEFER", "0"))
        if os.environ.get("HT", "1") == "1":
            A("s_and_b32 s34, s25, 3")
            A("s_mul_i32 s34, s34, 7168")
            A("v_min_u32 v1, 55, v0")
            A("v_lshlrev_b32 v1, 7, v1")
            A("v_add_u32 v1, s34, v1")
            A("buffer_load_dword v16, v1, s[20:23], s29 offen sc1")
            A("buffer_load_dword v17, v1, s[20:23], s30 offen sc1")
            A("s_waitcnt vmcnt(0)")
        if DEF:
            A("v_mov_b32 v1, 0")
            wait_cnt(A, 128, DEF, 1, 16, 35, sleep=8)
        tl_mark(A, 2)
        ctx["vm"].seq = []
    bar.lg = ctx["lg"]
    def after_red_reads(A):
        pass
    ffn.sk_main(A, name + "_dn", bar, 28, ctx, "gpart", wait_act=wait_act, lds0=BOFF, after_red_reads=after_red_reads, gbuf=(GBUF, GSTR))
    A("s_waitcnt vmcnt(0) lgkmcnt(0)")
    A("v_mov_b32 v1, 0")
    A("v_mov_b32 v2, 1")
    arrive(A, C_G, 1, 2)
    A("s_add_u32 s3, s3, 8")
    tl_end(A, 8, 20)
    tl_marks_out(A, 9, 7 if os.environ.get('GUT') else 5, 20)

def gen(A, name=NAME):
    kernel_begin(A, name)
    A("s_cmp_ge_u32 s2, 256")
    A(f"s_cbranch_scc1 F_end")
    if os.environ.get("PERM"):
        A("s_lshr_b32 s3, s2, 5")
        A("s_and_b32 s2, s2, 31")
        A("s_lshl_b32 s2, s2, 3")
        A("s_or_b32 s2, s2, s3")
    tl_begin(A)
    A("s_load_dwordx4 s[4:7], s[0:1], 0")
    A("s_load_dwordx2 s[42:43], s[0:1], 16")
    A("s_load_dwordx4 s[48:51], s[0:1], 32")
    A("s_load_dwordx2 s[46:47], s[0:1], 48")
    A("s_load_dwordx2 s[44:45], s[0:1], 56")
    A("s_load_dwordx2 s[18:19], s[0:1], 64")
    A("s_load_dwordx2 s[16:17], s[0:1], 72")
    A("v_lshrrev_b32 v1, 6, v0")
    A("v_and_b32 v0, 63, v0")
    A("s_nop 0")
    A("v_readfirstlane_b32 s3, v1")
    A("s_cmp_lt_u32 s3, 8")
    A("s_cbranch_scc0 F_lb")
    ca_role(A, "F")
    A.label("F_lb")
    ffn.PRIO = True
    A("s_setprio 2")
    asmlib.MARK_OFF = bool(os.environ.get("GUT"))
    lb_role(A, "F")
    ffn.PRIO = False
    A.label("F_end")
    A("s_endpgm")
```

```python
from asmlib import *
import asmlib, ffn, os, struct
def f2u(x): return struct.unpack("<I", struct.pack("<f", x))[0]
LOG2E = 1.4426950408889634
QSCALE = 0.25 * LOG2E

NAME = "recurrent_scan__mha_block__glu_gated_glu__prompt_kernel"
BOFF = 256
WQ = BOFF + 2 * ffn.GU_SLOT
LNB = BOFF
ABASE = BOFF + 3 * ffn.GU_SLOT
NCH = 6
XCH = ABASE + NCH * 8192
GBUF = XCH + 16384
GSTR = 144
K1_SLOT = 28672; K1_NS = 5; K1_D = 4
K1B = WQ - 2 * K1_SLOT
K1T = K1B + K1_SLOT * K1_NS
LNB = K1T + 5120
K1_PRO = int(os.environ.get('K1_PRO', '2'))
F_LDS = 163840
assert WQ + 98304 <= F_LDS and GBUF + 64 * GSTR <= F_LDS
C_LN, C_XF, C_W, C_WFREE, C_G = 0, 4, 8, 12, 16
F_VGPR = 168
F_THREADS = 768
WS_FLAG = 30 << 20
WS_ST = 29 << 20
FL_X = WS_FLAG
FL_A = WS_FLAG + 32768
FL_H = WS_FLAG + 65536
FL_O = WS_FLAG + 98304
C_QKV, C_O, C_GO, C_GO2 = 20, 24, 28, 32

def flag_store(A, vz, vt, soff):
    A(f"v_mov_b32 v{vt}, s68")
    A(f"v_mov_b32 v{vt+1}, s69")
    A(f"buffer_store_dwordx2 {v(vt,2)}, v{vz}, s[20:23], {soff} offen sc1")

def publish(A, cnt_off, n, vz, vone, vt, st, soff, lbl):
    A("s_mov_b64 exec, 1")
    A(f"ds_add_rtn_u32 v{vt}, v{vz}, v{vone} offset:{cnt_off}")
    A("s_waitcnt lgkmcnt(0)")
    A(f"v_readfirstlane_b32 s{st}, v{vt}")
    A(f"s_cmp_eq_u32 s{st}, {n-1}")
    A(f"s_cbranch_scc0 {lbl}")
    flag_store(A, vz, vt, soff)
    A.label(lbl)
    A("s_mov_b64 exec, -1")

def wait_ready(A, vz, vt, st):
    _lbl[0] += 1
    L = f"Lr{_lbl[0]}"
    A.label(L)
    A(f"buffer_load_dwordx2 {v(vt,2)}, v{vz}, s[52:55], 0 offen sc1")
    A("s_waitcnt vmcnt(0)")
    A(f"v_readfirstlane_b32 s68, v{vt}")
    A(f"v_readfirstlane_b32 s69, v{vt+1}")
    A("s_cmp_eq_u32 s68, 0")
    A(f"s_cbranch_scc1 {L}")

_lbl = [0]
def arrive(A, off, vz, vone):
    A("s_mov_b64 exec, 1")
    A(f"ds_add_u32 v{vz}, v{vone} offset:{off}")
    A("s_mov_b64 exec, -1")
def wait_cnt(A, off, n, vz, vt, st, sleep=1):
    _lbl[0] += 1
    L = f"Lw{_lbl[0]}"
    A.label(L)
    A(f"ds_read_b32 v{vt}, v{vz} offset:{off}")
    A("s_waitcnt lgkmcnt(0)")
    A(f"v_readfirstlane_b32 s{st}, v{vt}")
    A(f"s_cmp_ge_u32 s{st}, {n}")
    A(f"s_cbranch_scc1 {L}x")
    if sleep: A(f"s_sleep {sleep}")
    A(f"s_branch {L}")
    A.label(L + "x")

def poll_lanes(A, srd_, voff, soff, vt, sleep=2):
    _lbl[0] += 1
    L = f"Lq{_lbl[0]}"
    A.label(L)
    A(f"buffer_load_dwordx2 {v(vt,2)}, v{voff}, s[{srd_}:{srd_+3}], {soff} offen sc1")
    A("s_waitcnt vmcnt(0)")
    A(f"v_cmp_ne_u64 vcc, s[68:69], {v(vt,2)}")
    A("s_nop 1")
    A("s_cmp_eq_u64 vcc, 0")
    A(f"s_cbranch_scc1 {L}x")
    A(f"s_sleep {sleep}")
    A(f"s_branch {L}")
    A.label(L + "x")

def rc_qkv(A):
    A("s_bfe_u32 s24, s2, 0x20001")
    A("s_lshl_b32 s24, s24, 2")
    A("s_lshr_b32 s25, s2, 6")
    A("s_add_u32 s24, s24, s25")
    A("s_and_b32 s25, s2, 1")
    A("s_lshl_b32 s25, s25, 3")
    A("s_bfe_u32 s26, s2, 0x30003")
    A("s_add_u32 s25, s25, s26")

VQ = 8; VNEG = 16; VS = [32, 48]; VP = [64, 72]; VO = 80; VK = 96; VV0 = 100; VV1 = 104

def ca_role(A, name):
    rc_qkv(A)
    A("v_lshlrev_b32 v2, 4, v0")
    A("v_mov_b32 v118, 0")
    A("v_mov_b32 v119, 1")
    A("s_lshl_b32 s30, s24, 7")
    A("s_lshl_b32 s28, s25, 3")
    A("s_add_u32 s30, s30, s28")
    A("s_add_u32 s31, s30, s3")
    A("s_lshl_b32 s31, s31, 10")
    A("s_waitcnt lgkmcnt(0)")
    srd(A, 8, 4, 2048 * 1024)
    srd(A, 20, 16, WS_END)
    srd(A, 52, 18, 256)
    A("buffer_load_dwordx4 v[164:167], v2, s[8:11], s31 offen")
    A("s_or_b32 s28, s2, s3")
    A("s_cmp_eq_u32 s28, 0")
    A(f"s_cbranch_scc0 {name}_nz")
    A("s_memrealtime s[68:69]")
    A("s_waitcnt lgkmcnt(0)")
    A("s_or_b32 s68, s68, 1")
    A("v_mov_b32 v24, s68")
    A("v_mov_b32 v25, s69")
    A("s_mov_b64 exec, 1")
    A("buffer_store_dwordx2 v[24:25], v118, s[52:55], 0 offen sc1")
    A("s_mov_b64 exec, -1")
    A.label(f"{name}_nz")
    TL_ = os.environ.get("TLBT")
    if TL_:
        sh = 21 if TL_ == "2m" else 16
        A(f"v_lshlrev_b32 v26, {sh}, v0")
        n_ws = 1 if sh == 21 else 8
        A(f"s_lshl_b32 s28, s3, {min(sh + 6, 31)}" if sh == 16 else "s_mov_b32 s28, 0")
        A("buffer_load_dword v27, v26, s[20:23], s28 offen")
        for wv, (sp, nb) in enumerate(((44, 2048*1024), (42, 512*1024), (46, 1792*1024), (48, 512*3584), (50, 512*3584), (6, 512*3072))):
            A(f"s_cmp_eq_u32 s3, {wv}")
            A(f"s_cbranch_scc0 {name}_tt{wv}")
            srd(A, 60, sp, nb)
            A("buffer_load_dword v28, v26, s[60:63], 0 offen")
            A.label(f"{name}_tt{wv}")
    A("s_barrier")
    A("s_mul_i32 s28, s3, 1040")
    A(f"s_add_u32 s28, s28, {LNB}")
    A("v_add_u32 v140, s28, v2")
    A("v_and_b32 v141, 7, v0")
    A("v_mul_u32_u24 v142, 1040, v141")
    A("v_lshrrev_b32 v143, 3, v0")
    A("s_lshl_b32 s28, s3, 3")
    A("v_add_u32 v143, s28, v143")
    A("v_lshl_add_u32 v142, v143, 4, v142")
    A(f"v_add_u32 v142, {LNB}, v142")
    A("v_lshlrev_b32 v143, 9, v143")
    A("v_lshl_add_u32 v143, v141, 4, v143")
    A("s_lshr_b32 s28, s30, 5")
    A("s_lshl_b32 s28, s28, 15")
    A("s_and_b32 s29, s30, 31")
    A("s_lshl_b32 s29, s29, 4")
    A("s_add_u32 s28, s28, s29")
    A(f"s_add_u32 s28, s28, {WS_XF}")
    k1_setup(A)
    if os.environ.get("TLBT"):
        A("s_or_b32 s29, s2, s3")
        A("s_cmp_eq_u32 s29, 0")
        A(f"s_cbranch_scc1 {name}_w0")
        A("s_cmp_lt_u32 s3, 6")
        A(f"s_cbranch_scc1 {name}_w1")
        A("s_waitcnt vmcnt(1)")
        A.label(f"{name}_w1")
        A("s_waitcnt vmcnt(2)")
        A.label(f"{name}_w0")
        A("s_waitcnt vmcnt(3)")
    else:
        A("s_or_b32 s29, s2, s3")
        A("s_cmp_eq_u32 s29, 0")
        A(f"s_cbranch_scc1 {name}_w0")
        A("s_waitcnt vmcnt(0)")
        A.label(f"{name}_w0")
        A("s_waitcnt vmcnt(1)")
    T = 144
    for i in range(4):
        A(f"v_lshlrev_b32 v{T+2*i}, 16, v{164+i}")
        A(f"v_and_b32 v{T+2*i+1}, 0xffff0000, v{164+i}")
    A(f"v_add_f32 v160, v{T}, v{T+1}")
    A(f"v_mul_f32 v161, v{T}, v{T}")
    A(f"v_fmac_f32 v161, v{T+1}, v{T+1}")
    for i in range(2, 8):
        A(f"v_add_f32 v160, v160, v{T+i}")
        A(f"v_fmac_f32 v161, v{T+i}, v{T+i}")
    A("s_nop 0")
    for m in ("quad_perm:[1,0,3,2]", "quad_perm:[2,3,0,1]", "row_half_mirror", "row_mirror"):
        A(f"v_add_f32_dpp v160, v160, v160 {m} row_mask:0xf bank_mask:0xf")
        A(f"v_add_f32_dpp v161, v161, v161 {m} row_mask:0xf bank_mask:0xf")
        A("s_nop 0")
    for op in ("v_permlane16_swap_b32", "v_permlane32_swap_b32"):
        A("v_mov_b32 v162, v160")
        A("v_mov_b32 v163, v161")
        A("s_nop 0")
        A(f"{op} v162, v160")
        A(f"{op} v163, v161")
        A("s_nop 0")
        A("v_add_f32 v160, v160, v162")
        A("v_add_f32 v161, v161, v163")
    A(f"v_mul_f32 v160, {hex(f2u(1/512))}, v160")
    A(f"v_mul_f32 v161, {hex(f2u(1/512))}, v161")
    A("v_fma_f32 v161, -v160, v160, v161")
    ln_scalars(A, 160, 161, 162)
    A("s_lshr_b32 s29, s31, 7")
    A(f"s_add_u32 s29, s29, {WS_ST}")
    A("s_mov_b64 exec, 1")
    A("buffer_store_dwordx2 v[160:161], v118, s[20:23], s29 offen sc1")
    A("s_mov_b64 exec, -1")
    for i in range(8): A(f"v_sub_f32 v{T+i}, v{T+i}, v160")
    for i in range(4): A(f"v_cvt_pk_bf16_f32 v{164+i}, v{T+2*i}, v{T+2*i+1}")
    for i in range(4):
        A(f"v_lshlrev_b32 v{T+2*i}, 16, v{164+i}")
        A(f"v_and_b32 v{T+2*i+1}, 0xffff0000, v{164+i}")
    for i in range(8): A(f"v_mul_f32 v{T+i}, v{T+i}, v161")
    for i in range(4): A(f"v_cvt_pk_bf16_f32 v{164+i}, v{T+2*i}, v{T+2*i+1}")
    A("ds_write_b128 v140, v[164:167]")
    A("s_waitcnt lgkmcnt(0)")
    arrive(A, C_LN, 118, 119)
    wait_cnt(A, C_LN, 8, 118, 139, 29, sleep=0)
    A("ds_read_b128 v[164:167], v142")
    A("s_waitcnt lgkmcnt(0)")
    A("buffer_store_dwordx4 v[164:167], v143, s[20:23], s28 offen sc1")
    tl_mark(A, 0)
    A("buffer_load_dwordx2 v[116:117], v118, s[52:55], 0 offen sc1")
    A("s_cmp_lt_u32 s3, 4")
    A(f"s_cbranch_scc0 {name}_kv")
    k1_compute(A, name, 0)
    A(f"s_branch {name}_attn1")
    A.label(f"{name}_kv")
    k1_compute(A, name, 1)
    A.label(f"{name}_attn1")
    A("s_lshl_b32 s28, s25, 4")
    A("s_add_u32 s28, s28, s24")
    A("s_lshl_b32 s28, s28, 7")
    A(f"s_add_u32 s28, s28, {FL_A}")
    A("v_mov_b32 v118, 0")
    A("v_mov_b32 v119, 1")
    wait_ready(A, 118, 6, 29)
    A("s_cmp_eq_u32 s57, 0")
    A(f"s_cbranch_scc1 {name}_xdone")
    A("s_mov_b64 exec, 1")
    flag_store(A, 118, 6, "s59")
    A("s_mov_b64 exec, -1")
    A.label(f"{name}_xdone")
    publish(A, C_QKV, 8, 118, 119, 6, 29, "s28", f"{name}_pa")
    A("s_setprio 0")
    tl_mark(A, 2)
    A("v_and_b32 v116, 15, v0")
    A("v_lshlrev_b32 v116, 7, v116")
    A.label(f"{name}_attn2")
    attn(A, name)


AC0, AC1 = 32, 48
XF = 64; WFK = 80; VSEL = 112; VCS = 120; VS1, VS2 = 124, 126

def xpub(A, L):
    A("s_mov_b64 exec, 1")
    A("s_waitcnt vmcnt(0)")
    A("v_readfirstlane_b32 s29, v116")
    A("s_cmp_eq_u32 s29, 0")
    A(f"s_cbranch_scc1 {L}_c")
    A("buffer_store_dwordx2 v[116:117], v118, s[20:23], s59 offen sc1")
    A("s_mov_b32 s57, 0")
    A(f"s_branch {L}_d")
    A.label(f"{L}_c")
    A("buffer_load_dwordx2 v[116:117], v118, s[52:55], 0 offen sc1")
    A.label(f"{L}_d")
    A("s_mov_b64 exec, -1")

def k1_setup(A):
    A("s_cmp_eq_u32 s3, 7")
    A("s_cselect_b32 s57, 5, 0")
    A("s_lshl_b32 s59, s24, 4")
    A("s_add_u32 s59, s59, s25")
    A("s_lshl_b32 s59, s59, 7")
    A(f"s_add_u32 s59, s59, {FL_X}")
    A("s_lshl_b32 s60, s24, 11")
    A(f"s_add_u32 s60, s60, {FL_X}")
    A("v_and_b32 v138, 15, v0")
    A("v_lshlrev_b32 v138, 7, v138")
    A("s_lshl_b32 s61, s24, 10")
    A("s_and_b32 s62, s3, 3")
    A("s_lshl_b32 s62, s62, 8")
    A("s_add_u32 s61, s61, s62")
    A(f"s_add_u32 s61, s61, {WS_ST}")
    A("v_and_b32 v23, 31, v0")
    A("v_lshlrev_b32 v23, 3, v23")
    A("s_mov_b32 s62, 0")
    A("s_and_b32 s26, s3, 3")
    A("v_and_b32 v4, 31, v0")
    A("v_lshrrev_b32 v5, 5, v0")
    A("v_bfe_u32 v6, v0, 1, 3")
    A("v_xor_b32 v6, v5, v6")
    A("s_lshl_b32 s34, s26, 12")
    A(f"s_add_u32 s34, s34, {K1B}")
    A("v_lshlrev_b32 v4, 7, v4")
    A("v_add_u32 v4, s34, v4")
    for s_ in range(4):
        A(f"v_xor_b32 v7, {2*s_}, v6")
        A(f"v_lshl_add_u32 v{11+s_}, v7, 4, v4")
    A("v_bfe_u32 v6, v0, 2, 2")
    A("v_lshl_add_u32 v6, v5, 3, v6")
    A("v_lshlrev_b32 v6, 6, v6")
    A("v_bfe_u32 v7, v0, 4, 1")
    A("v_lshl_add_u32 v6, v7, 5, v6")
    A("v_and_b32 v7, 3, v0")
    A("v_lshl_add_u32 v6, v7, 3, v6")
    A(f"v_add_u32 v15, {K1B + 16384}, v6")
    for r in range(32): A(f"v_mov_b32 v{AC0+r}, 0")
    for r in range(VCS, 128): A(f"v_mov_b32 v{r}, 0")
    A("v_and_b32 v6, 15, v0")
    A("v_bfe_u32 v7, v0, 4, 1")
    A("v_cmp_eq_u32 vcc, v6, v7")
    A("v_mov_b32 v6, 0x3f803f80")
    A("s_nop 0")
    A(f"v_cndmask_b32 v{VSEL}, 0, v6, vcc")
    for r in range(1, 4): A(f"v_mov_b32 v{VSEL+r}, v{VSEL}")
    A(f"s_mov_b32 s36, {2*K1_SLOT}")
    A("s_mov_b32 s39, 8")

def k1_compute(A, name, role):
    L = f"{name}_c{role}"
    lg = Cnt(A, "lgkmcnt", 15)
    WF = WFK
    nt = 2 if role == 0 else 1
    t0 = 0 if role == 0 else 2
    TM = 128
    A("s_setprio 3" if role == 1 else "s_setprio 2")
    def addrs():
        for i in range(5): A(f"v_add_u32 v{16+i}, s36, v{11+i}")
        A(f"s_add_u32 s36, s36, {K1_SLOT}")
        A(f"s_cmp_eq_u32 s36, {K1_SLOT*K1_NS}")
        A("s_cselect_b32 s36, 0, s36")
    def reads(s_):
        A(f"ds_read_b128 {v(XF+4*s_,4)}, v{16+s_}"); lg.issue(("x", s_))
        for T_ in range(nt):
            for p in range(2):
                A(f"ds_read_b64_tr_b16 {v(WF+8*s_+4*T_+2*p,2)}, v20 offset:{(t0+T_)*4096 + (16*s_+4*p)*64}")
                lg.issue(("w", s_, T_))
    def stats(s_, lo, hi):
        return
        for i in range(lo, hi):
            A(f"v_lshlrev_b32 v{TM+2*i}, 16, v{XF+4*s_+i}")
            A(f"v_and_b32 v{TM+2*i+1}, 0xffff0000, v{XF+4*s_+i}")
        for i in range(2 * lo, 2 * hi):
            A(f"v_add_f32 v{VS1+i%2}, v{VS1+i%2}, v{TM+i}")
            A(f"v_fmac_f32 v{VS2+i%2}, v{TM+i}, v{TM+i}")
    def step(s_):
        X = v(XF + 4 * s_, 4)
        if role == 0:
            lg.wait(("w", s_, 0))
            A(f"v_mfma_f32_32x32x16_bf16 {v(AC0,16)}, {v(WF+8*s_,4)}, {X}, {v(AC0,16)}")
            stats(s_, 0, 1)
            lg.wait(("w", s_, 1))
            A(f"v_mfma_f32_32x32x16_bf16 {v(AC1,16)}, {v(WF+8*s_+4,4)}, {X}, {v(AC1,16)}")
            stats(s_, 1, 2)
        else:
            lg.wait(("w", s_, 0))
            A(f"v_mfma_f32_32x32x16_bf16 {v(AC0,16)}, {X}, {v(WF+8*s_,4)}, {v(AC0,16)}")
            stats(s_, 2, 4)
    def colsum(half):
        cands = [(0, 0), (1, 4)] if role == 0 else [(2, 0)]
        for tbv, off in cands:
            A(f"s_cmp_eq_u32 s26, {tbv}")
            A(f"s_cbranch_scc0 {L}_nocs{half}_{tbv}")
            for s_ in (2 * half, 2 * half + 1):
                A(f"v_mfma_f32_16x16x32_bf16 {v(VCS,4)}, {v(VSEL,4)}, {v(WF+8*s_+off,4)}, {v(VCS,4)}")
            A.label(f"{L}_nocs{half}_{tbv}")
    addrs()
    A("s_barrier")
    reads(0); reads(1); reads(2); reads(3)
    top_state = list(lg.seq)
    A.label(f"{L}_loop")
    step(0); step(1)
    colsum(0)
    A("s_sub_u32 s39, s39, 1")
    A("s_cmp_eq_u32 s39, 0")
    A(f"s_cbranch_scc1 {L}_last")
    addrs()
    A("s_cmp_eq_u32 s39, 6")
    A(f"s_cbranch_scc0 {L}_noxf")
    A("s_waitcnt vmcnt(0)")
    A.label(f"{L}_noxf")
    A("s_cmp_eq_u32 s39, 2")
    A(f"s_cbranch_scc0 {L}_ns1")
    A("buffer_load_dwordx2 v[128:129], v118, s[52:55], 0 offen sc1")
    A("buffer_load_dwordx2 v[130:131], v138, s[20:23], s60 offen sc1")
    A.label(f"{L}_ns1")
    A("s_cmp_eq_u32 s39, 1")
    A(f"s_cbranch_scc0 {L}_ns2")
    A("s_waitcnt vmcnt(0)")
    A("v_readfirstlane_b32 s29, v128")
    A("v_cmp_ne_u64 vcc, v[128:129], v[130:131]")
    A("s_cmp_eq_u32 s29, 0")
    A(f"s_cbranch_scc1 {L}_ns2")
    A("s_cmp_eq_u64 vcc, 0")
    A(f"s_cbranch_scc0 {L}_ns2")
    A(f"buffer_load_dwordx2 {v(VS1,2)}, v23, s[20:23], s61 offen sc1")
    A("s_mov_b32 s62, 1")
    A.label(f"{L}_ns2")
    if role == 1:
        A("s_cmp_gt_u32 s39, s57")
        A(f"s_cbranch_scc1 {L}_nopub")
        xpub(A, f"{L}_xp")
        A.label(f"{L}_nopub")
    lg.wait_all()
    A("s_barrier")
    reads(0); reads(1)
    step(2); step(3)
    colsum(1)
    reads(2); reads(3)
    assert lg.seq == top_state, (lg.seq, top_state)
    A(f"s_branch {L}_loop")
    A.label(f"{L}_last")
    lg.wait_all()
    L = L + "x"
    step(2); step(3)
    colsum(1)
    tl_mark(A, 1)
    TB = K1T
    A("v_lshlrev_b32 v4, 2, v0")
    A("v_cmp_gt_u32 vcc, 16, v0")
    if role == 0:
        A("s_lshl_b32 s34, s26, 7")
        A("s_cmp_lt_u32 s26, 2")
    else:
        A("s_mov_b32 s34, 256")
        A("s_cmp_eq_u32 s26, 2")
    A("s_cselect_b32 s34, s34, 512")
    A("v_mov_b32 v5, 512")
    A("v_mov_b32 v6, s34")
    A("v_cndmask_b32 v5, v5, v6, vcc")
    A("v_add_u32 v5, v5, v4")
    A(f"v_add_u32 v5, {TB}, v5")
    A("s_nop 1")
    A(f"ds_write_b32 v5, v{VCS}")
    A(f"ds_write_b32 v5, v{VCS+1} offset:64")
    A("v_and_b32 v6, 31, v0")
    A("s_lshl_b32 s34, s26, 8")
    A(f"s_add_u32 s34, s34, {TB + 1024}")
    A("v_lshl_add_u32 v7, v6, 3, s34")
    A("v_lshlrev_b32 v6, 2, v6")
    A("v_lshrrev_b32 v8, 5, v0")
    A("v_lshlrev_b32 v8, 4, v8")
    A("s_lshl_b32 s37, s25, 7")
    A("s_lshl_b32 s35, s24, 2")
    A("s_add_u32 s37, s37, s35")
    A("s_add_u32 s37, s37, s26")
    A("s_waitcnt lgkmcnt(0)")
    arrive(A, C_WFREE, 118, 119)
    wait_cnt(A, C_WFREE, 8, 118, 9, 29, sleep=0)
    lg.seq = []
    if role == 0:
        A(f"v_add_u32 v8, {TB}, v8")
        for T_ in range(2):
            for g in range(4):
                A(f"ds_read_b128 {v(WF+16*T_+4*g,4)}, v8 offset:{T_*128 + g*32}"); lg.issue(("c", T_))
    else:
        A(f"v_add_u32 v9, {TB}, v6")
        A("ds_read_b32 v4, v9 offset:256"); lg.issue("c")
    A("s_cmp_eq_u32 s62, 1")
    A(f"s_cbranch_scc1 {L}_sok")
    if role == 1:
        A("s_cmp_eq_u32 s57, 0")
        A(f"s_cbranch_scc1 {L}_np")
        wait_ready(A, 118, 128, 29)
        A("s_mov_b64 exec, 1")
        flag_store(A, 118, 128, "s59")
        A("s_mov_b64 exec, -1")
        A("s_mov_b32 s57, 0")
        A.label(f"{L}_np")
    wait_ready(A, 118, 128, 29)
    poll_lanes(A, 20, 138, "s60", 128, sleep=1)
    A(f"buffer_load_dwordx2 {v(VS1,2)}, v23, s[20:23], s61 offen sc1")
    A.label(f"{L}_sok")
    A("s_waitcnt vmcnt(0)")
    M, RS = VS1, VS1 + 1
    if role == 0:
        A("s_lshl_b32 s35, s37, 11")
        A(f"s_add_u32 s36, s35, {WS_KV + 131072}")
        A(f"s_add_u32 s35, s35, {WS_KV}")
        A(f"v_mul_f32 v6, {hex(f2u(QSCALE))}, v{RS}")
        lg.wait(("c", 1))
        for r in range(16):
            A(f"v_fma_f32 v{AC1+r}, -v{M}, v{WF+16+r}, v{AC1+r}")
            A(f"v_mul_f32 v{AC1+r}, v{AC1+r}, v{RS}")
        for i in range(8): A(f"v_cvt_pk_bf16_f32 v{XF+8+i}, v{AC1+2*i}, v{AC1+2*i+1}")
        A(f"buffer_store_dwordx4 {v(XF+8,4)}, v2, s[20:23], s35 offen sc1")
        A(f"buffer_store_dwordx4 {v(XF+12,4)}, v2, s[20:23], s36 offen sc1")
        A("s_lshl_b32 s35, s37, 10")
        A(f"s_add_u32 s36, s35, {WS_Q + 65536}")
        for r in range(16):
            A(f"v_fma_f32 v{AC0+r}, -v{M}, v{WF+r}, v{AC0+r}")
            A(f"v_mul_f32 v{AC0+r}, v{AC0+r}, v6")
        for i in range(8): A(f"v_cvt_pk_bf16_f32 v{XF+i}, v{AC0+2*i}, v{AC0+2*i+1}")
        A(f"buffer_store_dwordx4 {v(XF,4)}, v2, s[20:23], s35 offen sc1")
        A(f"buffer_store_dwordx4 {v(XF+4,4)}, v2, s[20:23], s36 offen sc1")
    else:
        A("s_lshl_b32 s34, s3, 8")
        A(f"s_add_u32 s34, s34, {TB + 3072}")
        A("v_add_u32 v6, s34, v6")
        A("v_add_u32 v8, s34, v8")
        A(f"ds_write_b32 v6, v{M}"); lg.issue("w")
        A(f"ds_write_b32 v6, v{RS} offset:128"); lg.issue("w")
        for g in range(4):
            A(f"ds_read_b128 {v(WF+4*g,4)}, v8 offset:{g*32}"); lg.issue("m2")
        for g in range(4):
            A(f"ds_read_b128 {v(WF+16+4*g,4)}, v8 offset:{128 + g*32}"); lg.issue("rs")
        A("v_bfe_u32 v7, v0, 4, 1")
        A("v_lshlrev_b32 v7, 17, v7")
        A("v_lshrrev_b32 v5, 5, v0")
        A("v_lshl_add_u32 v7, v5, 8, v7")
        A("v_and_b32 v5, 15, v0")
        A("v_lshl_add_u32 v7, v5, 4, v7")
        A("s_lshl_b32 s35, s37, 11")
        A(f"s_add_u32 s35, s35, {WS_KV}")
        lg.wait("rs")
        for r in range(16):
            A(f"v_fma_f32 v{AC0+r}, -v{WF+r}, v4, v{AC0+r}")
            A(f"v_mul_f32 v{AC0+r}, v{AC0+r}, v{WF+16+r}")
        for i in range(8): A(f"v_cvt_pk_bf16_f32 v{XF+i}, v{AC0+2*i}, v{AC0+2*i+1}")
        A(f"buffer_store_dwordx4 {v(XF,4)}, v7, s[20:23], s35 offen offset:1024 sc1")
        A(f"buffer_store_dwordx4 {v(XF+4,4)}, v7, s[20:23], s35 offen offset:1536 sc1")

def attn(A, name):
    A("s_and_b32 s16, s2, 7")
    A("s_lshr_b32 s17, s2, 3")
    A("s_and_b32 s18, s17, 3")
    A("s_lshl_b32 s16, s16, 2")
    A("s_add_u32 s16, s16, s18")
    A("s_lshr_b32 s17, s17, 2")
    A("s_lshl_b32 s17, s17, 3")
    A("s_add_u32 s17, s17, s3")
    A("s_lshl_b32 s19, s16, 6")
    A("s_add_u32 s19, s19, s17")
    A("s_lshl_b32 s19, s19, 10")
    A("s_lshl_b32 s26, s16, 17")
    A(f"s_add_u32 s26, s26, {WS_KV}")
    A("s_lshl_b32 s27, s3, 10")
    A("s_add_u32 s28, s26, s27")
    A(f"s_add_u32 s27, s27, {ABASE}")
    A("v_lshrrev_b32 v3, 5, v0")
    A("v_lshlrev_b32 v3, 8, v3")
    A("v_and_b32 v4, 15, v0")
    A("v_lshlrev_b32 v4, 4, v4")
    A("v_add_u32 v3, v3, v4")
    A(f"v_add_u32 v108, {ABASE}, v2")
    A(f"v_add_u32 v109, {ABASE + 1024}, v3")
    A("s_lshl_b32 s29, s3, 2")
    A("s_add_u32 s29, s29, 128")
    A("v_mov_b32 v114, s29")
    A("v_mov_b32 v115, 1")
    A("v_and_b32 v117, 7, v0")
    A("v_lshlrev_b32 v117, 2, v117")
    A("s_mov_b32 s24, 0x0000ffff")
    A("s_mov_b32 s25, 0x0000ffff")
    A("v_and_b32 v4, 27, v0")
    A("v_cmp_eq_u32 vcc, 16, v4")
    A("v_mov_b32 v5, 0x3f803f80")
    A("s_nop 0")
    A("v_cndmask_b32 v5, 0, v5, vcc")
    for r in range(8): A(f"v_mov_b32 {v(VV0+r)}, v5")
    for r in range(16): A(f"v_mov_b32 {v(VO+r)}, 0")
    for r in range(4, 8): A(f"v_mov_b32 {v(VP[1]+r)}, 0")
    A("s_lshr_b32 s29, s16, 1")
    A("s_lshl_b32 s29, s29, 11")
    A(f"s_add_u32 s29, s29, {FL_A}")
    A("s_cmp_eq_u32 s3, 0")
    A(f"s_cbranch_scc0 {name}_gw")
    poll_lanes(A, 20, 116, "s29", 6, sleep=int(os.environ.get("PSL", "3")))
    arrive(A, C_GO, 118, 119)
    A(f"s_branch {name}_go")
    A.label(f"{name}_gw")
    wait_cnt(A, C_GO, 1, 118, 6, 30, sleep=2)
    A.label(f"{name}_go")
    tl_mark(A, 3)
    A(f"buffer_load_dwordx4 {v(VQ,4)}, v2, s[20:23], s19 offen sc1")
    A(f"buffer_load_dwordx4 {v(VK,4)}, v2, s[20:23], s26 offen sc1")
    def dma(off):
        A(f"s_add_u32 m0, s27, {off}")
        A("s_nop 0")
        A("buffer_load_dwordx4 v2, s[20:23], s28 offen sc1 lds")
        A("s_add_u32 s28, s28, 8192")
    for c in range(4): dma(c * 8192)
    A("s_waitcnt vmcnt(4)")
    A(f"v_mfma_f32_32x32x16_bf16 {v(VS[0],16)}, {v(VK,4)}, {v(VQ,4)}, 0")
    A("s_waitcnt vmcnt(2)")
    A("s_mov_b64 exec, 1")
    A("ds_write_b32 v114, v115")
    A("s_mov_b64 exec, -1")
    A("s_nop 7")
    A(f"v_max3_f32 v6, {v(VS[0])}, {v(VS[0]+1)}, {v(VS[0]+2)}")
    for r in range(3, 15, 2):
        A(f"v_max3_f32 v6, v6, {v(VS[0]+r)}, {v(VS[0]+r+1)}")
    A(f"v_max_f32 v6, v6, {v(VS[0]+15)}")
    def negm_fill():
        A("v_mov_b32 v4, v6")
        A("s_nop 1")
        A("v_permlane32_swap_b32 v4, v6")
        A("s_nop 1")
        A("v_max_f32 v6, v4, v6")
        A("v_sub_f32 v6, 0, v6")
        for r in range(16): A(f"v_mov_b32 {v(VNEG+r)}, v6")
    negm_fill()
    A(f"v_mov_b32 {v(VS[1]+14)}, 0")
    A(f"v_mov_b32 {v(VS[1]+15)}, 0")
    A(f"v_mfma_f32_32x32x16_bf16 {v(VS[0],16)}, {v(VK,4)}, {v(VQ,4)}, {v(VNEG,16)}")
    A.label(f"{name}_aw0")
    A("ds_read_b32 v116, v117 offset:128")
    A("s_waitcnt lgkmcnt(0)")
    A("v_cmp_eq_u32 vcc, 0, v116")
    A("s_nop 1")
    A("s_cmp_eq_u64 vcc, 0")
    A(f"s_cbranch_scc0 {name}_aw0")
    A("v_mov_b32 v115, 2")
    A(f"ds_read_b128 {v(VK,4)}, v108 offset:2048")
    A("s_mov_b64 exec, s[24:25]")
    A(f"ds_read_b128 {v(VV0,4)}, v109")
    A("s_mov_b64 exec, -1")
    A("s_mov_b32 s30, 0")
    A("s_mov_b32 s31, 1")
    A(f"s_mov_b32 s33, {4*8192}")
    A("s_mov_b32 s34, 16")
    A("s_xor_b32 s35, s3, 4")
    A("v_mov_b32 v110, v108")
    A("v_mov_b32 v111, v109")
    A("s_waitcnt lgkmcnt(0)")
    A.raw(".p2align 6")
    A.label(f"{name}_aloop")
    for tt in range(4):
        X = tt % 2; Y = 1 - X
        S = VS[X]; P = VP[X]; PP = VP[Y]; SY = VS[Y]
        e = lambda i: A(f"v_exp_f32 {v(S+i)}, {v(S+i)}")
        c = lambda i: A(f"v_cvt_pk_bf16_f32 {v(P+i)}, {v(S+2*i)}, {v(S+2*i+1)}")
        e(0)
        A(f"v_cvt_pk_bf16_f32 {v(PP+7)}, {v(SY+14)}, {v(SY+15)}")
        e(1)
        A(f"s_waitcnt lgkmcnt({0 if tt == 2 else 2})")
        A(f"v_mfma_f32_32x32x16_bf16 {v(SY,16)}, {v(VK,4)}, {v(VQ,4)}, {v(VNEG,16)}")
        if tt < 2:
            A(f"ds_read_b128 {v(VK,4)}, v110 offset:{(tt+2)*2048}")
        elif tt == 2:
            if asmlib.TIMELINE:
                A("s_mov_b32 m0, s34")
                A("s_nop 0")
                A("v_writelane_b32 v166, s94, m0")
                A("v_writelane_b32 v167, s96, m0")
            A("v_cmp_gt_u32 vcc, s31, v116")
            A("s_add_u32 s30, s30, 8192")
            A(f"s_cmp_eq_u32 s30, {NCH*8192}")
            A("s_cselect_b32 s30, 0, s30")
            A("v_add_u32 v112, s30, v108")
            A("v_add_u32 v113, s30, v109")
            A("s_cmp_eq_u64 vcc, 0")
            A(f"s_cbranch_scc0 {name}_aspin")
            A.label(f"{name}_aspin_ret")
            A(f"ds_read_b128 {v(VK,4)}, v112")
            A("s_add_u32 s31, s31, 1")
            A("v_readlane_b32 s29, v116, s35")
            A("s_cmp_lt_u32 s29, s31")
            A(f"s_cbranch_scc1 {name}_alow")
            A("s_setprio 1")
            A(f"s_branch {name}_aprio")
            A.label(f"{name}_alow")
            A("s_setprio 0")
            A.label(f"{name}_aprio")
            A("s_cmp_gt_u32 s34, 4")
            A(f"s_cbranch_scc0 {name}_anodma")
            dma("s33")
            A("s_add_u32 s33, s33, 8192")
            A(f"s_cmp_eq_u32 s33, {NCH*8192}")
            A("s_cselect_b32 s33, 0, s33")
            A.label(f"{name}_anodma")
        else:
            A(f"ds_read_b128 {v(VK,4)}, v112 offset:2048")
        e(2); c(0); e(3); e(4); c(1)
        A("s_waitcnt lgkmcnt(2)")
        if not os.environ.get("E2"): A(f"v_mfma_f32_32x32x16_bf16 {v(VO,16)}, {v(VV1,4)}, {v(PP+4,4)}, {v(VO,16)}")
        A("s_mov_b64 exec, s[24:25]" if not os.environ.get("E1") else "s_mov_b64 exec, 1")
        A(f"ds_read_b128 {v(VV1,4)}, v111 offset:{tt*2048+512}")
        if tt == 0:
            A("s_cmp_gt_u32 s34, 3")
            A("s_cbranch_scc1 " + f"{name}_aw1")
            A("s_waitcnt vmcnt(0)")
            A.label(f"{name}_aw1")
            A("s_waitcnt vmcnt(1)")
            A("s_mov_b64 exec, 1")
            A("ds_write_b32 v114, v115")
        A("s_mov_b64 exec, -1")
        e(5); e(6); c(2); e(7); e(8); c(3); e(9); e(10)
        A(f"s_waitcnt lgkmcnt({3 if tt == 0 else 2})")
        A(f"v_mfma_f32_32x32x16_bf16 {v(VO,16)}, {v(VV0,4)}, {v(P,4)}, {v(VO,16)}")
        A("s_mov_b64 exec, s[24:25]" if not os.environ.get("E1") else "s_mov_b64 exec, 1")
        if tt < 3: A(f"ds_read_b128 {v(VV0,4)}, v111 offset:{(tt+1)*2048}")
        else: A(f"ds_read_b128 {v(VV0,4)}, v113")
        A("s_mov_b64 exec, -1")
        if tt == 1 and asmlib.TIMELINE:
            A("s_memtime s[94:95]")
            A("s_memrealtime s[96:97]")
        if tt == 1:
            A("ds_read_b32 v116, v117 offset:128")
            A("v_add_u32 v115, 1, v115")
        c(4); e(11); e(12); c(5); e(13); e(14); c(6)
        if tt == 3:
            A("v_mov_b32 v110, v112")
            A("v_mov_b32 v111, v113")
            A("s_sub_u32 s34, s34, 1")
            A("s_cmp_lg_u32 s34, 0")
        e(15)
    A(f"s_cbranch_scc1 {name}_aloop")
    A("s_waitcnt lgkmcnt(0)")
    A(f"v_cvt_pk_bf16_f32 {v(VP[1]+7)}, {v(VS[1]+14)}, {v(VS[1]+15)}")
    A("s_setprio 2")
    A("s_nop 0")
    A(f"v_mfma_f32_32x32x16_bf16 {v(VO,16)}, {v(VV1,4)}, {v(VP[1]+4,4)}, {v(VO,16)}")
    A("s_lshl_b32 s19, s17, 5")
    A("s_add_u32 s19, s19, s16")
    A("s_lshr_b32 s18, s17, 3")
    A("s_lshl_b32 s18, s18, 5")
    A("s_add_u32 s18, s18, s16")
    A("s_lshl_b32 s18, s18, 7")
    A(f"s_add_u32 s18, s18, {FL_O}")
    A("s_lshl_b32 s19, s19, 10")
    A(f"s_add_u32 s19, s19, {WS_O}")
    A("s_mov_b32 s29, 0x7b800000")
    A("s_nop 1")
    A(f"v_add_f32_e64 v4, abs({v(VO)}), {v(VO+8)}")
    for r in range(1, 8):
        A(f"v_add_f32_e64 v4, abs({v(VO+r)}), v4")
    A("v_cmp_gt_f32 vcc, s29, v4")
    A("s_nop 1")
    A("s_cmp_eq_u64 vcc, -1")
    A(f"s_cbranch_scc0 {name}_aslow")
    A.label(f"{name}_astore")
    A(f"v_rcp_f32 v4, {v(VO+8)}")
    A("s_nop 0")
    for r in range(8): A(f"v_mul_f32 {v(VO+r)}, {v(VO+r)}, v4")
    for r in range(4): A(f"v_cvt_pk_bf16_f32 {v(VP[0]+r)}, {v(VO+2*r)}, {v(VO+2*r+1)}")
    A(f"buffer_store_dwordx4 {v(VP[0],4)}, v2, s[20:23], s19 offen sc1")
    tl_mark(A, 4)
    final(A, name)
    A(f"s_branch {name}_end")
    A.label(f"{name}_aspin")
    A("s_sleep 2")
    A("ds_read_b32 v116, v117 offset:128")
    A("s_waitcnt lgkmcnt(0)")
    A("v_cmp_gt_u32 vcc, s31, v116")
    A("s_nop 1")
    A("s_cmp_eq_u64 vcc, 0")
    A(f"s_cbranch_scc0 {name}_aspin")
    A(f"s_branch {name}_aspin_ret")
    A.label(f"{name}_aslow")
    A("s_waitcnt vmcnt(0) lgkmcnt(0)")
    A("v_mov_b32 v6, 0xff800000")
    A("s_mov_b32 s28, s26")
    A("s_mov_b32 s34, 64")
    A.label(f"{name}_smax")
    A(f"buffer_load_dwordx4 {v(VK,4)}, v2, s[20:23], s28 offen sc1")
    A("s_waitcnt vmcnt(0)")
    A(f"v_mfma_f32_32x32x16_bf16 {v(VS[0],16)}, {v(VK,4)}, {v(VQ,4)}, 0")
    A("s_add_u32 s28, s28, 2048")
    A("s_sub_u32 s34, s34, 1")
    A("s_nop 7")
    A("s_nop 1")
    for r in range(0, 16, 2):
        A(f"v_max3_f32 v6, v6, {v(VS[0]+r)}, {v(VS[0]+r+1)}")
    A("s_cmp_lg_u32 s34, 0")
    A(f"s_cbranch_scc1 {name}_smax")
    negm_fill()
    for r in range(16): A(f"v_mov_b32 {v(VO+r)}, 0")
    A("s_mov_b32 s28, s26")
    A("s_mov_b32 s34, 64")
    A.label(f"{name}_sloop")
    A(f"buffer_load_dwordx4 {v(VK,4)}, v2, s[20:23], s28 offen sc1")
    A("s_mov_b64 exec, s[24:25]")
    A(f"buffer_load_dwordx4 {v(VV0,4)}, v3, s[20:23], s28 offen offset:1024 sc1")
    A(f"buffer_load_dwordx4 {v(VV1,4)}, v3, s[20:23], s28 offen offset:1536 sc1")
    A("s_mov_b64 exec, -1")
    A("s_waitcnt vmcnt(0)")
    A(f"v_mfma_f32_32x32x16_bf16 {v(VS[0],16)}, {v(VK,4)}, {v(VQ,4)}, {v(VNEG,16)}")
    A("s_add_u32 s28, s28, 2048")
    A("s_sub_u32 s34, s34, 1")
    A("s_nop 7")
    A("s_nop 1")
    for r in range(16): A(f"v_exp_f32 {v(VS[0]+r)}, {v(VS[0]+r)}")
    A("s_nop 0")
    for r in range(8): A(f"v_cvt_pk_bf16_f32 {v(VP[0]+r)}, {v(VS[0]+2*r)}, {v(VS[0]+2*r+1)}")
    A("s_nop 1")
    A(f"v_mfma_f32_32x32x16_bf16 {v(VO,16)}, {v(VV0,4)}, {v(VP[0],4)}, {v(VO,16)}")
    A(f"v_mfma_f32_32x32x16_bf16 {v(VO,16)}, {v(VV1,4)}, {v(VP[0]+4,4)}, {v(VO,16)}")
    A("s_cmp_lg_u32 s34, 0")
    A(f"s_cbranch_scc1 {name}_sloop")
    A("s_nop 7")
    A("s_nop 3")
    A(f"s_branch {name}_astore")

def final(A, name):
    WR = 8; OR = 72; AC = 136
    A("s_and_b32 s24, s2, 3")
    A("s_lshl_b32 s24, s24, 3")
    A("s_bfe_u32 s25, s2, 0x30003")
    A("s_add_u32 s24, s24, s25")
    A("s_bfe_u32 s25, s2, 0x10002")
    A("s_lshl_b32 s25, s25, 2")
    A("s_lshr_b32 s26, s2, 6")
    A("s_add_u32 s25, s25, s26")
    A("s_and_b32 s26, s3, 1")
    A("s_bfe_u32 s27, s3, 0x10001")
    A("s_lshr_b32 s28, s3, 2")
    A("v_mov_b32 v160, 0")
    A("v_mov_b32 v161, 1")
    A("v_lshrrev_b32 v3, 5, v0")
    A("v_bfe_u32 v4, v0, 2, 2")
    A("v_lshl_add_u32 v4, v3, 2, v4")
    A("v_lshlrev_b32 v4, 7, v4")
    A("v_bfe_u32 v5, v0, 4, 1")
    A("v_lshlrev_b32 v5, 1, v5")
    A("v_bfe_u32 v6, v0, 1, 1")
    A("v_add_u32 v5, v5, v6")
    A("v_bfe_u32 v6, v0, 3, 1")
    A("v_xor_b32 v6, s27, v6")
    A("v_lshl_add_u32 v5, v6, 2, v5")
    A("v_lshl_add_u32 v4, v5, 4, v4")
    A("v_and_b32 v6, 1, v0")
    A("v_lshl_add_u32 v4, v6, 3, v4")
    A("s_lshl_b32 s29, s28, 15")
    A(f"s_add_u32 s29, s29, {BOFF}")
    A("v_add_u32 v4, s29, v4")
    A("v_and_b32 v5, 31, v0")
    A("s_lshl_b32 s29, s26, 5")
    A("v_add_u32 v5, s29, v5")
    A("s_lshl_b32 s29, s27, 6")
    A("s_lshl_b32 s30, s28, 5")
    A("s_add_u32 s29, s29, s30")
    A("v_lshl_add_u32 v6, v3, 4, s29")
    A(f"v_mul_u32_u24 v7, {GSTR}, v5")
    A("v_add_u32 v7, v7, v6")
    A(f"v_add_u32 v7, {GBUF}, v7")
    A("v_lshl_add_u32 v6, v5, 10, v6")
    A("s_lshl_b32 s30, s24, 16")
    A("s_lshl_b32 s31, s25, 7")
    A("s_add_u32 s30, s30, s31")
    A("buffer_load_dwordx4 v[152:155], v6, s[8:11], s30 offen")
    A("s_waitcnt vmcnt(1)")
    publish(A, C_O, 8, 160, 161, 162, 33, "s18", f"{name}_po")
    A("s_lshl_b32 s31, s24, 1")
    A("s_add_u32 s31, s31, s26")
    A("s_lshl_b32 s31, s31, 5")
    A("s_lshl_b32 s32, s28, 4")
    A("s_add_u32 s31, s31, s32")
    A("s_lshr_b32 s32, s24, 2")
    A("s_lshl_b32 s32, s32, 1")
    A("s_add_u32 s32, s32, s28")
    A("s_lshl_b32 s32, s32, 11")
    A(f"s_add_u32 s32, s32, {FL_O}")
    A("s_lshl_b32 s31, s31, 10")
    A(f"s_add_u32 s31, s31, {WS_O}")
    A("v_and_b32 v5, 15, v0")
    A("v_lshlrev_b32 v5, 7, v5")
    srd(A, 12, 44, 2048 * 1024)
    wait_cnt(A, C_G, 4, 160, 162, 33, sleep=2)
    lg = Cnt(A, "lgkmcnt", 15)
    for j in range(16):
        for p in range(2):
            A(f"ds_read_b64_tr_b16 {v(WR+4*j+2*p,2)}, v4 offset:{j*2048 + p*1024}"); lg.issue("w")
    A("ds_read_b128 v[156:159], v7"); lg.issue("w")
    A("s_lshl_b32 s33, s28, 2")
    A("v_mov_b32 v165, s33")
    A("s_and_b32 s33, s3, 3")
    A("s_cmp_eq_u32 s33, 0")
    A(f"s_cbranch_scc0 {name}_gw2")
    poll_lanes(A, 20, 5, "s32", 162, sleep=2)
    arrive(A, C_GO2, 165, 161)
    A(f"s_branch {name}_go2")
    A.label(f"{name}_gw2")
    wait_cnt(A, C_GO2, 1, 165, 162, 33, sleep=1)
    A("s_waitcnt vmcnt(0)")
    A.label(f"{name}_go2")
    tl_mark(A, 5)
    vm = Cnt(A, "vmcnt", 63)
    for j in range(16):
        if j % 4 == 0 and j: A("s_add_u32 s31, s31, 4096")
        A(f"buffer_load_dwordx4 {v(OR+4*j,4)}, v2, s[20:23], s31 offen offset:{(j%4)*1024} sc1"); vm.issue(("o", j))
    lg.wait_all()
    A("s_lshl_b32 s33, s3, 11")
    A(f"s_add_u32 s33, s33, {XCH}")
    A("v_add_u32 v3, s33, v2")
    A("v_xor_b32 v5, 8192, v3") if (XCH % 16384 == 0) else None
    if XCH % 16384:
        A("s_xor_b32 s33, s3, 4")
        A("s_lshl_b32 s33, s33, 11")
        A(f"s_add_u32 s33, s33, {XCH}")
        A("v_add_u32 v5, s33, v2")
    A("s_lshl_b32 s33, s3, 2")
    A("v_mov_b32 v163, s33")
    A("v_xor_b32 v164, 16, v163")
    for j in range(16):
        vm.wait(("o", j))
        A(f"v_mfma_f32_32x32x16_bf16 {v(AC,16)}, {v(WR+4*j,4)}, {v(OR+4*j,4)}, {v(AC,16) if j else 0}")
    A("s_cmp_eq_u32 s28, 0")
    A(f"s_cbranch_scc0 {name}_fk1")
    A("s_nop 7")
    A("s_nop 1")
    A(f"ds_write_b128 v3, {v(AC+8,4)}")
    A(f"ds_write_b128 v3, {v(AC+12,4)} offset:1024")
    A(f"s_branch {name}_fk")
    A.label(f"{name}_fk1")
    A("s_nop 7")
    A("s_nop 1")
    A(f"ds_write_b128 v3, {v(AC,4)}")
    A(f"ds_write_b128 v3, {v(AC+4,4)} offset:1024")
    A("s_waitcnt lgkmcnt(0)")
    for r in range(8): A(f"v_mov_b32 v{AC+r}, v{AC+8+r}")
    A.label(f"{name}_fk")
    A("s_waitcnt lgkmcnt(0)")
    A("s_mov_b64 exec, 1")
    A("ds_write_b32 v163, v161 offset:160")
    A("s_mov_b64 exec, -1")
    for i in range(4):
        A(f"v_lshlrev_b32 v{8+2*i}, 16, v{156+i}")
        A(f"v_and_b32 v{9+2*i}, 0xffff0000, v{156+i}")
        A(f"v_lshlrev_b32 v{16+2*i}, 16, v{152+i}")
        A(f"v_and_b32 v{17+2*i}, 0xffff0000, v{152+i}")
    wait_cnt(A, 160, 1, 164, 162, 33, sleep=0)
    A("ds_read_b128 v[24:27], v5")
    A("ds_read_b128 v[28:31], v5 offset:1024")
    A("s_waitcnt lgkmcnt(0)")
    for r in range(8): A(f"v_add_f32 v{AC+r}, v{AC+r}, v{24+r}")
    for i in range(4): A(f"v_cvt_pk_bf16_f32 v{24+i}, v{AC+2*i}, v{AC+2*i+1}")
    A("s_nop 1")
    A("v_permlane32_swap_b32 v24, v26")
    A("v_permlane32_swap_b32 v25, v27")
    A("s_nop 1")
    for i in range(4):
        A(f"v_lshlrev_b32 v{32+2*i}, 16, v{24+i}")
        A(f"v_and_b32 v{33+2*i}, 0xffff0000, v{24+i}")
    for i in range(8): A(f"v_mul_f32 v{32+i}, v{32+i}, v{8+i}")
    for i in range(4): A(f"v_cvt_pk_bf16_f32 v{24+i}, v{32+2*i}, v{33+2*i}")
    for i in range(4):
        A(f"v_lshlrev_b32 v{32+2*i}, 16, v{24+i}")
        A(f"v_and_b32 v{33+2*i}, 0xffff0000, v{24+i}")
    for i in range(8): A(f"v_add_f32 v{32+i}, v{32+i}, v{16+i}")
    for i in range(4): A(f"v_cvt_pk_bf16_f32 v{24+i}, v{32+2*i}, v{33+2*i}")
    A("buffer_store_dwordx4 v[24:27], v6, s[12:15], s30 offen")
    if os.environ.get("DBGSPAN"):
        A("s_waitcnt vmcnt(0)")
        A("s_memrealtime s[98:99]")
        A("s_waitcnt lgkmcnt(0)")
        A("s_sub_u32 s98, s98, s68")
        A("v_mov_b32 v1, s98")
        A("s_lshl_b32 s97, s3, 8")
        A("s_add_u32 s97, s97, s2")
        A("s_lshl_b32 s97, s97, 2")
        A("s_mov_b64 exec, 1")
        A("buffer_store_dword v1, v160, s[52:55], s97 offen offset:16")
        A("s_mov_b64 exec, -1")
    tl_end(A, 0, 20)
    tl_marks_out(A, 1, 6, 20)
    if asmlib.TIMELINE:
        A("s_lshl_b32 s58, s2, 3")
        A("s_add_u32 s58, s58, s3")
        A("s_lshl_b32 s58, s58, 9")
        A(f"s_add_u32 s58, s58, {100<<20}")
        A("v_lshlrev_b32 v1, 3, v0")
        A("buffer_store_dwordx2 v[166:167], v1, s[20:23], s58 offen")

class BBar:
    def __init__(self, name): self.n = 0; self.name = name; self.lg = None; self.boost = False
    def __call__(self, A):
        self.n += 1
        if self.boost: A("s_setprio 2")
        A("s_mov_b64 exec, 2")
        A("ds_add_u32 v7, v7 offset:64")
        A("s_mov_b64 exec, 1")
        A.label(f"{self.name}_bb{self.n}")
        A("ds_read_b32 v1, v7 offset:80")
        A("s_waitcnt lgkmcnt(0)")
        A("v_readfirstlane_b32 s56, v1")
        A(f"s_cmp_ge_u32 s56, {64*self.n}")
        A(f"s_cbranch_scc0 {self.name}_bb{self.n}")
        A("s_mov_b64 exec, -1")
        if self.boost: A("s_setprio 0")
        if self.lg is not None: self.lg.seq = []

def lb_role(A, name):
    A("s_sub_u32 s3, s3, 8")
    A("v_lshlrev_b32 v7, 2, v0")
    A("v_mov_b32 v1, 0")
    A("ds_write_b32 v7, v1")
    A("v_lshlrev_b32 v7, 4, v0")
    rc_qkv(A)
    A("v_lshrrev_b32 v4, 3, v0")
    A("v_and_b32 v5, 7, v0")
    A("v_lshrrev_b32 v6, 4, v0")
    A("v_xor_b32 v5, v5, v6")
    A("v_xor_b32 v8, 4, v5")
    A("s_lshl_b32 s28, s3, 15")
    A("v_lshlrev_b32 v4, 10, v4")
    A("v_add_u32 v4, s28, v4")
    A("v_lshl_add_u32 v60, v5, 4, v4")
    A("v_lshl_add_u32 v61, v8, 4, v4")
    A("v_add_u32 v61, 8192, v61")
    A("v_add_u32 v62, 16384, v60")
    A("v_add_u32 v63, 16384, v61")
    A("v_lshrrev_b32 v4, 2, v0")
    A("s_lshl_b32 s28, s3, 4")
    A("v_add_u32 v4, s28, v4")
    A("v_mul_u32_u24 v4, 3072, v4")
    A("v_and_b32 v5, 3, v0")
    A("v_lshl_add_u32 v64, v5, 4, v4")
    A("s_lshl_b32 s28, s25, 6")
    A("v_add_u32 v64, s28, v64")
    A("v_add_u32 v65, 1024, v64")
    A("v_add_u32 v66, 2048, v64")
    A("s_lshl_b32 s70, s24, 1")
    A("s_add_u32 s70, s70, s25")
    A("s_and_b32 s70, s70, 7")
    A("s_lshl_b32 s71, s24, 17")
    A("s_lshl_b32 s72, s3, 12")
    A(f"s_add_u32 s72, s72, {K1B}")
    A("s_lshl_b32 s73, s3, 10")
    A(f"s_add_u32 s73, s73, {K1B + 16384}")
    A(f"s_mov_b32 s74, {2*K1_SLOT}")
    A("s_waitcnt lgkmcnt(0)")
    A("s_barrier")
    srd(A, 60, 4, 2048 * 1024)
    srd(A, 64, 6, 512 * 3072)
    srd(A, 20, 16, WS_END)
    srd(A, 52, 18, 256)
    def ldma():
        A("s_lshl_b32 s75, s70, 7")
        A("s_add_u32 s75, s75, s71")
        A(f"s_mul_i32 s76, s70, {64*3072}")
        A("s_add_u32 s70, s70, 1")
        A("s_and_b32 s70, s70, 7")
        A("s_add_u32 s77, s72, s74")
        A("s_add_u32 s78, s73, s74")
        for e in range(4):
            A(f"s_add_u32 m0, s77, {e*1024}")
            A("s_nop 0")
            A(f"buffer_load_dwordx4 v{60+e}, s[60:63], s75 offen lds")
        for T_ in range(3):
            A(f"s_add_u32 m0, s78, {T_*4096}")
            A("s_nop 0")
            A(f"buffer_load_dwordx4 v{64+T_}, s[64:67], s76 offen lds")
        A(f"s_add_u32 s74, s74, {K1_SLOT}")
        A(f"s_cmp_eq_u32 s74, {K1_SLOT*K1_NS}")
        A("s_cselect_b32 s74, 0, s74")
    A("s_mov_b32 s79, 0")
    A.label(f"{name}_lpro")
    ldma()
    A("s_add_u32 s79, s79, 1")
    A(f"s_cmp_lt_u32 s79, {K1_PRO}")
    A(f"s_cbranch_scc1 {name}_lpro")
    A("s_mov_b32 s4, s48")
    A("s_mov_b32 s5, s49")
    A("s_mov_b32 s6, s50")
    A("s_mov_b32 s7, s51")
    bar = BBar(name)
    def prologue(A, dma, vm):
        issued = K1_PRO; seq = [("k", st) for st in range(K1_PRO) for _ in range(7)]
        A("s_lshl_b32 s36, s24, 11")
        A(f"s_add_u32 s36, s36, {FL_X}")
        A("v_and_b32 v1, 15, v0")
        A("v_lshlrev_b32 v1, 7, v1")
        A("v_mov_b32 v67, 0")
        A("s_and_b32 s37, s24, 7")
        A("s_lshl_b32 s37, s37, 1")
        A("s_and_b32 s38, s3, 1")
        A("s_add_u32 s37, s37, s38")
        A("s_lshl_b32 s37, s37, 5")
        A("v_and_b32 v68, 31, v0")
        A("v_add_u32 v68, s37, v68")
        A("v_mul_u32_u24 v68, 3584, v68")
        A("v_add_u32 v68, s28, v68")
        A("v_lshrrev_b32 v69, 5, v0")
        A("v_lshl_add_u32 v69, v69, 7, v68")
        TJ = int(os.environ.get("TJ", "-1"))
        for j in range(8):
            idx = max(i for i, t in enumerate(seq) if t == ("k", j))
            A(f"s_waitcnt vmcnt({len(seq) - 1 - idx})")
            A("s_barrier")
            if issued < 8 and issued - 4 <= j:
                ldma(); seq += [("k", issued)] * 7; issued += 1
                if j == TJ:
                    A("buffer_load_dword v70, v69, s[8:11], 0 offen")
                    A("buffer_load_dword v71, v68, s[8:11], 0 offen offset:220")
                    seq += [("t", 0)] * 2
            elif j == 6:
                A("buffer_load_dwordx2 v[12:13], v67, s[52:55], 0 offen sc1")
                A("buffer_load_dwordx2 v[14:15], v1, s[20:23], s36 offen sc1")
                dma(0); seq += [("g", 0)] * 9
        assert issued == 8
        A("s_waitcnt vmcnt(7)")
        A("v_readfirstlane_b32 s68, v12")
        A("v_readfirstlane_b32 s69, v13")
        A("v_cmp_ne_u64 vcc, v[12:13], v[14:15]")
        A("s_cmp_eq_u32 s68, 0")
        A(f"s_cbranch_scc1 {name}_xslow")
        A("s_cmp_eq_u64 vcc, 0")
        A(f"s_cbranch_scc1 {name}_xok")
        A.label(f"{name}_xslow")
        wait_ready(A, 67, 12, 37)
        poll_lanes(A, 20, 1, "s36", 12, sleep=1)
        A.label(f"{name}_xok")
        if os.environ.get("BWAIT"):
            wait_cnt(A, C_QKV, 8, 67, 71, 37, sleep=2)
        tl_mark(A, 4)
    def wait_slot2(A, lg):
        A("v_mov_b32 v0, 0")
        wait_cnt(A, C_WFREE, 8, 0, 1, 37)
        lg.seq = []
    ffn.gu_body(A, name + "_gu", bar, st_flags="sc1", lds0=BOFF, x_flags=os.environ.get("XFL", "sc1"), prologue=prologue, wait_slot2=wait_slot2)
    A("s_waitcnt vmcnt(0)")
    bar(A)
    A("s_cmp_eq_u32 s3, 0")
    A(f"s_cbranch_scc0 {name}_noflag")
    A("s_lshl_b32 s34, s24, 4")
    A("s_add_u32 s34, s34, s25")
    A("s_lshl_b32 s34, s34, 7")
    A(f"s_add_u32 s34, s34, {FL_H}")
    A("v_mov_b32 v1, 0")
    A("s_mov_b64 exec, 1")
    flag_store(A, 1, 2, "s34")
    A("s_mov_b64 exec, -1")
    A.label(f"{name}_noflag")
    tl_mark(A, 1)
    A("s_mov_b32 s4, s46")
    A("s_mov_b32 s5, s47")
    A("v_lshrrev_b32 v0, 4, v7")
    ctx = ffn.sk_body(A, name + "_dn", bar, 28, WS_H, 112 * 1024, 1792 * 1024, "g", ld_flags="sc1", lds0=BOFF)
    def wait_act(A):
        A("s_lshr_b32 s34, s24, 1")
        A("s_lshl_b32 s34, s34, 11")
        A("s_lshl_b32 s35, s3, 9")
        A("s_add_u32 s34, s34, s35")
        A(f"s_add_u32 s34, s34, {FL_H}")
        A("v_and_b32 v1, 3, v0")
        A("v_lshlrev_b32 v1, 7, v1")
        poll_lanes(A, 20, 1, "s34", 16, sleep=4)
        tl_mark(A, 2)
        ctx["vm"].seq = []
    bar.lg = ctx["lg"]
    def after_red_reads(A):
        bar(A)
        srd(A, 8, 42, 512 * 1024)
        A("s_lshl_b32 s27, s3, 17")
        A("s_lshl_b32 s28, s3, 14")
        A(f"s_add_u32 s28, s28, {BOFF}")
        for j in range(8):
            A(f"s_add_u32 s31, s27, {j*16384}")
            A(f"s_add_u32 m0, s28, {j*2048}")
            A("s_nop 0")
            A("buffer_load_dwordx4 v8, s[8:11], s31 offen lds")
            A(f"s_add_u32 m0, s28, {j*2048 + 1024}")
            A("s_nop 0")
            A("buffer_load_dwordx4 v9, s[8:11], s31 offen lds")
    ffn.sk_main(A, name + "_dn", bar, 28, ctx, "glds", wait_act=wait_act, lds0=BOFF, after_red_reads=after_red_reads, gbuf=(GBUF, GSTR))
    A("s_waitcnt vmcnt(0) lgkmcnt(0)")
    A("v_mov_b32 v1, 0")
    A("v_mov_b32 v2, 1")
    arrive(A, C_G, 1, 2)
    A("s_add_u32 s3, s3, 8")
    tl_end(A, 8, 20)
    tl_marks_out(A, 9, 7 if os.environ.get('GUT') else 5, 20)

def gen(A, name=NAME):
    kernel_begin(A, name)
    A("s_cmp_ge_u32 s2, 256")
    A(f"s_cbranch_scc1 F_end")
    if os.environ.get("PERM"):
        A("s_lshr_b32 s3, s2, 5")
        A("s_and_b32 s2, s2, 31")
        A("s_lshl_b32 s2, s2, 3")
        A("s_or_b32 s2, s2, s3")
    tl_begin(A)
    A("s_load_dwordx4 s[4:7], s[0:1], 0")
    A("s_load_dwordx2 s[42:43], s[0:1], 16")
    A("s_load_dwordx4 s[48:51], s[0:1], 32")
    A("s_load_dwordx2 s[46:47], s[0:1], 48")
    A("s_load_dwordx2 s[44:45], s[0:1], 56")
    A("s_load_dwordx2 s[18:19], s[0:1], 64")
    A("s_load_dwordx2 s[16:17], s[0:1], 72")
    A("v_lshrrev_b32 v1, 6, v0")
    A("v_and_b32 v0, 63, v0")
    A("s_nop 0")
    A("v_readfirstlane_b32 s3, v1")
    A("s_cmp_lt_u32 s3, 8")
    A("s_cbranch_scc0 F_lb")
    ca_role(A, "F")
    A.label("F_lb")
    ffn.PRIO = True
    A("s_setprio 2")
    asmlib.MARK_OFF = bool(os.environ.get("GUT"))
    lb_role(A, "F")
    ffn.PRIO = False
    A.label("F_end")
    A("s_endpgm")
```

```python
from asmlib import *
import asmlib, ffn, os, struct
def f2u(x): return struct.unpack("<I", struct.pack("<f", x))[0]
LOG2E = 1.4426950408889634
QSCALE = 0.25 * LOG2E

NAME = "recurrent_scan__mha_block__glu_gated_glu__prompt_kernel"
BOFF = 256
WQ = BOFF + 2 * ffn.GU_SLOT
LNB = BOFF
ABASE = BOFF + 3 * ffn.GU_SLOT
NCH = 6
XCH = ABASE + NCH * 8192
GBUF = XCH + 16384
GSTR = 144
K1_SLOT = 28672; K1_NS = 5; K1_D = 4
K1B = WQ - 2 * K1_SLOT
K1T = K1B + K1_SLOT * K1_NS
LNB = K1T + 5120
K1_PRO = int(os.environ.get('K1_PRO', '2'))
F_LDS = 163840
assert WQ + 98304 <= F_LDS and GBUF + 64 * GSTR <= F_LDS
C_LN, C_XF, C_W, C_WFREE, C_G = 0, 4, 8, 12, 16
F_VGPR = 168
F_THREADS = 768
WS_FLAG = 30 << 20
WS_ST = 29 << 20
FL_X = WS_FLAG
FL_A = WS_FLAG + 32768
FL_H = WS_FLAG + 65536
FL_O = WS_FLAG + 98304
C_QKV, C_O, C_GO, C_GO2 = 20, 24, 28, 32

def flag_store(A, vz, vt, soff):
    A(f"v_mov_b32 v{vt}, s68")
    A(f"v_mov_b32 v{vt+1}, s69")
    A(f"buffer_store_dwordx2 {v(vt,2)}, v{vz}, s[20:23], {soff} offen sc1")

def publish(A, cnt_off, n, vz, vone, vt, st, soff, lbl):
    A("s_mov_b64 exec, 1")
    A(f"ds_add_rtn_u32 v{vt}, v{vz}, v{vone} offset:{cnt_off}")
    A("s_waitcnt lgkmcnt(0)")
    A(f"v_readfirstlane_b32 s{st}, v{vt}")
    A(f"s_cmp_eq_u32 s{st}, {n-1}")
    A(f"s_cbranch_scc0 {lbl}")
    flag_store(A, vz, vt, soff)
    A.label(lbl)
    A("s_mov_b64 exec, -1")

def wait_ready(A, vz, vt, st):
    _lbl[0] += 1
    L = f"Lr{_lbl[0]}"
    A.label(L)
    A(f"buffer_load_dwordx2 {v(vt,2)}, v{vz}, s[52:55], 0 offen sc1")
    A("s_waitcnt vmcnt(0)")
    A(f"v_readfirstlane_b32 s68, v{vt}")
    A(f"v_readfirstlane_b32 s69, v{vt+1}")
    A("s_cmp_eq_u32 s68, 0")
    A(f"s_cbranch_scc1 {L}")

_lbl = [0]
def arrive(A, off, vz, vone):
    A("s_mov_b64 exec, 1")
    A(f"ds_add_u32 v{vz}, v{vone} offset:{off}")
    A("s_mov_b64 exec, -1")
def wait_cnt(A, off, n, vz, vt, st, sleep=1):
    _lbl[0] += 1
    L = f"Lw{_lbl[0]}"
    A.label(L)
    A(f"ds_read_b32 v{vt}, v{vz} offset:{off}")
    A("s_waitcnt lgkmcnt(0)")
    A(f"v_readfirstlane_b32 s{st}, v{vt}")
    A(f"s_cmp_ge_u32 s{st}, {n}")
    A(f"s_cbranch_scc1 {L}x")
    if sleep: A(f"s_sleep {sleep}")
    A(f"s_branch {L}")
    A.label(L + "x")

def poll_lanes(A, srd_, voff, soff, vt, sleep=2):
    _lbl[0] += 1
    L = f"Lq{_lbl[0]}"
    A.label(L)
    A(f"buffer_load_dwordx2 {v(vt,2)}, v{voff}, s[{srd_}:{srd_+3}], {soff} offen sc1")
    A("s_waitcnt vmcnt(0)")
    A(f"v_cmp_ne_u64 vcc, s[68:69], {v(vt,2)}")
    A("s_nop 1")
    A("s_cmp_eq_u64 vcc, 0")
    A(f"s_cbranch_scc1 {L}x")
    A(f"s_sleep {sleep}")
    A(f"s_branch {L}")
    A.label(L + "x")

def rc_qkv(A):
    A("s_bfe_u32 s24, s2, 0x20001")
    A("s_lshl_b32 s24, s24, 2")
    A("s_lshr_b32 s25, s2, 6")
    A("s_add_u32 s24, s24, s25")
    A("s_and_b32 s25, s2, 1")
    A("s_lshl_b32 s25, s25, 3")
    A("s_bfe_u32 s26, s2, 0x30003")
    A("s_add_u32 s25, s25, s26")

VQ = 8; VNEG = 16; VS = [32, 48]; VP = [64, 72]; VO = 80; VK = 96; VV0 = 100; VV1 = 104

def ca_role(A, name):
    rc_qkv(A)
    A("v_lshlrev_b32 v2, 4, v0")
    A("v_mov_b32 v118, 0")
    A("v_mov_b32 v119, 1")
    A("s_lshl_b32 s30, s24, 7")
    A("s_lshl_b32 s28, s25, 3")
    A("s_add_u32 s30, s30, s28")
    A("s_add_u32 s31, s30, s3")
    A("s_lshl_b32 s31, s31, 10")
    A("s_waitcnt lgkmcnt(0)")
    srd(A, 8, 4, 2048 * 1024)
    srd(A, 20, 16, WS_END)
    srd(A, 52, 18, 256)
    A("buffer_load_dwordx4 v[164:167], v2, s[8:11], s31 offen")
    A("s_or_b32 s28, s2, s3")
    A("s_cmp_eq_u32 s28, 0")
    A(f"s_cbranch_scc0 {name}_nz")
    A("s_memrealtime s[68:69]")
    A("s_waitcnt lgkmcnt(0)")
    A("s_or_b32 s68, s68, 1")
    A("v_mov_b32 v24, s68")
    A("v_mov_b32 v25, s69")
    A("s_mov_b64 exec, 1")
    A("buffer_store_dwordx2 v[24:25], v118, s[52:55], 0 offen sc1")
    A("s_mov_b64 exec, -1")
    A.label(f"{name}_nz")
    A("s_barrier")
    A("s_mul_i32 s28, s3, 1040")
    A(f"s_add_u32 s28, s28, {LNB}")
    A("v_add_u32 v140, s28, v2")
    A("v_and_b32 v141, 7, v0")
    A("v_mul_u32_u24 v142, 1040, v141")
    A("v_lshrrev_b32 v143, 3, v0")
    A("s_lshl_b32 s28, s3, 3")
    A("v_add_u32 v143, s28, v143")
    A("v_lshl_add_u32 v142, v143, 4, v142")
    A(f"v_add_u32 v142, {LNB}, v142")
    A("v_lshlrev_b32 v143, 9, v143")
    A("v_lshl_add_u32 v143, v141, 4, v143")
    A("s_lshr_b32 s28, s30, 5")
    A("s_lshl_b32 s28, s28, 15")
    A("s_and_b32 s29, s30, 31")
    A("s_lshl_b32 s29, s29, 4")
    A("s_add_u32 s28, s28, s29")
    A(f"s_add_u32 s28, s28, {WS_XF}")
    k1_setup(A)
    A("s_or_b32 s29, s2, s3")
    A("s_cmp_eq_u32 s29, 0")
    A(f"s_cbranch_scc1 {name}_w0")
    A("s_waitcnt vmcnt(0)")
    A.label(f"{name}_w0")
    A("s_waitcnt vmcnt(1)")
    T = 144
    for i in range(4):
        A(f"v_lshlrev_b32 v{T+2*i}, 16, v{164+i}")
        A(f"v_and_b32 v{T+2*i+1}, 0xffff0000, v{164+i}")
    A(f"v_add_f32 v160, v{T}, v{T+1}")
    A(f"v_mul_f32 v161, v{T}, v{T}")
    A(f"v_fmac_f32 v161, v{T+1}, v{T+1}")
    for i in range(2, 8):
        A(f"v_add_f32 v160, v160, v{T+i}")
        A(f"v_fmac_f32 v161, v{T+i}, v{T+i}")
    A("s_nop 0")
    for m in ("quad_perm:[1,0,3,2]", "quad_perm:[2,3,0,1]", "row_half_mirror", "row_mirror"):
        A(f"v_add_f32_dpp v160, v160, v160 {m} row_mask:0xf bank_mask:0xf")
        A(f"v_add_f32_dpp v161, v161, v161 {m} row_mask:0xf bank_mask:0xf")
        A("s_nop 0")
    for op in ("v_permlane16_swap_b32", "v_permlane32_swap_b32"):
        A("v_mov_b32 v162, v160")
        A("v_mov_b32 v163, v161")
        A("s_nop 0")
        A(f"{op} v162, v160")
        A(f"{op} v163, v161")
        A("s_nop 0")
        A("v_add_f32 v160, v160, v162")
        A("v_add_f32 v161, v161, v163")
    A(f"v_mul_f32 v160, {hex(f2u(1/512))}, v160")
    A(f"v_mul_f32 v161, {hex(f2u(1/512))}, v161")
    A("v_fma_f32 v161, -v160, v160, v161")
    ln_scalars(A, 160, 161, 162)
    A("s_lshr_b32 s29, s31, 7")
    A(f"s_add_u32 s29, s29, {WS_ST}")
    A("s_mov_b64 exec, 1")
    A("buffer_store_dwordx2 v[160:161], v118, s[20:23], s29 offen sc1")
    A("s_mov_b64 exec, -1")
    for i in range(8): A(f"v_sub_f32 v{T+i}, v{T+i}, v160")
    for i in range(4): A(f"v_cvt_pk_bf16_f32 v{164+i}, v{T+2*i}, v{T+2*i+1}")
    for i in range(4):
        A(f"v_lshlrev_b32 v{T+2*i}, 16, v{164+i}")
        A(f"v_and_b32 v{T+2*i+1}, 0xffff0000, v{164+i}")
    for i in range(8): A(f"v_mul_f32 v{T+i}, v{T+i}, v161")
    for i in range(4): A(f"v_cvt_pk_bf16_f32 v{164+i}, v{T+2*i}, v{T+2*i+1}")
    A("ds_write_b128 v140, v[164:167]")
    A("s_waitcnt lgkmcnt(0)")
    arrive(A, C_LN, 118, 119)
    wait_cnt(A, C_LN, 8, 118, 139, 29, sleep=0)
    A("ds_read_b128 v[164:167], v142")
    A("s_waitcnt lgkmcnt(0)")
    A("buffer_store_dwordx4 v[164:167], v143, s[20:23], s28 offen sc1")
    tl_mark(A, 0)
    A("buffer_load_dwordx2 v[116:117], v118, s[52:55], 0 offen sc1")
    A("s_cmp_lt_u32 s3, 4")
    A(f"s_cbranch_scc0 {name}_kv")
    k1_compute(A, name, 0)
    A(f"s_branch {name}_attn1")
    A.label(f"{name}_kv")
    k1_compute(A, name, 1)
    A.label(f"{name}_attn1")
    A("s_lshl_b32 s28, s25, 4")
    A("s_add_u32 s28, s28, s24")
    A("s_lshl_b32 s28, s28, 7")
    A(f"s_add_u32 s28, s28, {FL_A}")
    A("v_mov_b32 v118, 0")
    A("v_mov_b32 v119, 1")
    wait_ready(A, 118, 6, 29)
    A("s_cmp_eq_u32 s57, 0")
    A(f"s_cbranch_scc1 {name}_xdone")
    A("s_mov_b64 exec, 1")
    flag_store(A, 118, 6, "s59")
    A("s_mov_b64 exec, -1")
    A.label(f"{name}_xdone")
    publish(A, C_QKV, 8, 118, 119, 6, 29, "s28", f"{name}_pa")
    A("s_setprio 0")
    tl_mark(A, 2)
    A("v_and_b32 v116, 15, v0")
    A("v_lshlrev_b32 v116, 7, v116")
    A.label(f"{name}_attn2")
    attn(A, name)


AC0, AC1 = 32, 48
XF = 64; WFK = 80; VSEL = 112; VCS = 120; VS1, VS2 = 124, 126

def xpub(A, L):
    A("s_mov_b64 exec, 1")
    A("s_waitcnt vmcnt(0)")
    A("v_readfirstlane_b32 s29, v116")
    A("s_cmp_eq_u32 s29, 0")
    A(f"s_cbranch_scc1 {L}_c")
    A("buffer_store_dwordx2 v[116:117], v118, s[20:23], s59 offen sc1")
    A("s_mov_b32 s57, 0")
    A(f"s_branch {L}_d")
    A.label(f"{L}_c")
    A("buffer_load_dwordx2 v[116:117], v118, s[52:55], 0 offen sc1")
    A.label(f"{L}_d")
    A("s_mov_b64 exec, -1")

def k1_setup(A):
    A("s_cmp_eq_u32 s3, 7")
    A("s_cselect_b32 s57, 5, 0")
    A("s_lshl_b32 s59, s24, 4")
    A("s_add_u32 s59, s59, s25")
    A("s_lshl_b32 s59, s59, 7")
    A(f"s_add_u32 s59, s59, {FL_X}")
    A("s_lshl_b32 s60, s24, 11")
    A(f"s_add_u32 s60, s60, {FL_X}")
    A("v_and_b32 v138, 15, v0")
    A("v_lshlrev_b32 v138, 7, v138")
    A("s_lshl_b32 s61, s24, 10")
    A("s_and_b32 s62, s3, 3")
    A("s_lshl_b32 s62, s62, 8")
    A("s_add_u32 s61, s61, s62")
    A(f"s_add_u32 s61, s61, {WS_ST}")
    A("v_and_b32 v23, 31, v0")
    A("v_lshlrev_b32 v23, 3, v23")
    A("s_mov_b32 s62, 0")
    A("s_and_b32 s26, s3, 3")
    A("v_and_b32 v4, 31, v0")
    A("v_lshrrev_b32 v5, 5, v0")
    A("v_bfe_u32 v6, v0, 1, 3")
    A("v_xor_b32 v6, v5, v6")
    A("s_lshl_b32 s34, s26, 12")
    A(f"s_add_u32 s34, s34, {K1B}")
    A("v_lshlrev_b32 v4, 7, v4")
    A("v_add_u32 v4, s34, v4")
    for s_ in range(4):
        A(f"v_xor_b32 v7, {2*s_}, v6")
        A(f"v_lshl_add_u32 v{11+s_}, v7, 4, v4")
    A("v_bfe_u32 v6, v0, 2, 2")
    A("v_lshl_add_u32 v6, v5, 3, v6")
    A("v_lshlrev_b32 v6, 6, v6")
    A("v_bfe_u32 v7, v0, 4, 1")
    A("v_lshl_add_u32 v6, v7, 5, v6")
    A("v_and_b32 v7, 3, v0")
    A("v_lshl_add_u32 v6, v7, 3, v6")
    A(f"v_add_u32 v15, {K1B + 16384}, v6")
    for r in range(32): A(f"v_mov_b32 v{AC0+r}, 0")
    for r in range(VCS, 128): A(f"v_mov_b32 v{r}, 0")
    A("v_and_b32 v6, 15, v0")
    A("v_bfe_u32 v7, v0, 4, 1")
    A("v_cmp_eq_u32 vcc, v6, v7")
    A("v_mov_b32 v6, 0x3f803f80")
    A("s_nop 0")
    A(f"v_cndmask_b32 v{VSEL}, 0, v6, vcc")
    for r in range(1, 4): A(f"v_mov_b32 v{VSEL+r}, v{VSEL}")
    A(f"s_mov_b32 s36, {2*K1_SLOT}")
    A("s_mov_b32 s39, 8")

def k1_compute(A, name, role):
    L = f"{name}_c{role}"
    lg = Cnt(A, "lgkmcnt", 15)
    WF = WFK
    nt = 2 if role == 0 else 1
    t0 = 0 if role == 0 else 2
    TM = 128
    A("s_setprio 3" if role == 1 else "s_setprio 2")
    def addrs():
        for i in range(5): A(f"v_add_u32 v{16+i}, s36, v{11+i}")
        A(f"s_add_u32 s36, s36, {K1_SLOT}")
        A(f"s_cmp_eq_u32 s36, {K1_SLOT*K1_NS}")
        A("s_cselect_b32 s36, 0, s36")
    def reads(s_):
        A(f"ds_read_b128 {v(XF+4*s_,4)}, v{16+s_}"); lg.issue(("x", s_))
        for T_ in range(nt):
            for p in range(2):
                A(f"ds_read_b64_tr_b16 {v(WF+8*s_+4*T_+2*p,2)}, v20 offset:{(t0+T_)*4096 + (16*s_+4*p)*64}")
                lg.issue(("w", s_, T_))
    def stats(s_, lo, hi):
        return
        for i in range(lo, hi):
            A(f"v_lshlrev_b32 v{TM+2*i}, 16, v{XF+4*s_+i}")
            A(f"v_and_b32 v{TM+2*i+1}, 0xffff0000, v{XF+4*s_+i}")
        for i in range(2 * lo, 2 * hi):
            A(f"v_add_f32 v{VS1+i%2}, v{VS1+i%2}, v{TM+i}")
            A(f"v_fmac_f32 v{VS2+i%2}, v{TM+i}, v{TM+i}")
    def step(s_):
        X = v(XF + 4 * s_, 4)
        if role == 0:
            lg.wait(("w", s_, 0))
            A(f"v_mfma_f32_32x32x16_bf16 {v(AC0,16)}, {v(WF+8*s_,4)}, {X}, {v(AC0,16)}")
            stats(s_, 0, 1)
            lg.wait(("w", s_, 1))
            A(f"v_mfma_f32_32x32x16_bf16 {v(AC1,16)}, {v(WF+8*s_+4,4)}, {X}, {v(AC1,16)}")
            stats(s_, 1, 2)
        else:
            lg.wait(("w", s_, 0))
            A(f"v_mfma_f32_32x32x16_bf16 {v(AC0,16)}, {X}, {v(WF+8*s_,4)}, {v(AC0,16)}")
            stats(s_, 2, 4)
    def colsum(half):
        cands = [(0, 0), (1, 4)] if role == 0 else [(2, 0)]
        for tbv, off in cands:
            A(f"s_cmp_eq_u32 s26, {tbv}")
            A(f"s_cbranch_scc0 {L}_nocs{half}_{tbv}")
            for s_ in (2 * half, 2 * half + 1):
                A(f"v_mfma_f32_16x16x32_bf16 {v(VCS,4)}, {v(VSEL,4)}, {v(WF+8*s_+off,4)}, {v(VCS,4)}")
            A.label(f"{L}_nocs{half}_{tbv}")
    addrs()
    A("s_barrier")
    reads(0); reads(1); reads(2); reads(3)
    top_state = list(lg.seq)
    A.label(f"{L}_loop")
    step(0); step(1)
    colsum(0)
    A("s_sub_u32 s39, s39, 1")
    A("s_cmp_eq_u32 s39, 0")
    A(f"s_cbranch_scc1 {L}_last")
    addrs()
    A("s_cmp_eq_u32 s39, 6")
    A(f"s_cbranch_scc0 {L}_noxf")
    A("s_waitcnt vmcnt(0)")
    A.label(f"{L}_noxf")
    A("s_cmp_eq_u32 s39, 2")
    A(f"s_cbranch_scc0 {L}_ns1")
    A("buffer_load_dwordx2 v[128:129], v118, s[52:55], 0 offen sc1")
    A("buffer_load_dwordx2 v[130:131], v138, s[20:23], s60 offen sc1")
    A.label(f"{L}_ns1")
    A("s_cmp_eq_u32 s39, 1")
    A(f"s_cbranch_scc0 {L}_ns2")
    A("s_waitcnt vmcnt(0)")
    A("v_readfirstlane_b32 s29, v128")
    A("v_cmp_ne_u64 vcc, v[128:129], v[130:131]")
    A("s_cmp_eq_u32 s29, 0")
    A(f"s_cbranch_scc1 {L}_ns2")
    A("s_cmp_eq_u64 vcc, 0")
    A(f"s_cbranch_scc0 {L}_ns2")
    A(f"buffer_load_dwordx2 {v(VS1,2)}, v23, s[20:23], s61 offen sc1")
    A("s_mov_b32 s62, 1")
    A.label(f"{L}_ns2")
    if role == 1:
        A("s_cmp_gt_u32 s39, s57")
        A(f"s_cbranch_scc1 {L}_nopub")
        xpub(A, f"{L}_xp")
        A.label(f"{L}_nopub")
    lg.wait_all()
    A("s_barrier")
    reads(0); reads(1)
    step(2); step(3)
    colsum(1)
    reads(2); reads(3)
    assert lg.seq == top_state, (lg.seq, top_state)
    A(f"s_branch {L}_loop")
    A.label(f"{L}_last")
    lg.wait_all()
    L = L + "x"
    step(2); step(3)
    colsum(1)
    tl_mark(A, 1)
    TB = K1T
    A("v_lshlrev_b32 v4, 2, v0")
    A("v_cmp_gt_u32 vcc, 16, v0")
    if role == 0:
        A("s_lshl_b32 s34, s26, 7")
        A("s_cmp_lt_u32 s26, 2")
    else:
        A("s_mov_b32 s34, 256")
        A("s_cmp_eq_u32 s26, 2")
    A("s_cselect_b32 s34, s34, 512")
    A("v_mov_b32 v5, 512")
    A("v_mov_b32 v6, s34")
    A("v_cndmask_b32 v5, v5, v6, vcc")
    A("v_add_u32 v5, v5, v4")
    A(f"v_add_u32 v5, {TB}, v5")
    A("s_nop 1")
    A(f"ds_write_b32 v5, v{VCS}")
    A(f"ds_write_b32 v5, v{VCS+1} offset:64")
    A("v_and_b32 v6, 31, v0")
    A("s_lshl_b32 s34, s26, 8")
    A(f"s_add_u32 s34, s34, {TB + 1024}")
    A("v_lshl_add_u32 v7, v6, 3, s34")
    A("v_lshlrev_b32 v6, 2, v6")
    A("v_lshrrev_b32 v8, 5, v0")
    A("v_lshlrev_b32 v8, 4, v8")
    A("s_lshl_b32 s37, s25, 7")
    A("s_lshl_b32 s35, s24, 2")
    A("s_add_u32 s37, s37, s35")
    A("s_add_u32 s37, s37, s26")
    A("s_waitcnt lgkmcnt(0)")
    arrive(A, C_WFREE, 118, 119)
    wait_cnt(A, C_WFREE, 8, 118, 9, 29, sleep=0)
    lg.seq = []
    if role == 0:
        A(f"v_add_u32 v8, {TB}, v8")
        for T_ in range(2):
            for g in range(4):
                A(f"ds_read_b128 {v(WF+16*T_+4*g,4)}, v8 offset:{T_*128 + g*32}"); lg.issue(("c", T_))
    else:
        A(f"v_add_u32 v9, {TB}, v6")
        A("ds_read_b32 v4, v9 offset:256"); lg.issue("c")
    A("s_cmp_eq_u32 s62, 1")
    A(f"s_cbranch_scc1 {L}_sok")
    if role == 1:
        A("s_cmp_eq_u32 s57, 0")
        A(f"s_cbranch_scc1 {L}_np")
        wait_ready(A, 118, 128, 29)
        A("s_mov_b64 exec, 1")
        flag_store(A, 118, 128, "s59")
        A("s_mov_b64 exec, -1")
        A("s_mov_b32 s57, 0")
        A.label(f"{L}_np")
    wait_ready(A, 118, 128, 29)
    poll_lanes(A, 20, 138, "s60", 128, sleep=1)
    A(f"buffer_load_dwordx2 {v(VS1,2)}, v23, s[20:23], s61 offen sc1")
    A.label(f"{L}_sok")
    A("s_waitcnt vmcnt(0)")
    M, RS = VS1, VS1 + 1
    if role == 0:
        A("s_lshl_b32 s35, s37, 11")
        A(f"s_add_u32 s36, s35, {WS_KV + 131072}")
        A(f"s_add_u32 s35, s35, {WS_KV}")
        A(f"v_mul_f32 v6, {hex(f2u(QSCALE))}, v{RS}")
        lg.wait(("c", 1))
        for r in range(16):
            A(f"v_fma_f32 v{AC1+r}, -v{M}, v{WF+16+r}, v{AC1+r}")
            A(f"v_mul_f32 v{AC1+r}, v{AC1+r}, v{RS}")
        for i in range(8): A(f"v_cvt_pk_bf16_f32 v{XF+8+i}, v{AC1+2*i}, v{AC1+2*i+1}")
        A(f"buffer_store_dwordx4 {v(XF+8,4)}, v2, s[20:23], s35 offen sc1")
        A(f"buffer_store_dwordx4 {v(XF+12,4)}, v2, s[20:23], s36 offen sc1")
        A("s_lshl_b32 s35, s37, 10")
        A(f"s_add_u32 s36, s35, {WS_Q + 65536}")
        for r in range(16):
            A(f"v_fma_f32 v{AC0+r}, -v{M}, v{WF+r}, v{AC0+r}")
            A(f"v_mul_f32 v{AC0+r}, v{AC0+r}, v6")
        for i in range(8): A(f"v_cvt_pk_bf16_f32 v{XF+i}, v{AC0+2*i}, v{AC0+2*i+1}")
        A(f"buffer_store_dwordx4 {v(XF,4)}, v2, s[20:23], s35 offen sc1")
        A(f"buffer_store_dwordx4 {v(XF+4,4)}, v2, s[20:23], s36 offen sc1")
    else:
        A("s_lshl_b32 s34, s3, 8")
        A(f"s_add_u32 s34, s34, {TB + 3072}")
        A("v_add_u32 v6, s34, v6")
        A("v_add_u32 v8, s34, v8")
        A(f"ds_write_b32 v6, v{M}"); lg.issue("w")
        A(f"ds_write_b32 v6, v{RS} offset:128"); lg.issue("w")
        for g in range(4):
            A(f"ds_read_b128 {v(WF+4*g,4)}, v8 offset:{g*32}"); lg.issue("m2")
        for g in range(4):
            A(f"ds_read_b128 {v(WF+16+4*g,4)}, v8 offset:{128 + g*32}"); lg.issue("rs")
        A("v_bfe_u32 v7, v0, 4, 1")
        A("v_lshlrev_b32 v7, 17, v7")
        A("v_lshrrev_b32 v5, 5, v0")
        A("v_lshl_add_u32 v7, v5, 8, v7")
        A("v_and_b32 v5, 15, v0")
        A("v_lshl_add_u32 v7, v5, 4, v7")
        A("s_lshl_b32 s35, s37, 11")
        A(f"s_add_u32 s35, s35, {WS_KV}")
        lg.wait("rs")
        for r in range(16):
            A(f"v_fma_f32 v{AC0+r}, -v{WF+r}, v4, v{AC0+r}")
            A(f"v_mul_f32 v{AC0+r}, v{AC0+r}, v{WF+16+r}")
        for i in range(8): A(f"v_cvt_pk_bf16_f32 v{XF+i}, v{AC0+2*i}, v{AC0+2*i+1}")
        A(f"buffer_store_dwordx4 {v(XF,4)}, v7, s[20:23], s35 offen offset:1024 sc1")
        A(f"buffer_store_dwordx4 {v(XF+4,4)}, v7, s[20:23], s35 offen offset:1536 sc1")

def attn(A, name):
    A("s_and_b32 s16, s2, 7")
    A("s_lshr_b32 s17, s2, 3")
    A("s_and_b32 s18, s17, 3")
    A("s_lshl_b32 s16, s16, 2")
    A("s_add_u32 s16, s16, s18")
    A("s_lshr_b32 s17, s17, 2")
    A("s_lshl_b32 s17, s17, 3")
    A("s_add_u32 s17, s17, s3")
    A("s_lshl_b32 s19, s16, 6")
    A("s_add_u32 s19, s19, s17")
    A("s_lshl_b32 s19, s19, 10")
    A("s_lshl_b32 s26, s16, 17")
    A(f"s_add_u32 s26, s26, {WS_KV}")
    A("s_lshl_b32 s27, s3, 10")
    A("s_add_u32 s28, s26, s27")
    A(f"s_add_u32 s27, s27, {ABASE}")
    A("v_lshrrev_b32 v3, 5, v0")
    A("v_lshlrev_b32 v3, 8, v3")
    A("v_and_b32 v4, 15, v0")
    A("v_lshlrev_b32 v4, 4, v4")
    A("v_add_u32 v3, v3, v4")
    A(f"v_add_u32 v108, {ABASE}, v2")
    A(f"v_add_u32 v109, {ABASE + 1024}, v3")
    A("s_lshl_b32 s29, s3, 2")
    A("s_add_u32 s29, s29, 128")
    A("v_mov_b32 v114, s29")
    A("v_mov_b32 v115, 1")
    A("v_and_b32 v117, 7, v0")
    A("v_lshlrev_b32 v117, 2, v117")
    A("s_mov_b32 s24, 0x0000ffff")
    A("s_mov_b32 s25, 0x0000ffff")
    A("v_and_b32 v4, 27, v0")
    A("v_cmp_eq_u32 vcc, 16, v4")
    A("v_mov_b32 v5, 0x3f803f80")
    A("s_nop 0")
    A("v_cndmask_b32 v5, 0, v5, vcc")
    for r in range(8): A(f"v_mov_b32 {v(VV0+r)}, v5")
    for r in range(16): A(f"v_mov_b32 {v(VO+r)}, 0")
    for r in range(4, 8): A(f"v_mov_b32 {v(VP[1]+r)}, 0")
    A("s_lshr_b32 s29, s16, 1")
    A("s_lshl_b32 s29, s29, 11")
    A(f"s_add_u32 s29, s29, {FL_A}")
    A("s_cmp_eq_u32 s3, 0")
    A(f"s_cbranch_scc0 {name}_gw")
    poll_lanes(A, 20, 116, "s29", 6, sleep=int(os.environ.get("PSL", "3")))
    arrive(A, C_GO, 118, 119)
    A(f"s_branch {name}_go")
    A.label(f"{name}_gw")
    wait_cnt(A, C_GO, 1, 118, 6, 30, sleep=2)
    A.label(f"{name}_go")
    tl_mark(A, 3)
    A(f"buffer_load_dwordx4 {v(VQ,4)}, v2, s[20:23], s19 offen sc1")
    A(f"buffer_load_dwordx4 {v(VK,4)}, v2, s[20:23], s26 offen sc1")
    def dma(off):
        A(f"s_add_u32 m0, s27, {off}")
        A("s_nop 0")
        A("buffer_load_dwordx4 v2, s[20:23], s28 offen sc1 lds")
        A("s_add_u32 s28, s28, 8192")
    for c in range(4): dma(c * 8192)
    A("s_waitcnt vmcnt(4)")
    A(f"v_mfma_f32_32x32x16_bf16 {v(VS[0],16)}, {v(VK,4)}, {v(VQ,4)}, 0")
    A("s_waitcnt vmcnt(2)")
    A("s_mov_b64 exec, 1")
    A("ds_write_b32 v114, v115")
    A("s_mov_b64 exec, -1")
    A("s_nop 7")
    A(f"v_max3_f32 v6, {v(VS[0])}, {v(VS[0]+1)}, {v(VS[0]+2)}")
    for r in range(3, 15, 2):
        A(f"v_max3_f32 v6, v6, {v(VS[0]+r)}, {v(VS[0]+r+1)}")
    A(f"v_max_f32 v6, v6, {v(VS[0]+15)}")
    def negm_fill():
        A("v_mov_b32 v4, v6")
        A("s_nop 1")
        A("v_permlane32_swap_b32 v4, v6")
        A("s_nop 1")
        A("v_max_f32 v6, v4, v6")
        A("v_sub_f32 v6, 0, v6")
        for r in range(16): A(f"v_mov_b32 {v(VNEG+r)}, v6")
    negm_fill()
    A(f"v_mov_b32 {v(VS[1]+14)}, 0")
    A(f"v_mov_b32 {v(VS[1]+15)}, 0")
    A(f"v_mfma_f32_32x32x16_bf16 {v(VS[0],16)}, {v(VK,4)}, {v(VQ,4)}, {v(VNEG,16)}")
    A.label(f"{name}_aw0")
    A("ds_read_b32 v116, v117 offset:128")
    A("s_waitcnt lgkmcnt(0)")
    A("v_cmp_eq_u32 vcc, 0, v116")
    A("s_nop 1")
    A("s_cmp_eq_u64 vcc, 0")
    A(f"s_cbranch_scc0 {name}_aw0")
    A("v_mov_b32 v115, 2")
    A(f"ds_read_b128 {v(VK,4)}, v108 offset:2048")
    A("s_mov_b64 exec, s[24:25]")
    A(f"ds_read_b128 {v(VV0,4)}, v109")
    A("s_mov_b64 exec, -1")
    A("s_mov_b32 s30, 0")
    A("s_mov_b32 s31, 1")
    A(f"s_mov_b32 s33, {4*8192}")
    A("s_mov_b32 s34, 16")
    A("s_xor_b32 s35, s3, 4")
    A("v_mov_b32 v110, v108")
    A("v_mov_b32 v111, v109")
    A("s_waitcnt lgkmcnt(0)")
    A.raw(".p2align 6")
    A.label(f"{name}_aloop")
    for tt in range(4):
        X = tt % 2; Y = 1 - X
        S = VS[X]; P = VP[X]; PP = VP[Y]; SY = VS[Y]
        e = lambda i: A(f"v_exp_f32 {v(S+i)}, {v(S+i)}")
        c = lambda i: A(f"v_cvt_pk_bf16_f32 {v(P+i)}, {v(S+2*i)}, {v(S+2*i+1)}")
        e(0)
        A(f"v_cvt_pk_bf16_f32 {v(PP+7)}, {v(SY+14)}, {v(SY+15)}")
        e(1)
        A(f"s_waitcnt lgkmcnt({0 if tt == 2 else 2})")
        A(f"v_mfma_f32_32x32x16_bf16 {v(SY,16)}, {v(VK,4)}, {v(VQ,4)}, {v(VNEG,16)}")
        if tt < 2:
            A(f"ds_read_b128 {v(VK,4)}, v110 offset:{(tt+2)*2048}")
        elif tt == 2:
            if asmlib.TIMELINE:
                A("s_mov_b32 m0, s34")
                A("s_nop 0")
                A("v_writelane_b32 v166, s94, m0")
                A("v_writelane_b32 v167, s96, m0")
            A("v_cmp_gt_u32 vcc, s31, v116")
            A("s_add_u32 s30, s30, 8192")
            A(f"s_cmp_eq_u32 s30, {NCH*8192}")
            A("s_cselect_b32 s30, 0, s30")
            A("v_add_u32 v112, s30, v108")
            A("v_add_u32 v113, s30, v109")
            A("s_cmp_eq_u64 vcc, 0")
            A(f"s_cbranch_scc0 {name}_aspin")
            A.label(f"{name}_aspin_ret")
            A(f"ds_read_b128 {v(VK,4)}, v112")
            A("s_add_u32 s31, s31, 1")
            A("v_readlane_b32 s29, v116, s35")
            A("s_cmp_lt_u32 s29, s31")
            A(f"s_cbranch_scc1 {name}_alow")
            A("s_setprio 1")
            A(f"s_branch {name}_aprio")
            A.label(f"{name}_alow")
            A("s_setprio 0")
            A.label(f"{name}_aprio")
            A("s_cmp_gt_u32 s34, 4")
            A(f"s_cbranch_scc0 {name}_anodma")
            dma("s33")
            A("s_add_u32 s33, s33, 8192")
            A(f"s_cmp_eq_u32 s33, {NCH*8192}")
            A("s_cselect_b32 s33, 0, s33")
            A.label(f"{name}_anodma")
        else:
            A(f"ds_read_b128 {v(VK,4)}, v112 offset:2048")
        e(2); c(0); e(3); e(4); c(1)
        A("s_waitcnt lgkmcnt(2)")
        if not os.environ.get("E2"): A(f"v_mfma_f32_32x32x16_bf16 {v(VO,16)}, {v(VV1,4)}, {v(PP+4,4)}, {v(VO,16)}")
        A("s_mov_b64 exec, s[24:25]" if not os.environ.get("E1") else "s_mov_b64 exec, 1")
        A(f"ds_read_b128 {v(VV1,4)}, v111 offset:{tt*2048+512}")
        if tt == 0:
            A("s_cmp_gt_u32 s34, 3")
            A("s_cbranch_scc1 " + f"{name}_aw1")
            A("s_waitcnt vmcnt(0)")
            A.label(f"{name}_aw1")
            A("s_waitcnt vmcnt(1)")
            A("s_mov_b64 exec, 1")
            A("ds_write_b32 v114, v115")
        A("s_mov_b64 exec, -1")
        e(5); e(6); c(2); e(7); e(8); c(3); e(9); e(10)
        A(f"s_waitcnt lgkmcnt({3 if tt == 0 else 2})")
        A(f"v_mfma_f32_32x32x16_bf16 {v(VO,16)}, {v(VV0,4)}, {v(P,4)}, {v(VO,16)}")
        A("s_mov_b64 exec, s[24:25]" if not os.environ.get("E1") else "s_mov_b64 exec, 1")
        if tt < 3: A(f"ds_read_b128 {v(VV0,4)}, v111 offset:{(tt+1)*2048}")
        else: A(f"ds_read_b128 {v(VV0,4)}, v113")
        A("s_mov_b64 exec, -1")
        if tt == 1 and asmlib.TIMELINE:
            A("s_memtime s[94:95]")
            A("s_memrealtime s[96:97]")
        if tt == 1:
            A("ds_read_b32 v116, v117 offset:128")
            A("v_add_u32 v115, 1, v115")
        c(4); e(11); e(12); c(5); e(13); e(14); c(6)
        if tt == 3:
            A("v_mov_b32 v110, v112")
            A("v_mov_b32 v111, v113")
            A("s_sub_u32 s34, s34, 1")
            A("s_cmp_lg_u32 s34, 0")
        e(15)
    A(f"s_cbranch_scc1 {name}_aloop")
    A("s_waitcnt lgkmcnt(0)")
    A(f"v_cvt_pk_bf16_f32 {v(VP[1]+7)}, {v(VS[1]+14)}, {v(VS[1]+15)}")
    A("s_setprio 2")
    A("s_nop 0")
    A(f"v_mfma_f32_32x32x16_bf16 {v(VO,16)}, {v(VV1,4)}, {v(VP[1]+4,4)}, {v(VO,16)}")
    A("s_lshl_b32 s19, s17, 5")
    A("s_add_u32 s19, s19, s16")
    A("s_lshr_b32 s18, s17, 3")
    A("s_lshl_b32 s18, s18, 5")
    A("s_add_u32 s18, s18, s16")
    A("s_lshl_b32 s18, s18, 7")
    A(f"s_add_u32 s18, s18, {FL_O}")
    A("s_lshl_b32 s19, s19, 10")
    A(f"s_add_u32 s19, s19, {WS_O}")
    A("s_mov_b32 s29, 0x7b800000")
    A("s_nop 1")
    A(f"v_add_f32_e64 v4, abs({v(VO)}), {v(VO+8)}")
    for r in range(1, 8):
        A(f"v_add_f32_e64 v4, abs({v(VO+r)}), v4")
    A("v_cmp_gt_f32 vcc, s29, v4")
    A("s_nop 1")
    A("s_cmp_eq_u64 vcc, -1")
    A(f"s_cbranch_scc0 {name}_aslow")
    A.label(f"{name}_astore")
    A(f"v_rcp_f32 v4, {v(VO+8)}")
    A("s_nop 0")
    for r in range(8): A(f"v_mul_f32 {v(VO+r)}, {v(VO+r)}, v4")
    for r in range(4): A(f"v_cvt_pk_bf16_f32 {v(VP[0]+r)}, {v(VO+2*r)}, {v(VO+2*r+1)}")
    A(f"buffer_store_dwordx4 {v(VP[0],4)}, v2, s[20:23], s19 offen sc1")
    tl_mark(A, 4)
    final(A, name)
    A(f"s_branch {name}_end")
    A.label(f"{name}_aspin")
    A("s_sleep 2")
    A("ds_read_b32 v116, v117 offset:128")
    A("s_waitcnt lgkmcnt(0)")
    A("v_cmp_gt_u32 vcc, s31, v116")
    A("s_nop 1")
    A("s_cmp_eq_u64 vcc, 0")
    A(f"s_cbranch_scc0 {name}_aspin")
    A(f"s_branch {name}_aspin_ret")
    A.label(f"{name}_aslow")
    A("s_waitcnt vmcnt(0) lgkmcnt(0)")
    A("v_mov_b32 v6, 0xff800000")
    A("s_mov_b32 s28, s26")
    A("s_mov_b32 s34, 64")
    A.label(f"{name}_smax")
    A(f"buffer_load_dwordx4 {v(VK,4)}, v2, s[20:23], s28 offen sc1")
    A("s_waitcnt vmcnt(0)")
    A(f"v_mfma_f32_32x32x16_bf16 {v(VS[0],16)}, {v(VK,4)}, {v(VQ,4)}, 0")
    A("s_add_u32 s28, s28, 2048")
    A("s_sub_u32 s34, s34, 1")
    A("s_nop 7")
    A("s_nop 1")
    for r in range(0, 16, 2):
        A(f"v_max3_f32 v6, v6, {v(VS[0]+r)}, {v(VS[0]+r+1)}")
    A("s_cmp_lg_u32 s34, 0")
    A(f"s_cbranch_scc1 {name}_smax")
    negm_fill()
    for r in range(16): A(f"v_mov_b32 {v(VO+r)}, 0")
    A("s_mov_b32 s28, s26")
    A("s_mov_b32 s34, 64")
    A.label(f"{name}_sloop")
    A(f"buffer_load_dwordx4 {v(VK,4)}, v2, s[20:23], s28 offen sc1")
    A("s_mov_b64 exec, s[24:25]")
    A(f"buffer_load_dwordx4 {v(VV0,4)}, v3, s[20:23], s28 offen offset:1024 sc1")
    A(f"buffer_load_dwordx4 {v(VV1,4)}, v3, s[20:23], s28 offen offset:1536 sc1")
    A("s_mov_b64 exec, -1")
    A("s_waitcnt vmcnt(0)")
    A(f"v_mfma_f32_32x32x16_bf16 {v(VS[0],16)}, {v(VK,4)}, {v(VQ,4)}, {v(VNEG,16)}")
    A("s_add_u32 s28, s28, 2048")
    A("s_sub_u32 s34, s34, 1")
    A("s_nop 7")
    A("s_nop 1")
    for r in range(16): A(f"v_exp_f32 {v(VS[0]+r)}, {v(VS[0]+r)}")
    A("s_nop 0")
    for r in range(8): A(f"v_cvt_pk_bf16_f32 {v(VP[0]+r)}, {v(VS[0]+2*r)}, {v(VS[0]+2*r+1)}")
    A("s_nop 1")
    A(f"v_mfma_f32_32x32x16_bf16 {v(VO,16)}, {v(VV0,4)}, {v(VP[0],4)}, {v(VO,16)}")
    A(f"v_mfma_f32_32x32x16_bf16 {v(VO,16)}, {v(VV1,4)}, {v(VP[0]+4,4)}, {v(VO,16)}")
    A("s_cmp_lg_u32 s34, 0")
    A(f"s_cbranch_scc1 {name}_sloop")
    A("s_nop 7")
    A("s_nop 3")
    A(f"s_branch {name}_astore")

def final(A, name):
    WR = 8; OR = 72; AC = 136
    A("s_and_b32 s24, s2, 3")
    A("s_lshl_b32 s24, s24, 3")
    A("s_bfe_u32 s25, s2, 0x30003")
    A("s_add_u32 s24, s24, s25")
    A("s_bfe_u32 s25, s2, 0x10002")
    A("s_lshl_b32 s25, s25, 2")
    A("s_lshr_b32 s26, s2, 6")
    A("s_add_u32 s25, s25, s26")
    A("s_and_b32 s26, s3, 1")
    A("s_bfe_u32 s27, s3, 0x10001")
    A("s_lshr_b32 s28, s3, 2")
    A("v_mov_b32 v160, 0")
    A("v_mov_b32 v161, 1")
    A("v_lshrrev_b32 v3, 5, v0")
    A("v_bfe_u32 v4, v0, 2, 2")
    A("v_lshl_add_u32 v4, v3, 2, v4")
    A("v_lshlrev_b32 v4, 7, v4")
    A("v_bfe_u32 v5, v0, 4, 1")
    A("v_lshlrev_b32 v5, 1, v5")
    A("v_bfe_u32 v6, v0, 1, 1")
    A("v_add_u32 v5, v5, v6")
    A("v_bfe_u32 v6, v0, 3, 1")
    A("v_xor_b32 v6, s27, v6")
    A("v_lshl_add_u32 v5, v6, 2, v5")
    A("v_lshl_add_u32 v4, v5, 4, v4")
    A("v_and_b32 v6, 1, v0")
    A("v_lshl_add_u32 v4, v6, 3, v4")
    A("s_lshl_b32 s29, s28, 15")
    A(f"s_add_u32 s29, s29, {BOFF}")
    A("v_add_u32 v4, s29, v4")
    A("v_and_b32 v5, 31, v0")
    A("s_lshl_b32 s29, s26, 5")
    A("v_add_u32 v5, s29, v5")
    A("s_lshl_b32 s29, s27, 6")
    A("s_lshl_b32 s30, s28, 5")
    A("s_add_u32 s29, s29, s30")
    A("v_lshl_add_u32 v6, v3, 4, s29")
    A(f"v_mul_u32_u24 v7, {GSTR}, v5")
    A("v_add_u32 v7, v7, v6")
    A(f"v_add_u32 v7, {GBUF}, v7")
    A("v_lshl_add_u32 v6, v5, 10, v6")
    A("s_lshl_b32 s30, s24, 16")
    A("s_lshl_b32 s31, s25, 7")
    A("s_add_u32 s30, s30, s31")
    A("buffer_load_dwordx4 v[152:155], v6, s[8:11], s30 offen")
    A("s_waitcnt vmcnt(1)")
    publish(A, C_O, 8, 160, 161, 162, 33, "s18", f"{name}_po")
    A("s_lshl_b32 s31, s24, 1")
    A("s_add_u32 s31, s31, s26")
    A("s_lshl_b32 s31, s31, 5")
    A("s_lshl_b32 s32, s28, 4")
    A("s_add_u32 s31, s31, s32")
    A("s_lshr_b32 s32, s24, 2")
    A("s_lshl_b32 s32, s32, 1")
    A("s_add_u32 s32, s32, s28")
    A("s_lshl_b32 s32, s32, 11")
    A(f"s_add_u32 s32, s32, {FL_O}")
    A("s_lshl_b32 s31, s31, 10")
    A(f"s_add_u32 s31, s31, {WS_O}")
    A("v_and_b32 v5, 15, v0")
    A("v_lshlrev_b32 v5, 7, v5")
    srd(A, 12, 44, 2048 * 1024)
    wait_cnt(A, C_G, 4, 160, 162, 33, sleep=2)
    lg = Cnt(A, "lgkmcnt", 15)
    for j in range(16):
        for p in range(2):
            A(f"ds_read_b64_tr_b16 {v(WR+4*j+2*p,2)}, v4 offset:{j*2048 + p*1024}"); lg.issue("w")
    A("ds_read_b128 v[156:159], v7"); lg.issue("w")
    A("s_lshl_b32 s33, s28, 2")
    A("v_mov_b32 v165, s33")
    A("s_and_b32 s33, s3, 3")
    A("s_cmp_eq_u32 s33, 0")
    A(f"s_cbranch_scc0 {name}_gw2")
    poll_lanes(A, 20, 5, "s32", 162, sleep=2)
    arrive(A, C_GO2, 165, 161)
    A(f"s_branch {name}_go2")
    A.label(f"{name}_gw2")
    wait_cnt(A, C_GO2, 1, 165, 162, 33, sleep=1)
    A("s_waitcnt vmcnt(0)")
    A.label(f"{name}_go2")
    tl_mark(A, 5)
    vm = Cnt(A, "vmcnt", 63)
    for j in range(16):
        if j % 4 == 0 and j: A("s_add_u32 s31, s31, 4096")
        A(f"buffer_load_dwordx4 {v(OR+4*j,4)}, v2, s[20:23], s31 offen offset:{(j%4)*1024} sc1"); vm.issue(("o", j))
    lg.wait_all()
    A("s_lshl_b32 s33, s3, 11")
    A(f"s_add_u32 s33, s33, {XCH}")
    A("v_add_u32 v3, s33, v2")
    A("v_xor_b32 v5, 8192, v3") if (XCH % 16384 == 0) else None
    if XCH % 16384:
        A("s_xor_b32 s33, s3, 4")
        A("s_lshl_b32 s33, s33, 11")
        A(f"s_add_u32 s33, s33, {XCH}")
        A("v_add_u32 v5, s33, v2")
    A("s_lshl_b32 s33, s3, 2")
    A("v_mov_b32 v163, s33")
    A("v_xor_b32 v164, 16, v163")
    for j in range(16):
        vm.wait(("o", j))
        A(f"v_mfma_f32_32x32x16_bf16 {v(AC,16)}, {v(WR+4*j,4)}, {v(OR+4*j,4)}, {v(AC,16) if j else 0}")
    A("s_cmp_eq_u32 s28, 0")
    A(f"s_cbranch_scc0 {name}_fk1")
    A("s_nop 7")
    A("s_nop 1")
    A(f"ds_write_b128 v3, {v(AC+8,4)}")
    A(f"ds_write_b128 v3, {v(AC+12,4)} offset:1024")
    A(f"s_branch {name}_fk")
    A.label(f"{name}_fk1")
    A("s_nop 7")
    A("s_nop 1")
    A(f"ds_write_b128 v3, {v(AC,4)}")
    A(f"ds_write_b128 v3, {v(AC+4,4)} offset:1024")
    A("s_waitcnt lgkmcnt(0)")
    for r in range(8): A(f"v_mov_b32 v{AC+r}, v{AC+8+r}")
    A.label(f"{name}_fk")
    A("s_waitcnt lgkmcnt(0)")
    A("s_mov_b64 exec, 1")
    A("ds_write_b32 v163, v161 offset:160")
    A("s_mov_b64 exec, -1")
    for i in range(4):
        A(f"v_lshlrev_b32 v{8+2*i}, 16, v{156+i}")
        A(f"v_and_b32 v{9+2*i}, 0xffff0000, v{156+i}")
        A(f"v_lshlrev_b32 v{16+2*i}, 16, v{152+i}")
        A(f"v_and_b32 v{17+2*i}, 0xffff0000, v{152+i}")
    wait_cnt(A, 160, 1, 164, 162, 33, sleep=0)
    A("ds_read_b128 v[24:27], v5")
    A("ds_read_b128 v[28:31], v5 offset:1024")
    A("s_waitcnt lgkmcnt(0)")
    for r in range(8): A(f"v_add_f32 v{AC+r}, v{AC+r}, v{24+r}")
    for i in range(4): A(f"v_cvt_pk_bf16_f32 v{24+i}, v{AC+2*i}, v{AC+2*i+1}")
    A("s_nop 1")
    A("v_permlane32_swap_b32 v24, v26")
    A("v_permlane32_swap_b32 v25, v27")
    A("s_nop 1")
    for i in range(4):
        A(f"v_lshlrev_b32 v{32+2*i}, 16, v{24+i}")
        A(f"v_and_b32 v{33+2*i}, 0xffff0000, v{24+i}")
    for i in range(8): A(f"v_mul_f32 v{32+i}, v{32+i}, v{8+i}")
    for i in range(4): A(f"v_cvt_pk_bf16_f32 v{24+i}, v{32+2*i}, v{33+2*i}")
    for i in range(4):
        A(f"v_lshlrev_b32 v{32+2*i}, 16, v{24+i}")
        A(f"v_and_b32 v{33+2*i}, 0xffff0000, v{24+i}")
    for i in range(8): A(f"v_add_f32 v{32+i}, v{32+i}, v{16+i}")
    for i in range(4): A(f"v_cvt_pk_bf16_f32 v{24+i}, v{32+2*i}, v{33+2*i}")
    A("buffer_store_dwordx4 v[24:27], v6, s[12:15], s30 offen")
    if os.environ.get("DBGSPAN"):
        A("s_waitcnt vmcnt(0)")
        A("s_memrealtime s[98:99]")
        A("s_waitcnt lgkmcnt(0)")
        A("s_sub_u32 s98, s98, s68")
        A("v_mov_b32 v1, s98")
        A("s_lshl_b32 s97, s3, 8")
        A("s_add_u32 s97, s97, s2")
        A("s_lshl_b32 s97, s97, 2")
        A("s_mov_b64 exec, 1")
        A("buffer_store_dword v1, v160, s[52:55], s97 offen offset:16")
        A("s_mov_b64 exec, -1")
    tl_end(A, 0, 20)
    tl_marks_out(A, 1, 6, 20)
    if asmlib.TIMELINE:
        A("s_lshl_b32 s58, s2, 3")
        A("s_add_u32 s58, s58, s3")
        A("s_lshl_b32 s58, s58, 9")
        A(f"s_add_u32 s58, s58, {100<<20}")
        A("v_lshlrev_b32 v1, 3, v0")
        A("buffer_store_dwordx2 v[166:167], v1, s[20:23], s58 offen")

class BBar:
    def __init__(self, name): self.n = 0; self.name = name; self.lg = None; self.boost = False
    def __call__(self, A):
        self.n += 1
        if self.boost: A("s_setprio 2")
        A("s_mov_b64 exec, 2")
        A("ds_add_u32 v7, v7 offset:64")
        A("s_mov_b64 exec, 1")
        A.label(f"{self.name}_bb{self.n}")
        A("ds_read_b32 v1, v7 offset:80")
        A("s_waitcnt lgkmcnt(0)")
        A("v_readfirstlane_b32 s56, v1")
        A(f"s_cmp_ge_u32 s56, {64*self.n}")
        A(f"s_cbranch_scc0 {self.name}_bb{self.n}")
        A("s_mov_b64 exec, -1")
        if self.boost: A(f"s_setprio {os.environ.get('BLOW', '0')}")
        if self.lg is not None: self.lg.seq = []

def lb_role(A, name):
    A("s_sub_u32 s3, s3, 8")
    A("v_lshlrev_b32 v7, 2, v0")
    A("v_mov_b32 v1, 0")
    A("ds_write_b32 v7, v1")
    A("v_lshlrev_b32 v7, 4, v0")
    rc_qkv(A)
    A("v_lshrrev_b32 v4, 3, v0")
    A("v_and_b32 v5, 7, v0")
    A("v_lshrrev_b32 v6, 4, v0")
    A("v_xor_b32 v5, v5, v6")
    A("v_xor_b32 v8, 4, v5")
    A("s_lshl_b32 s28, s3, 15")
    A("v_lshlrev_b32 v4, 10, v4")
    A("v_add_u32 v4, s28, v4")
    A("v_lshl_add_u32 v60, v5, 4, v4")
    A("v_lshl_add_u32 v61, v8, 4, v4")
    A("v_add_u32 v61, 8192, v61")
    A("v_add_u32 v62, 16384, v60")
    A("v_add_u32 v63, 16384, v61")
    A("v_lshrrev_b32 v4, 2, v0")
    A("s_lshl_b32 s28, s3, 4")
    A("v_add_u32 v4, s28, v4")
    A("v_mul_u32_u24 v4, 3072, v4")
    A("v_and_b32 v5, 3, v0")
    A("v_lshl_add_u32 v64, v5, 4, v4")
    A("s_lshl_b32 s28, s25, 6")
    A("v_add_u32 v64, s28, v64")
    A("v_add_u32 v65, 1024, v64")
    A("v_add_u32 v66, 2048, v64")
    A("s_lshl_b32 s70, s24, 1")
    A("s_add_u32 s70, s70, s25")
    A("s_and_b32 s70, s70, 7")
    A("s_lshl_b32 s71, s24, 17")
    A("s_lshl_b32 s72, s3, 12")
    A(f"s_add_u32 s72, s72, {K1B}")
    A("s_lshl_b32 s73, s3, 10")
    A(f"s_add_u32 s73, s73, {K1B + 16384}")
    A(f"s_mov_b32 s74, {2*K1_SLOT}")
    A("s_waitcnt lgkmcnt(0)")
    A("s_barrier")
    srd(A, 60, 4, 2048 * 1024)
    srd(A, 64, 6, 512 * 3072)
    srd(A, 20, 16, WS_END)
    srd(A, 52, 18, 256)
    def ldma():
        A("s_lshl_b32 s75, s70, 7")
        A("s_add_u32 s75, s75, s71")
        A(f"s_mul_i32 s76, s70, {64*3072}")
        A("s_add_u32 s70, s70, 1")
        A("s_and_b32 s70, s70, 7")
        A("s_add_u32 s77, s72, s74")
        A("s_add_u32 s78, s73, s74")
        for e in range(4):
            A(f"s_add_u32 m0, s77, {e*1024}")
            A("s_nop 0")
            A(f"buffer_load_dwordx4 v{60+e}, s[60:63], s75 offen lds")
        for T_ in range(3):
            A(f"s_add_u32 m0, s78, {T_*4096}")
            A("s_nop 0")
            A(f"buffer_load_dwordx4 v{64+T_}, s[64:67], s76 offen lds")
        A(f"s_add_u32 s74, s74, {K1_SLOT}")
        A(f"s_cmp_eq_u32 s74, {K1_SLOT*K1_NS}")
        A("s_cselect_b32 s74, 0, s74")
    A("s_mov_b32 s79, 0")
    A.label(f"{name}_lpro")
    ldma()
    A("s_add_u32 s79, s79, 1")
    A(f"s_cmp_lt_u32 s79, {K1_PRO}")
    A(f"s_cbranch_scc1 {name}_lpro")
    A("s_mov_b32 s4, s48")
    A("s_mov_b32 s5, s49")
    A("s_mov_b32 s6, s50")
    A("s_mov_b32 s7, s51")
    bar = BBar(name)
    def prologue(A, dma, vm):
        issued = K1_PRO; seq = [("k", st) for st in range(K1_PRO) for _ in range(7)]
        A("s_lshl_b32 s36, s24, 11")
        A(f"s_add_u32 s36, s36, {FL_X}")
        A("v_and_b32 v1, 15, v0")
        A("v_lshlrev_b32 v1, 7, v1")
        A("v_mov_b32 v67, 0")
        A("s_and_b32 s37, s24, 7")
        A("s_lshl_b32 s37, s37, 1")
        A("s_and_b32 s38, s3, 1")
        A("s_add_u32 s37, s37, s38")
        A("s_lshl_b32 s37, s37, 5")
        A("v_and_b32 v68, 31, v0")
        A("v_add_u32 v68, s37, v68")
        A("v_mul_u32_u24 v68, 3584, v68")
        A("v_add_u32 v68, s28, v68")
        A("v_lshrrev_b32 v69, 5, v0")
        A("v_lshl_add_u32 v69, v69, 7, v68")
        TJ = int(os.environ.get("TJ", "-1"))
        for j in range(8):
            idx = max(i for i, t in enumerate(seq) if t == ("k", j))
            A(f"s_waitcnt vmcnt({len(seq) - 1 - idx})")
            A("s_barrier")
            if issued < 8 and issued - 4 <= j:
                ldma(); seq += [("k", issued)] * 7; issued += 1
                if j == TJ:
                    A("buffer_load_dword v70, v69, s[8:11], 0 offen")
                    A("buffer_load_dword v71, v68, s[8:11], 0 offen offset:220")
                    seq += [("t", 0)] * 2
            elif j == 6:
                A("buffer_load_dwordx2 v[12:13], v67, s[52:55], 0 offen sc1")
                A("buffer_load_dwordx2 v[14:15], v1, s[20:23], s36 offen sc1")
                dma(0); seq += [("g", 0)] * 9
        assert issued == 8
        A("s_waitcnt vmcnt(7)")
        A("v_readfirstlane_b32 s68, v12")
        A("v_readfirstlane_b32 s69, v13")
        A("v_cmp_ne_u64 vcc, v[12:13], v[14:15]")
        A("s_cmp_eq_u32 s68, 0")
        A(f"s_cbranch_scc1 {name}_xslow")
        A("s_cmp_eq_u64 vcc, 0")
        A(f"s_cbranch_scc1 {name}_xok")
        A.label(f"{name}_xslow")
        wait_ready(A, 67, 12, 37)
        poll_lanes(A, 20, 1, "s36", 12, sleep=1)
        A.label(f"{name}_xok")
        if os.environ.get("BWAIT"):
            wait_cnt(A, C_QKV, 8, 67, 71, 37, sleep=2)
        tl_mark(A, 4)
    def wait_slot2(A, lg):
        A("v_mov_b32 v0, 0")
        wait_cnt(A, C_WFREE, 8, 0, 1, 37)
        lg.seq = []
    ffn.gu_body(A, name + "_gu", bar, st_flags="sc1", lds0=BOFF, x_flags=os.environ.get("XFL", "sc1"), prologue=prologue, wait_slot2=wait_slot2)
    A("s_waitcnt vmcnt(0)")
    bar(A)
    A("s_cmp_eq_u32 s3, 0")
    A(f"s_cbranch_scc0 {name}_noflag")
    A("s_lshl_b32 s34, s24, 4")
    A("s_add_u32 s34, s34, s25")
    A("s_lshl_b32 s34, s34, 7")
    A(f"s_add_u32 s34, s34, {FL_H}")
    A("v_mov_b32 v1, 0")
    A("s_mov_b64 exec, 1")
    flag_store(A, 1, 2, "s34")
    A("s_mov_b64 exec, -1")
    A.label(f"{name}_noflag")
    tl_mark(A, 1)
    A("s_mov_b32 s4, s46")
    A("s_mov_b32 s5, s47")
    A("v_lshrrev_b32 v0, 4, v7")
    ctx = ffn.sk_body(A, name + "_dn", bar, 28, WS_H, 112 * 1024, 1792 * 1024, "g", ld_flags="sc1", lds0=BOFF)
    def wait_act(A):
        A("s_lshr_b32 s34, s24, 1")
        A("s_lshl_b32 s34, s34, 11")
        A("s_lshl_b32 s35, s3, 9")
        A("s_add_u32 s34, s34, s35")
        A(f"s_add_u32 s34, s34, {FL_H}")
        A("v_and_b32 v1, 3, v0")
        A("v_lshlrev_b32 v1, 7, v1")
        poll_lanes(A, 20, 1, "s34", 16, sleep=4)
        tl_mark(A, 2)
        ctx["vm"].seq = []
    bar.lg = ctx["lg"]
    def after_red_reads(A):
        bar(A)
        srd(A, 8, 42, 512 * 1024)
        A("s_lshl_b32 s27, s3, 17")
        A("s_lshl_b32 s28, s3, 14")
        A(f"s_add_u32 s28, s28, {BOFF}")
        for j in range(8):
            A(f"s_add_u32 s31, s27, {j*16384}")
            A(f"s_add_u32 m0, s28, {j*2048}")
            A("s_nop 0")
            A("buffer_load_dwordx4 v8, s[8:11], s31 offen lds")
            A(f"s_add_u32 m0, s28, {j*2048 + 1024}")
            A("s_nop 0")
            A("buffer_load_dwordx4 v9, s[8:11], s31 offen lds")
    ffn.sk_main(A, name + "_dn", bar, 28, ctx, "glds", wait_act=wait_act, lds0=BOFF, after_red_reads=after_red_reads, gbuf=(GBUF, GSTR))
    A("s_waitcnt vmcnt(0) lgkmcnt(0)")
    A("v_mov_b32 v1, 0")
    A("v_mov_b32 v2, 1")
    arrive(A, C_G, 1, 2)
    A("s_add_u32 s3, s3, 8")
    tl_end(A, 8, 20)
    tl_marks_out(A, 9, 7 if os.environ.get('GUT') else 5, 20)

def gen(A, name=NAME):
    kernel_begin(A, name)
    A("s_cmp_ge_u32 s2, 256")
    A(f"s_cbranch_scc1 F_end")
    if os.environ.get("PERM"):
        A("s_lshr_b32 s3, s2, 5")
        A("s_and_b32 s2, s2, 31")
        A("s_lshl_b32 s2, s2, 3")
        A("s_or_b32 s2, s2, s3")
    tl_begin(A)
    A("s_load_dwordx4 s[4:7], s[0:1], 0")
    A("s_load_dwordx2 s[42:43], s[0:1], 16")
    A("s_load_dwordx4 s[48:51], s[0:1], 32")
    A("s_load_dwordx2 s[46:47], s[0:1], 48")
    A("s_load_dwordx2 s[44:45], s[0:1], 56")
    A("s_load_dwordx2 s[18:19], s[0:1], 64")
    A("s_load_dwordx2 s[16:17], s[0:1], 72")
    A("v_lshrrev_b32 v1, 6, v0")
    A("v_and_b32 v0, 63, v0")
    A("s_nop 0")
    A("v_readfirstlane_b32 s3, v1")
    A("s_cmp_lt_u32 s3, 8")
    A("s_cbranch_scc0 F_lb")
    ca_role(A, "F")
    A.label("F_lb")
    ffn.PRIO = True
    A("s_setprio 2")
    asmlib.MARK_OFF = bool(os.environ.get("GUT"))
    lb_role(A, "F")
    ffn.PRIO = False
    A.label("F_end")
    A("s_endpgm")
```

```python
from asmlib import *
import asmlib, ffn, os, struct
def f2u(x): return struct.unpack("<I", struct.pack("<f", x))[0]
LOG2E = 1.4426950408889634
QSCALE = 0.25 * LOG2E

NAME = "recurrent_scan__mha_block__glu_gated_glu__prompt_kernel"
BOFF = 256
WQ = BOFF + 2 * ffn.GU_SLOT
LNB = BOFF
ABASE = BOFF + 3 * ffn.GU_SLOT
NCH = 6
XCH = ABASE + NCH * 8192
GBUF = XCH + 16384
GSTR = 144
XCH2 = BOFF + 69632
QX = GBUF
def RING(g): return ABASE + g * 32768
K1_SLOT = 28672; K1_NS = 5; K1_D = 4
K1B = WQ - 2 * K1_SLOT
K1T = K1B + K1_SLOT * K1_NS
LNB = K1T + 5120
K1_PRO = int(os.environ.get('K1_PRO', '2'))
F_LDS = 163840
assert WQ + 98304 <= F_LDS and GBUF + 64 * GSTR <= F_LDS
C_LN, C_XF, C_W, C_WFREE, C_G = 0, 4, 8, 12, 16
F_VGPR = 168
F_THREADS = 768
WS_FLAG = 30 << 20
WS_ST = 29 << 20
FL_X = WS_FLAG
FL_A = WS_FLAG + 32768
FL_H = WS_FLAG + 65536
FL_O = WS_FLAG + 98304
C_WO = 40
C_QKV, C_O, C_GO, C_GO2 = 20, 24, 28, 32

def flag_store(A, vz, vt, soff):
    A(f"v_mov_b32 v{vt}, s68")
    A(f"v_mov_b32 v{vt+1}, s69")
    A(f"buffer_store_dwordx2 {v(vt,2)}, v{vz}, s[20:23], {soff} offen sc1")

def publish(A, cnt_off, n, vz, vone, vt, st, soff, lbl):
    A("s_mov_b64 exec, 1")
    A(f"ds_add_rtn_u32 v{vt}, v{vz}, v{vone} offset:{cnt_off}")
    A("s_waitcnt lgkmcnt(0)")
    A(f"v_readfirstlane_b32 s{st}, v{vt}")
    A(f"s_cmp_eq_u32 s{st}, {n-1}")
    A(f"s_cbranch_scc0 {lbl}")
    flag_store(A, vz, vt, soff)
    A.label(lbl)
    A("s_mov_b64 exec, -1")

def wait_ready(A, vz, vt, st):
    _lbl[0] += 1
    L = f"Lr{_lbl[0]}"
    A.label(L)
    A(f"buffer_load_dwordx2 {v(vt,2)}, v{vz}, s[52:55], 0 offen sc1")
    A("s_waitcnt vmcnt(0)")
    A(f"v_readfirstlane_b32 s68, v{vt}")
    A(f"v_readfirstlane_b32 s69, v{vt+1}")
    A("s_cmp_eq_u32 s68, 0")
    A(f"s_cbranch_scc1 {L}")

_lbl = [0]
def arrive(A, off, vz, vone):
    A("s_mov_b64 exec, 1")
    A(f"ds_add_u32 v{vz}, v{vone} offset:{off}")
    A("s_mov_b64 exec, -1")
def wait_cnt(A, off, n, vz, vt, st, sleep=1):
    _lbl[0] += 1
    L = f"Lw{_lbl[0]}"
    A.label(L)
    A(f"ds_read_b32 v{vt}, v{vz} offset:{off}")
    A("s_waitcnt lgkmcnt(0)")
    A(f"v_readfirstlane_b32 s{st}, v{vt}")
    A(f"s_cmp_ge_u32 s{st}, {n}")
    A(f"s_cbranch_scc1 {L}x")
    if sleep: A(f"s_sleep {sleep}")
    A(f"s_branch {L}")
    A.label(L + "x")

def poll_lanes(A, srd_, voff, soff, vt, sleep=2):
    _lbl[0] += 1
    L = f"Lq{_lbl[0]}"
    A.label(L)
    A(f"buffer_load_dwordx2 {v(vt,2)}, v{voff}, s[{srd_}:{srd_+3}], {soff} offen sc1")
    A("s_waitcnt vmcnt(0)")
    A(f"v_cmp_ne_u64 vcc, s[68:69], {v(vt,2)}")
    A("s_nop 1")
    A("s_cmp_eq_u64 vcc, 0")
    A(f"s_cbranch_scc1 {L}x")
    if sleep: A(f"s_sleep {sleep}")
    A(f"s_branch {L}")
    A.label(L + "x")

def rc_qkv(A):
    A("s_bfe_u32 s24, s2, 0x20001")
    A("s_lshl_b32 s24, s24, 2")
    A("s_lshr_b32 s25, s2, 6")
    A("s_add_u32 s24, s24, s25")
    A("s_and_b32 s25, s2, 1")
    A("s_lshl_b32 s25, s25, 3")
    A("s_bfe_u32 s26, s2, 0x30003")
    A("s_add_u32 s25, s25, s26")

VQ = 8; VNEG = 16; VS = [32, 48]; VP = [64, 72]; VO = 80; VK = 96; VV0 = 100; VV1 = 104

def ca_role(A, name):
    rc_qkv(A)
    A("v_lshlrev_b32 v2, 4, v0")
    A("v_mov_b32 v118, 0")
    A("v_mov_b32 v119, 1")
    A("s_lshl_b32 s30, s24, 7")
    A("s_lshl_b32 s28, s25, 3")
    A("s_add_u32 s30, s30, s28")
    A("s_add_u32 s31, s30, s3")
    A("s_lshl_b32 s31, s31, 10")
    A("s_waitcnt lgkmcnt(0)")
    srd(A, 8, 4, 2048 * 1024)
    srd(A, 20, 16, WS_END)
    srd(A, 52, 18, 256)
    A("buffer_load_dwordx4 v[164:167], v2, s[8:11], s31 offen")
    A("s_or_b32 s28, s2, s3")
    A("s_cmp_eq_u32 s28, 0")
    A(f"s_cbranch_scc0 {name}_nz")
    A("s_memrealtime s[68:69]")
    A("s_waitcnt lgkmcnt(0)")
    A("s_or_b32 s68, s68, 1")
    A("v_mov_b32 v24, s68")
    A("v_mov_b32 v25, s69")
    A("s_mov_b64 exec, 1")
    A("buffer_store_dwordx2 v[24:25], v118, s[52:55], 0 offen sc1")
    A("s_mov_b64 exec, -1")
    A.label(f"{name}_nz")
    A("s_barrier")
    A("s_mul_i32 s28, s3, 1040")
    A(f"s_add_u32 s28, s28, {LNB}")
    A("v_add_u32 v140, s28, v2")
    A("v_and_b32 v141, 7, v0")
    A("v_mul_u32_u24 v142, 1040, v141")
    A("v_lshrrev_b32 v143, 3, v0")
    A("s_lshl_b32 s28, s3, 3")
    A("v_add_u32 v143, s28, v143")
    A("v_lshl_add_u32 v142, v143, 4, v142")
    A(f"v_add_u32 v142, {LNB}, v142")
    A("v_lshlrev_b32 v143, 9, v143")
    A("v_lshl_add_u32 v143, v141, 4, v143")
    A("s_lshr_b32 s28, s30, 5")
    A("s_lshl_b32 s28, s28, 15")
    A("s_and_b32 s29, s30, 31")
    A("s_lshl_b32 s29, s29, 4")
    A("s_add_u32 s28, s28, s29")
    A(f"s_add_u32 s28, s28, {WS_XF}")
    k1_setup(A)
    A("s_or_b32 s29, s2, s3")
    A("s_cmp_eq_u32 s29, 0")
    A(f"s_cbranch_scc1 {name}_w0")
    A("s_waitcnt vmcnt(0)")
    A.label(f"{name}_w0")
    A("s_waitcnt vmcnt(1)")
    T = 144
    for i in range(4):
        A(f"v_lshlrev_b32 v{T+2*i}, 16, v{164+i}")
        A(f"v_and_b32 v{T+2*i+1}, 0xffff0000, v{164+i}")
    A(f"v_add_f32 v160, v{T}, v{T+1}")
    A(f"v_mul_f32 v161, v{T}, v{T}")
    A(f"v_fmac_f32 v161, v{T+1}, v{T+1}")
    for i in range(2, 8):
        A(f"v_add_f32 v160, v160, v{T+i}")
        A(f"v_fmac_f32 v161, v{T+i}, v{T+i}")
    A("s_nop 0")
    for m in ("quad_perm:[1,0,3,2]", "quad_perm:[2,3,0,1]", "row_half_mirror", "row_mirror"):
        A(f"v_add_f32_dpp v160, v160, v160 {m} row_mask:0xf bank_mask:0xf")
        A(f"v_add_f32_dpp v161, v161, v161 {m} row_mask:0xf bank_mask:0xf")
        A("s_nop 0")
    for op in ("v_permlane16_swap_b32", "v_permlane32_swap_b32"):
        A("v_mov_b32 v162, v160")
        A("v_mov_b32 v163, v161")
        A("s_nop 0")
        A(f"{op} v162, v160")
        A(f"{op} v163, v161")
        A("s_nop 0")
        A("v_add_f32 v160, v160, v162")
        A("v_add_f32 v161, v161, v163")
    A(f"v_mul_f32 v160, {hex(f2u(1/512))}, v160")
    A(f"v_mul_f32 v161, {hex(f2u(1/512))}, v161")
    A("v_fma_f32 v161, -v160, v160, v161")
    ln_scalars(A, 160, 161, 162)
    A("s_lshr_b32 s29, s31, 7")
    A(f"s_add_u32 s29, s29, {WS_ST}")
    A("s_mov_b64 exec, 1")
    A("buffer_store_dwordx2 v[160:161], v118, s[20:23], s29 offen sc1")
    A("s_mov_b64 exec, -1")
    for i in range(8): A(f"v_sub_f32 v{T+i}, v{T+i}, v160")
    for i in range(4): A(f"v_cvt_pk_bf16_f32 v{164+i}, v{T+2*i}, v{T+2*i+1}")
    for i in range(4):
        A(f"v_lshlrev_b32 v{T+2*i}, 16, v{164+i}")
        A(f"v_and_b32 v{T+2*i+1}, 0xffff0000, v{164+i}")
    for i in range(8): A(f"v_mul_f32 v{T+i}, v{T+i}, v161")
    for i in range(4): A(f"v_cvt_pk_bf16_f32 v{164+i}, v{T+2*i}, v{T+2*i+1}")
    A("ds_write_b128 v140, v[164:167]")
    A("s_waitcnt lgkmcnt(0)")
    arrive(A, C_LN, 118, 119)
    wait_cnt(A, C_LN, 8, 118, 139, 29, sleep=0)
    A("ds_read_b128 v[164:167], v142")
    A("s_waitcnt lgkmcnt(0)")
    A("buffer_store_dwordx4 v[164:167], v143, s[20:23], s28 offen sc1")
    tl_mark(A, 0)
    A("buffer_load_dwordx2 v[116:117], v118, s[52:55], 0 offen sc1")
    A("s_cmp_lt_u32 s3, 4")
    A(f"s_cbranch_scc0 {name}_kv")
    k1_compute(A, name, 0)
    A(f"s_branch {name}_attn1")
    A.label(f"{name}_kv")
    k1_compute(A, name, 1)
    A.label(f"{name}_attn1")
    if os.environ.get("BWAIT"): arrive(A, C_LN + 44, 118, 119)
    tl_mark(A, 0)
    A("s_setprio 0")
    A.label(f"{name}_attn2")
    attn(A, name)


AC0, AC1 = 32, 48
XF = 64; WFK = 80; VSEL = 112; VCS = 120; VS1, VS2 = 124, 126

def xpub(A, L):
    A("s_mov_b64 exec, 1")
    A("s_waitcnt vmcnt(0)")
    A("v_readfirstlane_b32 s29, v116")
    A("s_cmp_eq_u32 s29, 0")
    A(f"s_cbranch_scc1 {L}_c")
    A("buffer_store_dwordx2 v[116:117], v118, s[20:23], s59 offen sc1")
    A("s_mov_b32 s57, 0")
    A(f"s_branch {L}_d")
    A.label(f"{L}_c")
    A("buffer_load_dwordx2 v[116:117], v118, s[52:55], 0 offen sc1")
    A.label(f"{L}_d")
    A("s_mov_b64 exec, -1")

def k1_setup(A):
    A("s_cmp_eq_u32 s3, 7")
    A("s_cselect_b32 s57, 5, 0")
    A("s_lshl_b32 s59, s24, 4")
    A("s_add_u32 s59, s59, s25")
    A("s_lshl_b32 s59, s59, 7")
    A(f"s_add_u32 s59, s59, {FL_X}")
    A("s_lshl_b32 s60, s24, 11")
    A(f"s_add_u32 s60, s60, {FL_X}")
    A("v_and_b32 v138, 15, v0")
    A("v_lshlrev_b32 v138, 7, v138")
    A("s_lshl_b32 s61, s24, 10")
    A("s_and_b32 s62, s3, 3")
    A("s_lshl_b32 s62, s62, 8")
    A("s_add_u32 s61, s61, s62")
    A(f"s_add_u32 s61, s61, {WS_ST}")
    A("v_and_b32 v23, 31, v0")
    A("v_lshlrev_b32 v23, 3, v23")
    A("s_mov_b32 s62, 0")
    A("s_and_b32 s26, s3, 3")
    A("v_and_b32 v4, 31, v0")
    A("v_lshrrev_b32 v5, 5, v0")
    A("v_bfe_u32 v6, v0, 1, 3")
    A("v_xor_b32 v6, v5, v6")
    A("s_lshl_b32 s34, s26, 12")
    A(f"s_add_u32 s34, s34, {K1B}")
    A("v_lshlrev_b32 v4, 7, v4")
    A("v_add_u32 v4, s34, v4")
    for s_ in range(4):
        A(f"v_xor_b32 v7, {2*s_}, v6")
        A(f"v_lshl_add_u32 v{11+s_}, v7, 4, v4")
    A("v_bfe_u32 v6, v0, 2, 2")
    A("v_lshl_add_u32 v6, v5, 3, v6")
    A("v_lshlrev_b32 v6, 6, v6")
    A("v_bfe_u32 v7, v0, 4, 1")
    A("v_lshl_add_u32 v6, v7, 5, v6")
    A("v_and_b32 v7, 3, v0")
    A("v_lshl_add_u32 v6, v7, 3, v6")
    A(f"v_add_u32 v15, {K1B + 16384}, v6")
    for r in range(32): A(f"v_mov_b32 v{AC0+r}, 0")
    for r in range(VCS, 128): A(f"v_mov_b32 v{r}, 0")
    A("v_and_b32 v6, 15, v0")
    A("v_bfe_u32 v7, v0, 4, 1")
    A("v_cmp_eq_u32 vcc, v6, v7")
    A("v_mov_b32 v6, 0x3f803f80")
    A("s_nop 0")
    A(f"v_cndmask_b32 v{VSEL}, 0, v6, vcc")
    for r in range(1, 4): A(f"v_mov_b32 v{VSEL+r}, v{VSEL}")
    A(f"s_mov_b32 s36, {2*K1_SLOT}")
    A("s_mov_b32 s39, 8")

def k1_compute(A, name, role):
    L = f"{name}_c{role}"
    lg = Cnt(A, "lgkmcnt", 15)
    WF = WFK
    nt = 2 if role == 0 else 1
    t0 = 0 if role == 0 else 2
    TM = 128
    A("s_setprio 3" if role == 1 else "s_setprio 2")
    def addrs():
        for i in range(5): A(f"v_add_u32 v{16+i}, s36, v{11+i}")
        A(f"s_add_u32 s36, s36, {K1_SLOT}")
        A(f"s_cmp_eq_u32 s36, {K1_SLOT*K1_NS}")
        A("s_cselect_b32 s36, 0, s36")
    def reads(s_):
        A(f"ds_read_b128 {v(XF+4*s_,4)}, v{16+s_}"); lg.issue(("x", s_))
        for T_ in range(nt):
            for p in range(2):
                A(f"ds_read_b64_tr_b16 {v(WF+8*s_+4*T_+2*p,2)}, v20 offset:{(t0+T_)*4096 + (16*s_+4*p)*64}")
                lg.issue(("w", s_, T_))
    def stats(s_, lo, hi):
        return
        for i in range(lo, hi):
            A(f"v_lshlrev_b32 v{TM+2*i}, 16, v{XF+4*s_+i}")
            A(f"v_and_b32 v{TM+2*i+1}, 0xffff0000, v{XF+4*s_+i}")
        for i in range(2 * lo, 2 * hi):
            A(f"v_add_f32 v{VS1+i%2}, v{VS1+i%2}, v{TM+i}")
            A(f"v_fmac_f32 v{VS2+i%2}, v{TM+i}, v{TM+i}")
    def step(s_):
        X = v(XF + 4 * s_, 4)
        if role == 0:
            lg.wait(("w", s_, 0))
            A(f"v_mfma_f32_32x32x16_bf16 {v(AC0,16)}, {v(WF+8*s_,4)}, {X}, {v(AC0,16)}")
            stats(s_, 0, 1)
            lg.wait(("w", s_, 1))
            A(f"v_mfma_f32_32x32x16_bf16 {v(AC1,16)}, {v(WF+8*s_+4,4)}, {X}, {v(AC1,16)}")
            stats(s_, 1, 2)
        else:
            lg.wait(("w", s_, 0))
            A(f"v_mfma_f32_32x32x16_bf16 {v(AC0,16)}, {X}, {v(WF+8*s_,4)}, {v(AC0,16)}")
            stats(s_, 2, 4)
    def colsum(half):
        cands = [(0, 0), (1, 4)] if role == 0 else [(2, 0)]
        for tbv, off in cands:
            A(f"s_cmp_eq_u32 s26, {tbv}")
            A(f"s_cbranch_scc0 {L}_nocs{half}_{tbv}")
            for s_ in (2 * half, 2 * half + 1):
                A(f"v_mfma_f32_16x16x32_bf16 {v(VCS,4)}, {v(VSEL,4)}, {v(WF+8*s_+off,4)}, {v(VCS,4)}")
            A.label(f"{L}_nocs{half}_{tbv}")
    addrs()
    A("s_barrier")
    reads(0); reads(1); reads(2); reads(3)
    top_state = list(lg.seq)
    A.label(f"{L}_loop")
    step(0); step(1)
    colsum(0)
    A("s_sub_u32 s39, s39, 1")
    A("s_cmp_eq_u32 s39, 0")
    A(f"s_cbranch_scc1 {L}_last")
    addrs()
    XP = int(os.environ.get("XP", "6"))
    A(f"s_cmp_eq_u32 s39, {XP}")
    A(f"s_cbranch_scc0 {L}_noxf")
    A("s_waitcnt vmcnt(0)")
    A("v_readfirstlane_b32 s68, v116")
    A("v_readfirstlane_b32 s69, v117")
    A("s_cmp_eq_u32 s68, 0")
    A(f"s_cbranch_scc0 {L}_hn")
    wait_ready(A, 118, 128, 29)
    A.label(f"{L}_hn")
    publish(A, C_XF, 8, 118, 119, 128, 29, "s59", f"{L}_px")
    A.label(f"{L}_noxf")
    def stat_try(LL, reissue=True):
        A("s_cmp_eq_u32 s62, 1")
        A(f"s_cbranch_scc1 {LL}x")
        A("s_cmp_eq_u32 s62, 0")
        A(f"s_cbranch_scc1 {LL}i")
        A("s_waitcnt vmcnt(0)")
        A("v_cmp_ne_u64 vcc, s[68:69], v[130:131]")
        A("s_nop 1")
        A("s_cmp_eq_u64 vcc, 0")
        A(f"s_cbranch_scc0 {LL}i")
        A(f"buffer_load_dwordx2 {v(VS1,2)}, v23, s[20:23], s61 offen sc1")
        A("s_mov_b32 s62, 1")
        A(f"s_branch {LL}x")
        A.label(f"{LL}i")
        if reissue:
            A("buffer_load_dwordx2 v[130:131], v138, s[20:23], s60 offen sc1")
            A("s_mov_b32 s62, 2")
        A.label(f"{LL}x")
    A("s_cmp_gt_u32 s39, 3")
    A(f"s_cbranch_scc1 {L}_stx")
    stat_try(f"{L}_st")
    lg.wait_all()
    A("s_barrier")
    reads(0); reads(1)
    step(2); step(3)
    colsum(1)
    reads(2); reads(3)
    assert lg.seq == top_state, (lg.seq, top_state)
    A(f"s_branch {L}_loop")
    A.label(f"{L}_last")
    lg.wait_all()
    L = L + "x"
    step(2); step(3)
    colsum(1)
    tl_mark(A, 1)
    stat_try(f"{L}_su")
    TB = K1T
    A("v_lshlrev_b32 v4, 2, v0")
    A("v_cmp_gt_u32 vcc, 16, v0")
    if role == 0:
        A("s_lshl_b32 s34, s26, 7")
        A("s_cmp_lt_u32 s26, 2")
    else:
        A("s_mov_b32 s34, 256")
        A("s_cmp_eq_u32 s26, 2")
    A("s_cselect_b32 s34, s34, 512")
    A("v_mov_b32 v5, 512")
    A("v_mov_b32 v6, s34")
    A("v_cndmask_b32 v5, v5, v6, vcc")
    A("v_add_u32 v5, v5, v4")
    A(f"v_add_u32 v5, {TB}, v5")
    A("s_nop 1")
    A(f"ds_write_b32 v5, v{VCS}")
    A(f"ds_write_b32 v5, v{VCS+1} offset:64")
    A("v_and_b32 v6, 31, v0")
    A("s_lshl_b32 s34, s26, 8")
    A(f"s_add_u32 s34, s34, {TB + 1024}")
    A("v_lshl_add_u32 v7, v6, 3, s34")
    A("v_lshlrev_b32 v6, 2, v6")
    A("v_lshrrev_b32 v8, 5, v0")
    A("v_lshlrev_b32 v8, 4, v8")
    A("s_lshl_b32 s37, s25, 7")
    A("s_lshl_b32 s35, s24, 2")
    A("s_add_u32 s37, s37, s35")
    A("s_add_u32 s37, s37, s26")
    A("s_waitcnt lgkmcnt(0)")
    arrive(A, C_WFREE, 118, 119)
    wait_cnt(A, C_WFREE, 8, 118, 9, 29, sleep=0)
    lg.seq = []
    if role == 0:
        A(f"v_add_u32 v8, {TB}, v8")
        for T_ in range(2):
            for g in range(4):
                A(f"ds_read_b128 {v(WF+16*T_+4*g,4)}, v8 offset:{T_*128 + g*32}"); lg.issue(("c", T_))
    else:
        A(f"v_add_u32 v9, {TB}, v6")
        A("ds_read_b32 v4, v9 offset:256"); lg.issue("c")
    stat_try(f"{L}_sv", reissue=False)
    A("s_cmp_eq_u32 s62, 1")
    A(f"s_cbranch_scc1 {L}_sok")
    poll_lanes(A, 20, 138, "s60", 128, sleep=0)
    A(f"buffer_load_dwordx2 {v(VS1,2)}, v23, s[20:23], s61 offen sc1")
    A.label(f"{L}_sok")
    A("s_waitcnt vmcnt(0)")
    M, RS = VS1, VS1 + 1
    if role == 0:
        A("s_lshl_b32 s35, s37, 11")
        A(f"s_add_u32 s36, s35, {WS_KV + 131072}")
        A(f"s_add_u32 s35, s35, {WS_KV}")
        A(f"v_mul_f32 v6, {hex(f2u(QSCALE))}, v{RS}")
        lg.wait(("c", 1))
        for r in range(16):
            A(f"v_fma_f32 v{AC1+r}, -v{M}, v{WF+16+r}, v{AC1+r}")
            A(f"v_mul_f32 v{AC1+r}, v{AC1+r}, v{RS}")
        for i in range(8): A(f"v_cvt_pk_bf16_f32 v{XF+8+i}, v{AC1+2*i}, v{AC1+2*i+1}")
        A(f"buffer_store_dwordx4 {v(XF+8,4)}, v2, s[20:23], s35 offen sc1")
        A(f"buffer_store_dwordx4 {v(XF+12,4)}, v2, s[20:23], s36 offen sc1")
        A("s_lshl_b32 s35, s26, 11")
        A(f"s_add_u32 s35, s35, {ABASE}")
        A("v_add_u32 v7, s35, v2")
        A(f"ds_write_b128 v7, {v(XF+8,4)}")
        A(f"ds_write_b128 v7, {v(XF+12,4)} offset:32768")
        A("s_lshl_b32 s35, s26, 10")
        A(f"s_add_u32 s35, s35, {QX}")
        A("v_add_u32 v7, s35, v2")
        for r in range(16):
            A(f"v_fma_f32 v{AC0+r}, -v{M}, v{WF+r}, v{AC0+r}")
            A(f"v_mul_f32 v{AC0+r}, v{AC0+r}, v6")
        for i in range(4): A(f"v_cvt_pk_bf16_f32 v{VQ+i}, v{AC0+2*i}, v{AC0+2*i+1}")
        for i in range(4, 8): A(f"v_cvt_pk_bf16_f32 v{XF+i}, v{AC0+2*i}, v{AC0+2*i+1}")
        A(f"ds_write_b128 v7, {v(XF+4,4)}")
    else:
        A("s_lshl_b32 s34, s3, 8")
        A(f"s_add_u32 s34, s34, {TB + 3072}")
        A("v_add_u32 v6, s34, v6")
        A("v_add_u32 v8, s34, v8")
        A(f"ds_write_b32 v6, v{M}"); lg.issue("w")
        A(f"ds_write_b32 v6, v{RS} offset:128"); lg.issue("w")
        for g in range(4):
            A(f"ds_read_b128 {v(WF+4*g,4)}, v8 offset:{g*32}"); lg.issue("m2")
        for g in range(4):
            A(f"ds_read_b128 {v(WF+16+4*g,4)}, v8 offset:{128 + g*32}"); lg.issue("rs")
        A("v_bfe_u32 v7, v0, 4, 1")
        A("v_lshlrev_b32 v7, 17, v7")
        A("v_lshrrev_b32 v5, 5, v0")
        A("v_lshl_add_u32 v7, v5, 8, v7")
        A("v_and_b32 v5, 15, v0")
        A("v_lshl_add_u32 v7, v5, 4, v7")
        A("s_lshl_b32 s35, s37, 11")
        A(f"s_add_u32 s35, s35, {WS_KV}")
        lg.wait("rs")
        for r in range(16):
            A(f"v_fma_f32 v{AC0+r}, -v{WF+r}, v4, v{AC0+r}")
            A(f"v_mul_f32 v{AC0+r}, v{AC0+r}, v{WF+16+r}")
        for i in range(8): A(f"v_cvt_pk_bf16_f32 v{XF+i}, v{AC0+2*i}, v{AC0+2*i+1}")
        A(f"buffer_store_dwordx4 {v(XF,4)}, v7, s[20:23], s35 offen offset:1024 sc1")
        A(f"buffer_store_dwordx4 {v(XF+4,4)}, v7, s[20:23], s35 offen offset:1536 sc1")
        A("v_lshrrev_b32 v5, 2, v7")
        A("v_and_b32 v5, 0x8000, v5")
        A("v_and_b32 v6, 0x3ff, v7")
        A("v_add_u32 v5, v5, v6")
        A("s_lshl_b32 s35, s26, 11")
        A(f"s_add_u32 s35, s35, {ABASE + 1024}")
        A("v_add_u32 v5, s35, v5")
        A(f"ds_write_b128 v5, {v(XF,4)}")
        A(f"ds_write_b128 v5, {v(XF+4,4)} offset:512")

def attn(A, name):
    A("s_lshr_b32 s36, s3, 2")
    A("s_lshl_b32 s16, s25, 1")
    A("s_add_u32 s16, s16, s36")
    A("s_lshl_b32 s17, s24, 2")
    A("s_add_u32 s17, s17, s26")
    A("s_lshl_b32 s41, s25, 4")
    A("s_add_u32 s41, s41, s24")
    A("s_lshl_b32 s41, s41, 7")
    A(f"s_add_u32 s41, s41, {FL_A}")
    A("s_lshl_b32 s40, s25, 11")
    A(f"s_add_u32 s40, s40, {FL_A}")
    A("s_lshl_b32 s18, s24, 4")
    A("s_add_u32 s18, s18, s25")
    A("s_lshl_b32 s18, s18, 7")
    A(f"s_add_u32 s18, s18, {FL_O}")
    A("s_add_u32 s37, s24, 1")
    A("s_and_b32 s37, s37, 15")
    A("s_lshl_b32 s39, s26, 11")
    A("s_lshl_b32 s26, s16, 17")
    A(f"s_add_u32 s26, s26, {WS_KV}")
    A("s_add_u32 s38, s26, s39")
    A("s_lshl_b32 s29, s36, 15")
    A(f"s_add_u32 s29, s29, {ABASE}")
    A("s_add_u32 s27, s29, s39")
    A("v_lshrrev_b32 v3, 5, v0")
    A("v_lshlrev_b32 v3, 8, v3")
    A("v_and_b32 v4, 15, v0")
    A("v_lshlrev_b32 v120, 7, v4")
    A("v_lshlrev_b32 v4, 4, v4")
    A("v_add_u32 v3, v3, v4")
    A("v_add_u32 v108, s29, v2")
    A("s_add_u32 s29, s29, 1024")
    A("v_add_u32 v109, s29, v3")
    A("s_lshl_b32 s29, s3, 2")
    A("s_add_u32 s29, s29, 128")
    A("v_mov_b32 v114, s29")
    A("v_mov_b32 v115, 1")
    A("v_and_b32 v117, 7, v0")
    A("v_lshlrev_b32 v117, 2, v117")
    A("v_mov_b32 v118, 0")
    A("v_mov_b32 v119, 1")
    A("s_mov_b32 s24, 0x0000ffff")
    A("s_mov_b32 s25, 0x0000ffff")
    A("s_lshl_b32 s29, s36, 2")
    A("s_lshl_b32 s63, 0xf, s29")
    A("s_waitcnt lgkmcnt(0)")
    A("s_mov_b64 exec, 1")
    A("ds_write_b32 v114, v115")
    A("s_mov_b64 exec, -1")
    A("v_and_b32 v4, 27, v0")
    A("v_cmp_eq_u32 vcc, 16, v4")
    A("v_mov_b32 v5, 0x3f803f80")
    A("s_nop 0")
    A("v_cndmask_b32 v5, 0, v5, vcc")
    for r in range(8): A(f"v_mov_b32 {v(VV0+r)}, v5")
    for r in range(16): A(f"v_mov_b32 {v(VO+r)}, 0")
    for r in range(4, 8): A(f"v_mov_b32 {v(VP[1]+r)}, 0")
    TD = int(os.environ.get("TOUCHD", "2"))
    if TD:
        srd(A, 72, 46, 1792 * 1024)
        srd(A, 76, 42, 512 * 1024)
        A("s_bfe_u32 s70, s2, 0x30003")
        A("s_bfe_u32 s71, s2, 0x10002")
        A("s_lshl_b32 s71, s71, 2")
        A("s_lshr_b32 s64, s2, 6")
        A("s_add_u32 s71, s71, s64")
        A("s_lshl_b32 s71, s71, 7")
        A("s_mul_i32 s64, s70, 224")
        A("s_mul_i32 s65, s3, 28")
        A("s_add_u32 s64, s64, s65")
        A("s_lshl_b32 s64, s64, 10")
        A("s_add_u32 s64, s64, s71")
        A("s_lshl_b32 s65, s70, 3")
        A("s_add_u32 s65, s65, s3")
        A("s_lshl_b32 s65, s65, 13")
        A("s_add_u32 s65, s65, s71")
        A("v_lshrrev_b32 v131, 3, v0")
        A("v_and_b32 v132, 7, v0")
        A("v_bfe_u32 v133, v0, 4, 1")
        A("v_lshlrev_b32 v133, 2, v133")
        A("v_xor_b32 v132, v132, v133")
        A("v_lshlrev_b32 v131, 10, v131")
        A("v_lshl_add_u32 v131, v132, 4, v131")
        A("v_add_u32 v131, s71, v131")
        A("v_add_u32 v132, 8192, v131")
        A("s_lshl_b32 s66, s36, 18")
        A("s_and_b32 s67, s3, 3")
        A("s_lshl_b32 s67, s67, 14")
        A("s_add_u32 s66, s66, s67")
        A("v_min_u32 v127, 27, v0")
        A("v_lshlrev_b32 v127, 10, v127")
        A("v_and_b32 v128, 7, v0")
        A("v_lshlrev_b32 v128, 10, v128")
    A("s_and_b32 s29, s3, 3")
    A("s_lshl_b32 s29, s29, 10")
    A(f"s_add_u32 s29, s29, {QX}")
    A("v_add_u32 v4, s29, v2")
    A.label(f"{name}_aw0")
    A("ds_read_b32 v116, v117 offset:128")
    A("s_waitcnt lgkmcnt(0)")
    A("v_cmp_eq_u32 vcc, 0, v116")
    A("s_nop 1")
    A("s_cmp_eq_u64 vcc, 0")
    A(f"s_cbranch_scc0 {name}_aw0")
    tl_mark(A, 2)
    A("s_cmp_eq_u32 s36, 0")
    A(f"s_cbranch_scc1 {name}_hq")
    A(f"ds_read_b128 {v(VQ,4)}, v4")
    A.label(f"{name}_hq")
    A(f"ds_read_b128 {v(VK,4)}, v108")
    A("s_mov_b64 exec, s[24:25]")
    A(f"ds_read_b128 {v(VV0,4)}, v109")
    A("s_mov_b64 exec, -1")
    A("s_waitcnt lgkmcnt(0)")
    A(f"v_mfma_f32_32x32x16_bf16 {v(VS[0],16)}, {v(VK,4)}, {v(VQ,4)}, 0")
    A("v_mov_b32 v115, 2")
    A("s_mov_b32 s30, 8192")
    A("s_mov_b32 s31, 3")
    A("s_mov_b32 s33, 0")
    A("s_mov_b32 s34, 15")
    A("s_xor_b32 s35, s3, 4")
    A("s_mov_b32 s62, 0")
    A("s_nop 4")
    A(f"v_max3_f32 v6, {v(VS[0])}, {v(VS[0]+1)}, {v(VS[0]+2)}")
    for r in range(3, 15, 2):
        A(f"v_max3_f32 v6, v6, {v(VS[0]+r)}, {v(VS[0]+r+1)}")
    A(f"v_max_f32 v6, v6, {v(VS[0]+15)}")
    def negm_fill():
        A("v_mov_b32 v4, v6")
        A("s_nop 1")
        A("v_permlane32_swap_b32 v4, v6")
        A("s_nop 1")
        A("v_max_f32 v6, v4, v6")
        A("v_sub_f32 v6, 0, v6")
        for r in range(16): A(f"v_mov_b32 {v(VNEG+r)}, v6")
    negm_fill()
    A(f"v_mov_b32 {v(VS[1]+14)}, 0")
    A(f"v_mov_b32 {v(VS[1]+15)}, 0")
    A(f"v_mfma_f32_32x32x16_bf16 {v(VS[0],16)}, {v(VK,4)}, {v(VQ,4)}, {v(VNEG,16)}")
    A(f"ds_read_b128 {v(VK,4)}, v108 offset:2048")
    A("s_waitcnt lgkmcnt(0)")
    A("s_nop 7")
    A("s_nop 1")
    def dma(off):
        A(f"s_add_u32 m0, s27, {off}")
        A("s_lshl_b32 s28, s37, 13")
        A("s_add_u32 s28, s28, s38")
        A("buffer_load_dwordx4 v2, s[20:23], s28 offen sc1 lds")
        A("buffer_load_dwordx4 v2, s[20:23], s28 offen offset:1024 sc1 lds")
        A("s_add_u32 s37, s37, 1")
        A("s_and_b32 s37, s37, 15")
    def unit(tt, peeled):
        X = tt % 2; Y = 1 - X
        S = VS[X]; P = VP[X]; PP = VP[Y]; SY = VS[Y]
        KA, VA = (108, 109) if peeled else (110, 111)
        e = lambda i: A(f"v_exp_f32 {v(S+i)}, {v(S+i)}")
        c = lambda i: A(f"v_cvt_pk_bf16_f32 {v(P+i)}, {v(S+2*i)}, {v(S+2*i+1)}")
        W = (lambda n: A("s_waitcnt lgkmcnt(0)")) if peeled else (lambda n: A(f"s_waitcnt lgkmcnt({n})"))
        e(0)
        A(f"v_cvt_pk_bf16_f32 {v(PP+7)}, {v(SY+14)}, {v(SY+15)}")
        e(1)
        W(0 if tt == 2 else 2)
        if not (peeled and tt == 3):
            A(f"v_mfma_f32_32x32x16_bf16 {v(SY,16)}, {v(VK,4)}, {v(VQ,4)}, {v(VNEG,16)}")
        if tt < 2:
            A(f"ds_read_b128 {v(VK,4)}, v{KA} offset:{(tt+2)*2048}")
        elif peeled:
            pass
        elif tt == 2:
            if asmlib.TIMELINE:
                A("s_mov_b32 m0, s34")
                A("s_nop 0")
                A("v_writelane_b32 v166, s94, m0")
                A("v_writelane_b32 v167, s96, m0")
            A("v_cmp_gt_u32 vcc, s31, v116")
            A("s_add_u32 s30, s30, 8192")
            A("s_and_b32 s30, s30, 0x7fff")
            A("v_add_u32 v112, s30, v108")
            A("v_add_u32 v113, s30, v109")
            A("s_and_b32 s29, vcc_lo, s63")
            A(f"s_cbranch_scc1 {name}_aspin")
            A.label(f"{name}_aspin_ret")
            A(f"ds_read_b128 {v(VK,4)}, v112")
            A("v_readlane_b32 s29, v116, s35")
            A("s_cmp_lt_u32 s29, s31")
            A(f"s_cbranch_scc1 {name}_alow")
            A("s_setprio 1")
            A(f"s_branch {name}_aprio")
            A.label(f"{name}_alow")
            A("s_setprio 0")
            A.label(f"{name}_aprio")
            A("s_add_u32 s31, s31, 1")
            A("s_cmp_gt_u32 s34, 3")
            A(f"s_cbranch_scc0 {name}_awo")
            dma("s33")
            A.label(f"{name}_awo_ret")
            A("s_add_u32 s33, s33, 8192")
            A("s_and_b32 s33, s33, 0x7fff")
            if TD:
                A(f"s_cmp_eq_u32 s34, {16 - TD}")
                A(f"s_cbranch_scc0 {name}_anodma")
                A("buffer_load_dword v129, v127, s[72:75], s64 offen")
                A("buffer_load_dword v130, v128, s[76:79], s65 offen")
            A.label(f"{name}_anodma")
        else:
            A(f"ds_read_b128 {v(VK,4)}, v112 offset:2048")
        e(2); c(0); e(3); e(4); c(1)
        W(2)
        A(f"v_mfma_f32_32x32x16_bf16 {v(VO,16)}, {v(VV1,4)}, {v(PP+4,4)}, {v(VO,16)}")
        A("s_mov_b64 exec, s[24:25]")
        A(f"ds_read_b128 {v(VV1,4)}, v{VA} offset:{tt*2048+512}")
        if tt == 0 and not peeled:
            A("s_waitcnt vmcnt(2)")
            A("s_mov_b64 exec, 1")
            A("ds_write_b32 v114, v115")
        A("s_mov_b64 exec, -1")
        e(5); e(6); c(2); e(7); e(8); c(3); e(9); e(10)
        W(3 if tt == 0 else 2)
        A(f"v_mfma_f32_32x32x16_bf16 {v(VO,16)}, {v(VV0,4)}, {v(P,4)}, {v(VO,16)}")
        if not (peeled and tt == 3):
            A("s_mov_b64 exec, s[24:25]")
            if tt < 3: A(f"ds_read_b128 {v(VV0,4)}, v{VA} offset:{(tt+1)*2048}")
            else: A(f"ds_read_b128 {v(VV0,4)}, v113")
            A("s_mov_b64 exec, -1")
        if tt == 1 and not peeled:
            if asmlib.TIMELINE:
                A("s_memtime s[94:95]")
                A("s_memrealtime s[96:97]")
            A("v_add_u32 v115, 1, v115")
        c(4); e(11); e(12); c(5); e(13); e(14); c(6)
        if tt == 1 and not peeled:
            A("ds_read_b32 v116, v117 offset:128")
        if tt == 3 and not peeled:
            A("v_mov_b32 v110, v112")
            A("v_mov_b32 v111, v113")
            A("s_sub_u32 s34, s34, 1")
            A("s_cmp_lg_u32 s34, 0")
        e(15)
    def go_check(k):
        L = f"{name}_gc{k}"
        A("s_cmp_eq_u32 s62, 1")
        A(f"s_cbranch_scc1 {L}x")
        A("s_cmp_eq_u32 s3, 0")
        A(f"s_cbranch_scc0 {L}n")
        A("s_waitcnt vmcnt(0)")
        A("v_cmp_ne_u64 vcc, s[68:69], v[122:123]")
        A("s_nop 1")
        A("s_cmp_eq_u64 vcc, 0")
        A(f"s_cbranch_scc1 {L}y")
        A("buffer_load_dwordx2 v[122:123], v120, s[20:23], s40 offen sc1")
        A(f"s_branch {L}x")
        A.label(f"{L}y")
        arrive(A, C_GO, 118, 119)
        A(f"s_branch {L}g")
        A.label(f"{L}n")
        A(f"ds_read_b32 v126, v118 offset:{C_GO}")
        A("s_waitcnt lgkmcnt(0)")
        A("v_readfirstlane_b32 s29, v126")
        A("s_cmp_eq_u32 s29, 0")
        A(f"s_cbranch_scc1 {L}x")
        A.label(f"{L}g")
        for cch in range(1, 4): dma(cch * 8192)
        A("s_mov_b32 s62, 1")
        A.label(f"{L}x")
    PUB = int(os.environ.get("PUB", "0"))
    for tt in range(4):
        unit(tt, True)
        if tt == PUB:
            A("s_waitcnt vmcnt(0)")
            publish(A, C_QKV, 8, 118, 119, 124, 29, "s41", f"{name}_pa")
            A("s_cmp_eq_u32 s3, 0")
            A(f"s_cbranch_scc0 {name}_npl")
            A("buffer_load_dwordx2 v[122:123], v120, s[20:23], s40 offen sc1")
            A.label(f"{name}_npl")
        elif tt > PUB:
            go_check(tt)
    A("s_cmp_eq_u32 s62, 1")
    A(f"s_cbranch_scc1 {name}_started")
    A("s_cmp_eq_u32 s3, 0")
    A(f"s_cbranch_scc0 {name}_gw")
    poll_lanes(A, 20, 120, "s40", 122, sleep=2)
    arrive(A, C_GO, 118, 119)
    A(f"s_branch {name}_go")
    A.label(f"{name}_gw")
    wait_cnt(A, C_GO, 1, 118, 126, 29, sleep=1)
    A("s_waitcnt vmcnt(0)")
    A.label(f"{name}_go")
    for cch in range(1, 4): dma(cch * 8192)
    A.label(f"{name}_started")
    tl_mark(A, 3)
    A("s_waitcnt vmcnt(4)")
    A("s_mov_b64 exec, 1")
    A("ds_write_b32 v114, v115")
    A("s_mov_b64 exec, -1")
    A("v_mov_b32 v115, 3")
    A("v_add_u32 v110, 8192, v108")
    A("v_add_u32 v111, 8192, v109")
    A.label(f"{name}_aw2")
    A("ds_read_b32 v116, v117 offset:128")
    A("s_waitcnt lgkmcnt(0)")
    A("v_cmp_gt_u32 vcc, 2, v116")
    A("s_nop 1")
    A("s_and_b32 s29, vcc_lo, s63")
    A(f"s_cbranch_scc1 {name}_aw2")
    A(f"ds_read_b128 {v(VK,4)}, v110")
    A("s_mov_b64 exec, s[24:25]")
    A(f"ds_read_b128 {v(VV0,4)}, v111")
    A("s_mov_b64 exec, -1")
    A("s_waitcnt lgkmcnt(0)")
    A(f"v_mfma_f32_32x32x16_bf16 {v(VS[0],16)}, {v(VK,4)}, {v(VQ,4)}, {v(VNEG,16)}")
    A(f"ds_read_b128 {v(VK,4)}, v110 offset:2048")
    A("s_waitcnt lgkmcnt(0)")
    A("s_nop 7")
    A("s_nop 1")
    A.raw(".p2align 6")
    A.label(f"{name}_aloop")
    for tt in range(4): unit(tt, False)
    A(f"s_cbranch_scc1 {name}_aloop")
    A("s_waitcnt lgkmcnt(0)")
    A(f"v_cvt_pk_bf16_f32 {v(VP[1]+7)}, {v(VS[1]+14)}, {v(VS[1]+15)}")
    A("s_setprio 2")
    A("s_nop 0")
    A(f"v_mfma_f32_32x32x16_bf16 {v(VO,16)}, {v(VV1,4)}, {v(VP[1]+4,4)}, {v(VO,16)}")
    A("s_lshl_b32 s19, s17, 5")
    A("s_add_u32 s19, s19, s16")
    A("s_nop 4")
    A("s_lshl_b32 s19, s19, 10")
    A(f"s_add_u32 s19, s19, {WS_O}")
    A("s_mov_b32 s29, 0x7b800000")
    A("s_nop 1")
    A(f"v_add_f32_e64 v4, abs({v(VO)}), {v(VO+8)}")
    for r in range(1, 8):
        A(f"v_add_f32_e64 v4, abs({v(VO+r)}), v4")
    A("v_cmp_gt_f32 vcc, s29, v4")
    A("s_nop 1")
    A("s_cmp_eq_u64 vcc, -1")
    A(f"s_cbranch_scc0 {name}_aslow")
    A.label(f"{name}_astore")
    A(f"v_rcp_f32 v4, {v(VO+8)}")
    A("s_nop 0")
    for r in range(8): A(f"v_mul_f32 {v(VO+r)}, {v(VO+r)}, v4")
    for r in range(4): A(f"v_cvt_pk_bf16_f32 {v(VP[0]+r)}, {v(VO+2*r)}, {v(VO+2*r+1)}")
    A(f"buffer_store_dwordx4 {v(VP[0],4)}, v2, s[20:23], s19 offen sc1")
    tl_mark(A, 4)
    final(A, name)
    A(f"s_branch {name}_end")
    A.label(f"{name}_awo")
    A("s_add_u32 m0, s27, s33")
    A("s_nop 0")
    A("buffer_load_dwordx4 v131, s[76:79], s66 offen lds")
    A("s_add_u32 m0, m0, 1024")
    A("s_nop 0")
    A("buffer_load_dwordx4 v132, s[76:79], s66 offen lds")
    A("s_add_u32 s66, s66, 65536")
    A(f"s_branch {name}_awo_ret")
    A.label(f"{name}_aspin")
    A("s_sleep 1")
    A("ds_read_b32 v116, v117 offset:128")
    A("s_waitcnt lgkmcnt(0)")
    A("v_cmp_gt_u32 vcc, s31, v116")
    A("s_nop 1")
    A("s_and_b32 s29, vcc_lo, s63")
    A(f"s_cbranch_scc1 {name}_aspin")
    A(f"s_branch {name}_aspin_ret")
    A.label(f"{name}_aslow")
    A("s_waitcnt vmcnt(0) lgkmcnt(0)")
    A("v_mov_b32 v6, 0xff800000")
    A("s_mov_b32 s28, s26")
    A("s_mov_b32 s34, 64")
    A.label(f"{name}_smax")
    A(f"buffer_load_dwordx4 {v(VK,4)}, v2, s[20:23], s28 offen sc1")
    A("s_waitcnt vmcnt(0)")
    A(f"v_mfma_f32_32x32x16_bf16 {v(VS[0],16)}, {v(VK,4)}, {v(VQ,4)}, 0")
    A("s_add_u32 s28, s28, 2048")
    A("s_sub_u32 s34, s34, 1")
    A("s_nop 7")
    A("s_nop 1")
    for r in range(0, 16, 2):
        A(f"v_max3_f32 v6, v6, {v(VS[0]+r)}, {v(VS[0]+r+1)}")
    A("s_cmp_lg_u32 s34, 0")
    A(f"s_cbranch_scc1 {name}_smax")
    negm_fill()
    for r in range(16): A(f"v_mov_b32 {v(VO+r)}, 0")
    A("s_mov_b32 s28, s26")
    A("s_mov_b32 s34, 64")
    A.label(f"{name}_sloop")
    A(f"buffer_load_dwordx4 {v(VK,4)}, v2, s[20:23], s28 offen sc1")
    A("s_mov_b64 exec, s[24:25]")
    A(f"buffer_load_dwordx4 {v(VV0,4)}, v3, s[20:23], s28 offen offset:1024 sc1")
    A(f"buffer_load_dwordx4 {v(VV1,4)}, v3, s[20:23], s28 offen offset:1536 sc1")
    A("s_mov_b64 exec, -1")
    A("s_waitcnt vmcnt(0)")
    A(f"v_mfma_f32_32x32x16_bf16 {v(VS[0],16)}, {v(VK,4)}, {v(VQ,4)}, {v(VNEG,16)}")
    A("s_add_u32 s28, s28, 2048")
    A("s_sub_u32 s34, s34, 1")
    A("s_nop 7")
    A("s_nop 1")
    for r in range(16): A(f"v_exp_f32 {v(VS[0]+r)}, {v(VS[0]+r)}")
    A("s_nop 0")
    for r in range(8): A(f"v_cvt_pk_bf16_f32 {v(VP[0]+r)}, {v(VS[0]+2*r)}, {v(VS[0]+2*r+1)}")
    A("s_nop 1")
    A(f"v_mfma_f32_32x32x16_bf16 {v(VO,16)}, {v(VV0,4)}, {v(VP[0],4)}, {v(VO,16)}")
    A(f"v_mfma_f32_32x32x16_bf16 {v(VO,16)}, {v(VV1,4)}, {v(VP[0]+4,4)}, {v(VO,16)}")
    A("s_cmp_lg_u32 s34, 0")
    A(f"s_cbranch_scc1 {name}_sloop")
    A("s_nop 7")
    A("s_nop 3")
    A(f"s_branch {name}_astore")

def final(A, name):
    WR = 8; OR = 72; AC = 136
    A("s_and_b32 s24, s2, 3")
    A("s_lshl_b32 s24, s24, 3")
    A("s_bfe_u32 s25, s2, 0x30003")
    A("s_add_u32 s24, s24, s25")
    A("s_bfe_u32 s25, s2, 0x10002")
    A("s_lshl_b32 s25, s25, 2")
    A("s_lshr_b32 s26, s2, 6")
    A("s_add_u32 s25, s25, s26")
    A("s_mov_b32 s67, s27")
    A("s_and_b32 s26, s3, 1")
    A("s_bfe_u32 s27, s3, 0x10001")
    A("s_lshr_b32 s28, s3, 2")
    A("v_mov_b32 v160, 0")
    A("v_mov_b32 v161, 1")
    A("v_lshrrev_b32 v3, 5, v0")
    A("v_bfe_u32 v4, v0, 2, 2")
    A("v_lshl_add_u32 v4, v3, 2, v4")
    A("v_lshlrev_b32 v4, 7, v4")
    A("v_bfe_u32 v5, v0, 4, 1")
    A("v_lshlrev_b32 v5, 1, v5")
    A("v_bfe_u32 v6, v0, 1, 1")
    A("v_add_u32 v5, v5, v6")
    A("v_bfe_u32 v6, v0, 3, 1")
    A("v_xor_b32 v6, s27, v6")
    A("v_lshl_add_u32 v5, v6, 2, v5")
    A("v_lshl_add_u32 v4, v5, 4, v4")
    A("v_and_b32 v6, 1, v0")
    A("v_lshl_add_u32 v4, v6, 3, v4")
    A("s_lshl_b32 s29, s28, 15")
    A(f"s_add_u32 s29, s29, {ABASE}")
    A("v_add_u32 v4, s29, v4")
    A("v_and_b32 v5, 31, v0")
    A("s_lshl_b32 s29, s26, 5")
    A("v_add_u32 v5, s29, v5")
    A("s_lshl_b32 s29, s27, 6")
    A("s_lshl_b32 s30, s28, 5")
    A("s_add_u32 s29, s29, s30")
    A("v_lshl_add_u32 v6, v3, 4, s29")
    A(f"v_mul_u32_u24 v7, {ffn.RED_STRIDE}, v5")
    A("v_lshl_add_u32 v7, v6, 1, v7")
    A(f"v_add_u32 v7, {BOFF}, v7")
    def gcalc(T):
        for w in range(4):
            for q in range(2):
                A(f"ds_read_b128 {v(T+8*w+4*q,4)}, v7 offset:{w*ffn.RED_WAVE + q*16}")
        A("s_waitcnt lgkmcnt(4)")
        for i in range(8): A(f"v_add_f32 v{T+i}, v{T+i}, v{T+8+i}")
        A("s_waitcnt lgkmcnt(0)")
        for i in range(8): A(f"v_add_f32 v{T+16+i}, v{T+16+i}, v{T+24+i}")
        for i in range(8): A(f"v_add_f32 v{T+i}, v{T+i}, v{T+16+i}")
        for i in range(4): A(f"v_cvt_pk_bf16_f32 v{T+8+i}, v{T+2*i}, v{T+2*i+1}")
        for i in range(4):
            A(f"v_lshlrev_b32 v{T+2*i}, 16, v{T+8+i}")
            A(f"v_and_b32 v{T+2*i+1}, 0xffff0000, v{T+8+i}")
        for i in range(8): A(f"v_mul_f32 v{T+8+i}, {hex(f2u(-LOG2E))}, v{T+i}")
        for i in range(8): A(f"v_exp_f32 v{T+8+i}, v{T+8+i}")
        for i in range(8): A(f"v_add_f32 v{T+8+i}, 1.0, v{T+8+i}")
        for i in range(8): A(f"v_rcp_f32 v{T+8+i}, v{T+8+i}")
        for i in range(8): A(f"v_mul_f32 v{T+i}, v{T+i}, v{T+8+i}")
        for i in range(4): A(f"v_cvt_pk_bf16_f32 v{156+i}, v{T+2*i}, v{T+2*i+1}")
    A("v_lshl_add_u32 v6, v5, 10, v6")
    A("s_lshl_b32 s30, s24, 16")
    A("s_lshl_b32 s31, s25, 7")
    A("s_add_u32 s30, s30, s31")
    A("buffer_load_dwordx4 v[152:155], v6, s[8:11], s30 offen")
    A("s_waitcnt vmcnt(1)")
    publish(A, C_O, 8, 160, 161, 162, 33, "s18", f"{name}_po")
    A("s_lshl_b32 s31, s24, 1")
    A("s_add_u32 s31, s31, s26")
    A("s_lshl_b32 s31, s31, 5")
    A("s_lshl_b32 s32, s28, 4")
    A("s_add_u32 s31, s31, s32")
    A("s_lshr_b32 s32, s24, 1")
    A("s_lshl_b32 s32, s32, 1")
    A("s_add_u32 s32, s32, s28")
    A("s_lshl_b32 s32, s32, 10")
    A(f"s_add_u32 s32, s32, {FL_O}")
    A("s_lshl_b32 s31, s31, 10")
    A(f"s_add_u32 s31, s31, {WS_O}")
    A("v_and_b32 v5, 7, v0")
    A("v_lshlrev_b32 v5, 7, v5")
    srd(A, 12, 44, 2048 * 1024)
    wait_cnt(A, C_O, 8, 160, 162, 33, sleep=1)
    A("s_add_u32 m0, s67, 24576")
    A("s_nop 0")
    A("buffer_load_dwordx4 v131, s[76:79], s66 offen lds")
    A("s_add_u32 m0, m0, 1024")
    A("s_nop 0")
    A("buffer_load_dwordx4 v132, s[76:79], s66 offen lds")
    lg = Cnt(A, "lgkmcnt", 15)
    for j in range(12):
        for p in range(2):
            A(f"ds_read_b64_tr_b16 {v(WR+4*j+2*p,2)}, v4 offset:{j*2048 + p*1024}"); lg.issue("w")
    A(f"ds_read_b32 v162, v160 offset:{C_G}")
    A("s_waitcnt lgkmcnt(0)")
    lg.seq = []
    A("v_readfirstlane_b32 s37, v162")
    A("s_cmp_ge_u32 s37, 4")
    A(f"s_cbranch_scc0 {name}_glate")
    gcalc(OR)
    A.label(f"{name}_glate")
    A("s_lshl_b32 s33, s28, 2")
    A("v_mov_b32 v165, s33")
    A("s_and_b32 s33, s3, 3")
    A("s_cmp_eq_u32 s33, 0")
    A(f"s_cbranch_scc0 {name}_gw2")
    poll_lanes(A, 20, 5, "s32", 162, sleep=2)
    arrive(A, C_GO2, 165, 161)
    A(f"s_branch {name}_go2")
    A.label(f"{name}_gw2")
    wait_cnt(A, C_GO2, 1, 165, 162, 33, sleep=1)
    A("s_waitcnt vmcnt(0)")
    A.label(f"{name}_go2")
    tl_mark(A, 5)
    vm = Cnt(A, "vmcnt", 63)
    for j in range(16):
        if j % 4 == 0 and j: A("s_add_u32 s31, s31, 4096")
        A(f"buffer_load_dwordx4 {v(OR+4*j,4)}, v2, s[20:23], s31 offen offset:{(j%4)*1024} sc1"); vm.issue(("o", j))
    arrive(A, C_WO, 160, 161)
    wait_cnt(A, C_WO, 8, 160, 162, 33, sleep=0)
    for j in range(12, 16):
        for p in range(2):
            A(f"ds_read_b64_tr_b16 {v(WR+4*j+2*p,2)}, v4 offset:{j*2048 + p*1024}")
    lg.wait_all()
    A("s_lshl_b32 s33, s3, 11")
    A(f"s_add_u32 s33, s33, {XCH2}")
    A("v_add_u32 v3, s33, v2")
    A("v_xor_b32 v5, 8192, v3") if (XCH2 % 16384 == 0) else None
    if XCH2 % 16384:
        A("s_xor_b32 s33, s3, 4")
        A("s_lshl_b32 s33, s33, 11")
        A(f"s_add_u32 s33, s33, {XCH2}")
        A("v_add_u32 v5, s33, v2")
    A("s_lshl_b32 s33, s3, 2")
    A("v_mov_b32 v163, s33")
    A("v_xor_b32 v164, 16, v163")
    for j in range(16):
        vm.wait(("o", j))
        A(f"v_mfma_f32_32x32x16_bf16 {v(AC,16)}, {v(WR+4*j,4)}, {v(OR+4*j,4)}, {v(AC,16) if j else 0}")
    A("s_cmp_eq_u32 s28, 0")
    A(f"s_cbranch_scc0 {name}_fk1")
    A("s_nop 7")
    A("s_nop 1")
    A(f"ds_write_b128 v3, {v(AC+8,4)}")
    A(f"ds_write_b128 v3, {v(AC+12,4)} offset:1024")
    A(f"s_branch {name}_fk")
    A.label(f"{name}_fk1")
    A("s_nop 7")
    A("s_nop 1")
    A(f"ds_write_b128 v3, {v(AC,4)}")
    A(f"ds_write_b128 v3, {v(AC+4,4)} offset:1024")
    A("s_waitcnt lgkmcnt(0)")
    for r in range(8): A(f"v_mov_b32 v{AC+r}, v{AC+8+r}")
    A.label(f"{name}_fk")
    A("s_waitcnt lgkmcnt(0)")
    A("s_mov_b64 exec, 1")
    A("ds_write_b32 v163, v161 offset:160")
    A("s_mov_b64 exec, -1")
    A("s_cmp_ge_u32 s37, 4")
    A(f"s_cbranch_scc1 {name}_ghave")
    wait_cnt(A, C_G, 4, 160, 162, 33, sleep=0)
    gcalc(OR)
    A.label(f"{name}_ghave")
    for i in range(4):
        A(f"v_lshlrev_b32 v{8+2*i}, 16, v{156+i}")
        A(f"v_and_b32 v{9+2*i}, 0xffff0000, v{156+i}")
        A(f"v_lshlrev_b32 v{16+2*i}, 16, v{152+i}")
        A(f"v_and_b32 v{17+2*i}, 0xffff0000, v{152+i}")
    wait_cnt(A, 160, 1, 164, 162, 33, sleep=0)
    A("ds_read_b128 v[24:27], v5")
    A("ds_read_b128 v[28:31], v5 offset:1024")
    A("s_waitcnt lgkmcnt(0)")
    for r in range(8): A(f"v_add_f32 v{AC+r}, v{AC+r}, v{24+r}")
    for i in range(4): A(f"v_cvt_pk_bf16_f32 v{24+i}, v{AC+2*i}, v{AC+2*i+1}")
    A("s_nop 1")
    A("v_permlane32_swap_b32 v24, v26")
    A("v_permlane32_swap_b32 v25, v27")
    A("s_nop 1")
    for i in range(4):
        A(f"v_lshlrev_b32 v{32+2*i}, 16, v{24+i}")
        A(f"v_and_b32 v{33+2*i}, 0xffff0000, v{24+i}")
    for i in range(8): A(f"v_mul_f32 v{32+i}, v{32+i}, v{8+i}")
    for i in range(4): A(f"v_cvt_pk_bf16_f32 v{24+i}, v{32+2*i}, v{33+2*i}")
    for i in range(4):
        A(f"v_lshlrev_b32 v{32+2*i}, 16, v{24+i}")
        A(f"v_and_b32 v{33+2*i}, 0xffff0000, v{24+i}")
    for i in range(8): A(f"v_add_f32 v{32+i}, v{32+i}, v{16+i}")
    for i in range(4): A(f"v_cvt_pk_bf16_f32 v{24+i}, v{32+2*i}, v{33+2*i}")
    A("buffer_store_dwordx4 v[24:27], v6, s[12:15], s30 offen")
    if os.environ.get("DBGSPAN"):
        A("s_waitcnt vmcnt(0)")
        A("s_memrealtime s[98:99]")
        A("s_waitcnt lgkmcnt(0)")
        A("s_sub_u32 s98, s98, s68")
        A("v_mov_b32 v1, s98")
        A("s_lshl_b32 s97, s3, 8")
        A("s_add_u32 s97, s97, s2")
        A("s_lshl_b32 s97, s97, 2")
        A("s_mov_b64 exec, 1")
        A("buffer_store_dword v1, v160, s[52:55], s97 offen offset:16")
        A("s_mov_b64 exec, -1")
    tl_end(A, 0, 20)
    tl_marks_out(A, 1, 6, 20)
    if asmlib.TIMELINE:
        A("s_lshl_b32 s58, s2, 3")
        A("s_add_u32 s58, s58, s3")
        A("s_lshl_b32 s58, s58, 9")
        A(f"s_add_u32 s58, s58, {100<<20}")
        A("v_lshlrev_b32 v1, 3, v0")
        A("buffer_store_dwordx2 v[166:167], v1, s[20:23], s58 offen")

class BBar:
    def __init__(self, name): self.n = 0; self.name = name; self.lg = None; self.boost = False
    def __call__(self, A):
        self.n += 1
        if self.boost: A("s_setprio 2")
        A("s_mov_b64 exec, 2")
        A("ds_add_u32 v7, v7 offset:64")
        A("s_mov_b64 exec, 1")
        A.label(f"{self.name}_bb{self.n}")
        A("ds_read_b32 v1, v7 offset:80")
        A("s_waitcnt lgkmcnt(0)")
        A("v_readfirstlane_b32 s56, v1")
        A(f"s_cmp_ge_u32 s56, {64*self.n}")
        A(f"s_cbranch_scc0 {self.name}_bb{self.n}")
        A("s_mov_b64 exec, -1")
        if self.boost: A("s_setprio 0")
        if self.lg is not None: self.lg.seq = []

def lb_role(A, name):
    A("s_sub_u32 s3, s3, 8")
    A("v_lshlrev_b32 v7, 2, v0")
    A("v_mov_b32 v1, 0")
    A("ds_write_b32 v7, v1")
    A("v_lshlrev_b32 v7, 4, v0")
    rc_qkv(A)
    A("v_lshrrev_b32 v4, 3, v0")
    A("v_and_b32 v5, 7, v0")
    A("v_lshrrev_b32 v6, 4, v0")
    A("v_xor_b32 v5, v5, v6")
    A("v_xor_b32 v8, 4, v5")
    A("s_lshl_b32 s28, s3, 15")
    A("v_lshlrev_b32 v4, 10, v4")
    A("v_add_u32 v4, s28, v4")
    A("v_lshl_add_u32 v60, v5, 4, v4")
    A("v_lshl_add_u32 v61, v8, 4, v4")
    A("v_add_u32 v61, 8192, v61")
    A("v_add_u32 v62, 16384, v60")
    A("v_add_u32 v63, 16384, v61")
    A("v_lshrrev_b32 v4, 2, v0")
    A("s_lshl_b32 s28, s3, 4")
    A("v_add_u32 v4, s28, v4")
    A("v_mul_u32_u24 v4, 3072, v4")
    A("v_and_b32 v5, 3, v0")
    A("v_lshl_add_u32 v64, v5, 4, v4")
    A("s_lshl_b32 s28, s25, 6")
    A("v_add_u32 v64, s28, v64")
    A("v_add_u32 v65, 1024, v64")
    A("v_add_u32 v66, 2048, v64")
    A("s_lshl_b32 s70, s24, 1")
    A("s_add_u32 s70, s70, s25")
    A("s_and_b32 s70, s70, 7")
    A("s_lshl_b32 s71, s24, 17")
    A("s_lshl_b32 s72, s3, 12")
    A(f"s_add_u32 s72, s72, {K1B}")
    A("s_lshl_b32 s73, s3, 10")
    A(f"s_add_u32 s73, s73, {K1B + 16384}")
    A(f"s_mov_b32 s74, {2*K1_SLOT}")
    A("s_waitcnt lgkmcnt(0)")
    A("s_barrier")
    srd(A, 60, 4, 2048 * 1024)
    srd(A, 64, 6, 512 * 3072)
    srd(A, 20, 16, WS_END)
    srd(A, 52, 18, 256)
    def ldma():
        A("s_lshl_b32 s75, s70, 7")
        A("s_add_u32 s75, s75, s71")
        A(f"s_mul_i32 s76, s70, {64*3072}")
        A("s_add_u32 s70, s70, 1")
        A("s_and_b32 s70, s70, 7")
        A("s_add_u32 s77, s72, s74")
        A("s_add_u32 s78, s73, s74")
        for e in range(4):
            A(f"s_add_u32 m0, s77, {e*1024}")
            A("s_nop 0")
            A(f"buffer_load_dwordx4 v{60+e}, s[60:63], s75 offen lds")
        for T_ in range(3):
            A(f"s_add_u32 m0, s78, {T_*4096}")
            A("s_nop 0")
            A(f"buffer_load_dwordx4 v{64+T_}, s[64:67], s76 offen lds")
        A(f"s_add_u32 s74, s74, {K1_SLOT}")
        A(f"s_cmp_eq_u32 s74, {K1_SLOT*K1_NS}")
        A("s_cselect_b32 s74, 0, s74")
    A("s_mov_b32 s79, 0")
    A.label(f"{name}_lpro")
    ldma()
    A("s_add_u32 s79, s79, 1")
    A(f"s_cmp_lt_u32 s79, {K1_PRO}")
    A(f"s_cbranch_scc1 {name}_lpro")
    A("s_mov_b32 s4, s48")
    A("s_mov_b32 s5, s49")
    A("s_mov_b32 s6, s50")
    A("s_mov_b32 s7, s51")
    bar = BBar(name)
    def prologue(A, dma, vm):
        issued = K1_PRO; seq = [("k", st) for st in range(K1_PRO) for _ in range(7)]
        A("s_lshl_b32 s36, s24, 11")
        A(f"s_add_u32 s36, s36, {FL_X}")
        A("v_and_b32 v1, 15, v0")
        A("v_lshlrev_b32 v1, 7, v1")
        A("v_mov_b32 v67, 0")
        A("s_and_b32 s37, s24, 7")
        A("s_lshl_b32 s37, s37, 1")
        A("s_and_b32 s38, s3, 1")
        A("s_add_u32 s37, s37, s38")
        A("s_lshl_b32 s37, s37, 5")
        A("v_and_b32 v68, 31, v0")
        A("v_add_u32 v68, s37, v68")
        A("v_mul_u32_u24 v68, 3584, v68")
        A("v_add_u32 v68, s28, v68")
        A("v_lshrrev_b32 v69, 5, v0")
        A("v_lshl_add_u32 v69, v69, 7, v68")
        TJ = int(os.environ.get("TJ", "-1"))
        for j in range(8):
            idx = max(i for i, t in enumerate(seq) if t == ("k", j))
            A(f"s_waitcnt vmcnt({len(seq) - 1 - idx})")
            A("s_barrier")
            if issued < 8 and issued - 4 <= j:
                ldma(); seq += [("k", issued)] * 7; issued += 1
                if j == TJ:
                    A("buffer_load_dword v70, v69, s[8:11], 0 offen")
                    A("buffer_load_dword v71, v68, s[8:11], 0 offen offset:220")
                    seq += [("t", 0)] * 2
            elif j == 6:
                A("buffer_load_dwordx2 v[12:13], v67, s[52:55], 0 offen sc1")
                A("buffer_load_dwordx2 v[14:15], v1, s[20:23], s36 offen sc1")
                if os.environ.get("BWAIT") == "2": seq += [("g", 0)] * 2
                else:
                    dma(0); seq += [("g", 0)] * 9
        assert issued == 8
        A("s_waitcnt vmcnt(0)" if os.environ.get("BWAIT") == "2" else "s_waitcnt vmcnt(7)")
        A("v_readfirstlane_b32 s68, v12")
        A("v_readfirstlane_b32 s69, v13")
        A("v_cmp_ne_u64 vcc, v[12:13], v[14:15]")
        A("s_cmp_eq_u32 s68, 0")
        A(f"s_cbranch_scc1 {name}_xslow")
        A("s_cmp_eq_u64 vcc, 0")
        A(f"s_cbranch_scc1 {name}_xok")
        A.label(f"{name}_xslow")
        wait_ready(A, 67, 12, 37)
        poll_lanes(A, 20, 1, "s36", 12, sleep=1)
        A.label(f"{name}_xok")
        if os.environ.get("BWAIT"):
            wait_cnt(A, C_LN + 44, 8, 67, 71, 37, sleep=1)
        if os.environ.get("BWAIT") == "2": dma(0)
        tl_mark(A, 4)
    def wait_slot2(A, lg):
        A("v_mov_b32 v0, 0")
        wait_cnt(A, C_WFREE, 8, 0, 1, 37)
        lg.seq = []
    ffn.gu_body(A, name + "_gu", bar, st_flags="sc1", lds0=BOFF, x_flags=os.environ.get("XFL", "sc1"), prologue=prologue, wait_slot2=wait_slot2)
    A("s_waitcnt vmcnt(0)")
    bar(A)
    A("s_cmp_eq_u32 s3, 0")
    A(f"s_cbranch_scc0 {name}_noflag")
    A("s_lshl_b32 s34, s24, 4")
    A("s_add_u32 s34, s34, s25")
    A("s_lshl_b32 s34, s34, 7")
    A(f"s_add_u32 s34, s34, {FL_H}")
    A("v_mov_b32 v1, 0")
    A("s_mov_b64 exec, 1")
    flag_store(A, 1, 2, "s34")
    A("s_mov_b64 exec, -1")
    A.label(f"{name}_noflag")
    tl_mark(A, 1)
    A("s_mov_b32 s4, s46")
    A("s_mov_b32 s5, s47")
    A("v_lshrrev_b32 v0, 4, v7")
    ctx = ffn.sk_body(A, name + "_dn", bar, 28, WS_H, 112 * 1024, 1792 * 1024, "g", ld_flags="sc1", lds0=BOFF)
    def wait_act(A):
        A("s_lshr_b32 s34, s24, 1")
        A("s_lshl_b32 s34, s34, 11")
        A("s_lshl_b32 s35, s3, 9")
        A("s_add_u32 s34, s34, s35")
        A(f"s_add_u32 s34, s34, {FL_H}")
        A("v_and_b32 v1, 3, v0")
        A("v_lshlrev_b32 v1, 7, v1")
        poll_lanes(A, 20, 1, "s34", 16, sleep=4)
        DEF = int(os.environ.get("DEFER", "13"))
        if os.environ.get("HT", "1") == "1":
            A("s_and_b32 s34, s25, 3")
            A("s_mul_i32 s34, s34, 7168")
            A("v_min_u32 v1, 55, v0")
            A("v_lshlrev_b32 v1, 7, v1")
            A("v_add_u32 v1, s34, v1")
            A("buffer_load_dword v16, v1, s[20:23], s29 offen sc1")
            A("buffer_load_dword v17, v1, s[20:23], s30 offen sc1")
            A("s_waitcnt vmcnt(0)")
        if DEF:
            A("v_mov_b32 v1, 0")
            wait_cnt(A, 128, DEF, 1, 16, 35, sleep=8)
        tl_mark(A, 2)
        ctx["vm"].seq = []
    bar.lg = ctx["lg"]
    def after_red_reads(A):
        pass
    ffn.sk_main(A, name + "_dn", bar, 28, ctx, "gpart", wait_act=wait_act, lds0=BOFF, after_red_reads=after_red_reads, gbuf=(GBUF, GSTR))
    A("s_waitcnt vmcnt(0) lgkmcnt(0)")
    A("v_mov_b32 v1, 0")
    A("v_mov_b32 v2, 1")
    arrive(A, C_G, 1, 2)
    A("s_add_u32 s3, s3, 8")
    tl_end(A, 8, 20)
    tl_marks_out(A, 9, 7 if os.environ.get('GUT') else 5, 20)

def gen(A, name=NAME):
    kernel_begin(A, name)
    A("s_cmp_ge_u32 s2, 256")
    A(f"s_cbranch_scc1 F_end")
    if os.environ.get("PERM"):
        A("s_lshr_b32 s3, s2, 5")
        A("s_and_b32 s2, s2, 31")
        A("s_lshl_b32 s2, s2, 3")
        A("s_or_b32 s2, s2, s3")
    tl_begin(A)
    A("s_load_dwordx4 s[4:7], s[0:1], 0")
    A("s_load_dwordx2 s[42:43], s[0:1], 16")
    A("s_load_dwordx4 s[48:51], s[0:1], 32")
    A("s_load_dwordx2 s[46:47], s[0:1], 48")
    A("s_load_dwordx2 s[44:45], s[0:1], 56")
    A("s_load_dwordx2 s[18:19], s[0:1], 64")
    A("s_load_dwordx2 s[16:17], s[0:1], 72")
    A("v_lshrrev_b32 v1, 6, v0")
    A("v_and_b32 v0, 63, v0")
    A("s_nop 0")
    A("v_readfirstlane_b32 s3, v1")
    A("s_cmp_lt_u32 s3, 8")
    A("s_cbranch_scc0 F_lb")
    ca_role(A, "F")
    A.label("F_lb")
    ffn.PRIO = True
    A("s_setprio 2")
    asmlib.MARK_OFF = bool(os.environ.get("GUT"))
    lb_role(A, "F")
    ffn.PRIO = False
    A.label("F_end")
    A("s_endpgm")
```
